```python
import torch

def _softmax(x, axis=-1):
    return torch.softmax(x, dim=axis)
def _gelu(x):
    return torch.nn.functional.gelu(x, approximate="tanh")
def _silu(x):
    return torch.nn.functional.silu(x)
def _sigmoid(x):
    return torch.sigmoid(x)
def _layernorm(x, axis=-1, eps=1e-5):
    m = x.mean(dim=axis, keepdim=True)
    v = x.var(dim=axis, keepdim=True, unbiased=False)
    return (x - m) / torch.sqrt(v + eps)
def _scatter_add(tgt, idx, src, axis=0):
    return tgt.clone().index_add_(axis, idx, src)
def _segment_sum(src, seg, n):
    out = torch.zeros((n,) + src.shape[1:], dtype=src.dtype)
    return out.index_add_(0, seg, src)
def _pad(x, pw):
    flat = tuple(v for pair in reversed(pw) for v in pair)
    return torch.nn.functional.pad(x, flat)

kernel_name = 'gated_mix__compressed_kv_cla__glu_gated_glu__prompt'

def setup_inputs():

    _w = (lambda a: (lambda t: t.to(torch.bfloat16) if t.is_floating_point() else t)(torch.as_tensor(a)))
    def _A_setup():
        B, H, Sq, Sk, D, M = 1, 16, 2048, 2048, 256, 448
        Dc = 4 * D
        return {
            "x": _w((lambda *s: torch.randn(*s, dtype=torch.bfloat16) * 0.05)(B, Sq, M)),
            "c_kv": _w((lambda *s: torch.randn(*s, dtype=torch.bfloat16) * 0.8)(B, Sk, Dc)),
            "w_q": _w((lambda *s: torch.randn(*s, dtype=torch.bfloat16) * 6.4)(M, H, D) * (M ** -0.5)),
            "w_uk": _w((lambda *s: torch.randn(*s, dtype=torch.bfloat16) * 6.4)(Dc, H, D) * (Dc ** -0.5)),
            "w_uv": _w((lambda *s: torch.randn(*s, dtype=torch.bfloat16) * 0.8)(Dc, H, D) * (Dc ** -0.5)),
            "w_o": _w((lambda *s: torch.randn(*s, dtype=torch.bfloat16) * 0.8)(H, D, M) * ((H * D) ** -0.5)),
        }
    _A_in = _A_setup()

    def _B_setup():
        B, S, D, F = 1, 2048, 448, 1792
        return {
            "x": _w((lambda *s: torch.randn(*s, dtype=torch.bfloat16) * 0.05)(B, S, D)),
            "w_gate": _w((lambda *s: torch.randn(*s, dtype=torch.bfloat16) * 3.2)(D, F)),
            "w_up": _w((lambda *s: torch.randn(*s, dtype=torch.bfloat16) * 0.05)(D, F)),
            "w_down": _w((lambda *s: torch.randn(*s, dtype=torch.bfloat16) * 0.05)(F, D)),
        }
    _B_in = _B_setup()

    return {
        "A_x": _A_in["x"],
        "A_c_kv": _A_in["c_kv"],
        "A_w_q": _A_in["w_q"],
        "A_w_uk": _A_in["w_uk"],
        "A_w_uv": _A_in["w_uv"],
        "A_w_o": _A_in["w_o"],
        "B_x": _B_in["x"],
        "B_w_gate": _B_in["w_gate"],
        "B_w_up": _B_in["w_up"],
        "B_w_down": _B_in["w_down"],
        "gate_w": _w((lambda *s: torch.randn(*s, dtype=torch.bfloat16) * 0.05)(448) * 16.0),
    }

def reference(A_x, A_c_kv, A_w_q, A_w_uk, A_w_uv, A_w_o, B_x, B_w_gate, B_w_up, B_w_down, gate_w):
    def _A_ref(x, c_kv, w_q, w_uk, w_uv, w_o):
        B, Sq, M = x.shape[0], x.shape[1], x.shape[2]
        Sk = c_kv.shape[1]
        H, D = w_q.shape[1], w_q.shape[2]
        q = torch.einsum("bqm,mhd->bhqd", x, w_q)
        k = torch.einsum("bkc,chd->bhkd", c_kv, w_uk)
        v = torch.einsum("bkc,chd->bhkd", c_kv, w_uv)
        scores = torch.einsum("bhqd,bhkd->bhqk", q, k) * (D ** -0.5)
        off = Sk - Sq
        qi = torch.arange(Sq)[:, None]
        kj = torch.arange(Sk)[None, :]
        cmask = kj <= (qi + off)
        scores = torch.where(cmask[None, None], scores, -1e9)
        p = _softmax(scores, axis=-1)
        ctx = torch.einsum("bhqk,bhkd->bhqd", p, v)
        return torch.einsum("bhqd,hdm->bqm", ctx, w_o)

    def _B_ref(x, w_gate, w_up, w_down):
        g = torch.einsum("bsd,df->bsf", x, w_gate)
        u = torch.einsum("bsd,df->bsf", x, w_up)
        h = _sigmoid(g) * u
        return torch.einsum("bsf,fd->bsd", h, w_down)

    x = A_x
    g = _sigmoid((x * gate_w).sum(-1, keepdims=True))
    a = _A_ref(x, A_c_kv, A_w_q, A_w_uk, A_w_uv, A_w_o)
    b = _B_ref(x, B_w_gate, B_w_up, B_w_down)
    return g * a + (1 - g) * b
```

```python
class Asm:
    def __init__(self):
        self.lines = []
    def __call__(self, *ss):
        for s in ss:
            if isinstance(s, (list, tuple)):
                self(*s)
            else:
                self.lines.append(s)
    def label(self, n): self.lines.append(f"{n}:")
    def text(self): return "\n".join(self.lines) + "\n"

def vr(b, n=1, f="v"):
    return f"{f}{b}" if n == 1 else f"{f}[{b}:{b+n-1}]"
def ar(b, n=1): return vr(b, n, "a")
def sr(b, n=1): return vr(b, n, "s")

def kernel_begin(A, name):
    A(".text", f".globl {name}", ".p2align 8", f".type {name},@function", f"{name}:")

def kernel_desc(A, name, vgpr, accum, sgpr=102):
    A('.section .rodata,"a"', ".p2align 6", f".amdhsa_kernel {name}",
      f"  .amdhsa_next_free_vgpr {vgpr}", f"  .amdhsa_next_free_sgpr {sgpr}",
      f"  .amdhsa_accum_offset {accum}", "  .amdhsa_group_segment_fixed_size 0",
      "  .amdhsa_kernarg_size 112", "  .amdhsa_user_sgpr_count 2",
      "  .amdhsa_user_sgpr_kernarg_segment_ptr 1", "  .amdhsa_system_sgpr_workgroup_id_x 1",
      ".end_amdhsa_kernel")

MB = 1 << 20
QF_OFF = 0
KF_OFF = 16 * MB
VF_OFF = 32 * MB
AF_OFF = 48 * MB
WF_OFF = 72 * MB
PART_OFF = 80 * MB
MISC_OFF = 100 * MB
WS_BYTES = 268435456
KSTEPS3 = 184

P_X, P_CKV, P_WQ, P_WUK, P_WUV, P_WO, P_BX, P_WG = 32, 34, 36, 38, 40, 42, 44, 46
P_WU, P_WD, P_GW, P_OUT = 48, 50, 52, 54
P_DBG, P_WS = 56, 58
def load_kernargs(A):
    A("s_load_dwordx16 s[32:47], s[0:1], 0",
      "s_load_dwordx8 s[48:55], s[0:1], 64",
      "s_load_dwordx4 s[56:59], s[0:1], 96")

def interleave(A, mfmas, gaps):
    for i, m in enumerate(mfmas):
        A(m)
        for x in gaps.get(i, []):
            A(x)

STAMPS = False
STAMP_S = 84
def stamp(A, k):
    if _st(): A(f"s_memtime s[{STAMP_S+2*k}:{STAMP_S+2*k+1}]")
def stamp_rt(A, k):
    if _st(): A(f"s_memrealtime s[{STAMP_S+2*k}:{STAMP_S+2*k+1}]")
def stamp_flush(A, srd_ws, s_wave, region, n=9, vt=32):
    if not _st(): return
    A("s_waitcnt lgkmcnt(0) vmcnt(0)")
    A(f"s_lshl_b32 s2, s2, 3", f"s_add_u32 s2, s2, s{s_wave}", "s_lshl_b32 s2, s2, 6",
      f"s_add_u32 s2, s2, {MISC_OFF + region*262144}")
    A(f"v_mov_b32 v{vt+1}, 0")
    for k in range(n):
        A(f"v_mov_b32 v{vt}, s{STAMP_S+2*k}", f"buffer_store_dword v{vt}, v{vt+1}, {sr(srd_ws,4)}, s2 offen offset:{4*k}", "s_nop 0")
def _st():
    import asmlib
    return asmlib.STAMPS
```

```python
from asmlib import *
import asmlib

WBASE = 98304
SRD_A, SRD_W, SRD_WS = 4, 8, 12
S_W, S_WM, S_WN = 16, 17, 18
S_SOA0, S_SOA1, S_SOW, S_WINC = 19, 20, 21, 22
S_RSLOT, S_DSLOT, S_WM0, S_N = 23, 24, 25, 26
S_W8192 = 27
S_DST1, S_DST2, S_T0, S_T1 = 28, 29, 30, 31
S2_A0, S2_A1, S2_ASZ, S2_SOA0, S2_SOA1 = 60, 61, 62, 63, 64
S2_W0, S2_W1, S2_WSZ, S2_SOW, S2_WINC = 65, 66, 67, 68, 69
S_IDX, S_XCD, S_RT1, S_HEAD1, S_RT2, S_C2, S_T2, S_T3, S_KIND = 70, 71, 72, 73, 74, 75, 76, 77, 78
S_STA2, S_STW2, S_LOG2E = 79, 80, 81
V_A, V_W, V_RW, V_RA, V_RCUR, V_A2, V_W2, V_L16, V_T = 1, 5, 9, 13, 15, 16, 20, 24, 25
ACC_V, NACC_V = 32, 56
FR = 32

def acc(i, j):
    b = i * 8 + j
    return ("v", ACC_V + 4 * b) if b < NACC_V else ("a", 4 * (b - NACC_V))
def accs(i, j):
    f, b = acc(i, j)
    return vr(b, 4, f)
def wfrag(p, i): return FR + 64 * p + 4 * i
def afrag(p, j): return FR + 64 * p + 32 + 4 * j

def reads_for(p, wslot):
    R = []
    for i in range(8):
        st, cb = i >> 2, i & 3
        for h in range(2):
            R.append(f"ds_read_b64_tr_b16 {ar(wfrag(p,i)+2*h,2)}, v{V_RW+cb} offset:{wslot*16384+st*8192+h*1024}")
    for j in range(8):
        R.append(f"ds_read_b128 {ar(afrag(p,j),4)}, v{V_RCUR} offset:{j*2048}")
    return R

def dma_w(j): return f"buffer_load_dwordx4 v{V_W+j}, {sr(SRD_W,4)}, s{S_SOW} offen offset:{j*1024} lds"
def dma_a(j, hf): return f"buffer_load_dwordx4 v{V_A+j}, {sr(SRD_A,4)}, s{S_SOA1 if hf else S_SOA0} offen offset:{j*1024} lds"

def step(A, phase, orient, first=False, extra=None, tail=None):
    p = phase & 1
    m = []
    for i in range(8):
        for j in range(8):
            c = "0" if first else accs(i, j)
            w, a = ar(wfrag(p, i), 4), ar(afrag(p, j), 4)
            x, y = (w, a) if orient == "WA" else (a, w)
            m.append(f"v_mfma_f32_16x16x32_bf16 {accs(i,j)}, {x}, {y}, {c}")
    g = {}
    def put(k, *ins): g.setdefault(k, []).extend(ins)
    if phase & 1:
        put(0, f"s_add_u32 s{S_DSLOT}, s{S_RSLOT}, s{S_W8192}", f"s_add_u32 s{S_RSLOT}, s{S_RSLOT}, 32768",
               f"s_cmp_eq_u32 s{S_RSLOT}, 98304")
        put(2, f"s_cselect_b32 s{S_RSLOT}, 0, s{S_RSLOT}")
    put(6, f"v_add_u32 v{V_RCUR}, s{S_RSLOT}, v{V_RA + ((phase + 1) & 1)}")
    R = reads_for(1 - p, (phase + 1) & 3)
    for k, r in enumerate(R):
        put(1 + 2 * k, r)
    put(2, f"s_add_u32 m0, s{S_WM0}, {phase*16384}")
    for j in range(4):
        put(4 + 6 * j, dma_w(j))
    put(24, f"s_add_u32 s{S_SOW}, s{S_SOW}, s{S_WINC}")
    hf = 0 if (phase & 1) else 1
    put(26, f"s_add_u32 m0, s{S_DSLOT}, {hf*4096}")
    for j in range(4):
        put(28 + 6 * j, dma_a(j, hf))
    so = S_SOA1 if hf else S_SOA0
    put(48, f"s_add_u32 s{so}, s{so}, 128")
    if extra:
        for k, v in extra.items():
            put(k, *v)
    put(62, "s_waitcnt vmcnt(16) lgkmcnt(0)")
    put(63, "s_barrier")
    if tail: put(63, *tail)
    interleave(A, m, g)

def loop_job1(A, tag, orient):
    A(f"s_mov_b32 s{S_N}, 0")
    step(A, 0, orient, first=True, tail=[f"s_branch L_{tag}_p1"])
    A(".p2align 6")
    A.label(f"L_{tag}_p0")
    step(A, 0, orient, extra={0: [f"s_cmp_eq_u32 s{S_N}, 7", f"s_cbranch_scc1 L_{tag}_swW", f"L_{tag}_backW:"]})
    A.label(f"L_{tag}_p1")
    step(A, 1, orient)
    step(A, 2, orient)
    step(A, 3, orient, extra={20: [f"s_cmp_eq_u32 s{S_N}, 6", f"s_cbranch_scc1 L_{tag}_swA", f"L_{tag}_backA:"],
                              52: [f"s_add_u32 s{S_N}, s{S_N}, 1"], 54: [f"s_cmp_lt_u32 s{S_N}, 8"]},
         tail=[f"s_cbranch_scc1 L_{tag}_p0"])

def switch_code(A, tag):
    A.label(f"L_{tag}_swW")
    A(f"s_mov_b32 s{SRD_W}, s{S2_W0}", f"s_mov_b32 s{SRD_W+1}, s{S2_W1}", f"s_mov_b32 s{SRD_W+2}, s{S2_WSZ}",
      f"s_mov_b32 s{S_SOW}, s{S2_SOW}", f"s_mov_b32 s{S_WINC}, s{S2_WINC}")
    for j in range(4): A(f"v_mov_b32 v{V_W+j}, v{V_W2+j}")
    A(f"s_branch L_{tag}_backW")
    A.label(f"L_{tag}_swA")
    A(f"s_mov_b32 s{SRD_A}, s{S2_A0}", f"s_mov_b32 s{SRD_A+1}, s{S2_A1}", f"s_mov_b32 s{SRD_A+2}, s{S2_ASZ}",
      f"s_mov_b32 s{S_SOA0}, s{S2_SOA0}", f"s_mov_b32 s{S_SOA1}, s{S2_SOA1}")
    for j in range(4): A(f"v_mov_b32 v{V_A+j}, v{V_A2+j}")
    A(f"s_branch L_{tag}_backA")

def loop_job2(A, tag):
    o = "WA"
    A(f"s_mov_b32 s{S_N}, 0")
    step(A, 0, o, first=True, tail=[f"s_branch L_{tag}_p1"])
    A(".p2align 6")
    A.label(f"L_{tag}_p0")
    step(A, 0, o)
    A.label(f"L_{tag}_p1")
    step(A, 1, o, extra={20: [f"s_cmp_ge_u32 s{S_N}, 2", f"s_cselect_b32 s{SRD_A+2}, 0, s{SRD_A+2}"],
                         54: [f"s_cmp_eq_u32 s{S_N}, 3"]},
         tail=[f"s_cbranch_scc1 L_{tag}_done"])
    step(A, 2, o, extra={0: [f"s_cmp_ge_u32 s{S_N}, 2", f"s_cselect_b32 s{SRD_W+2}, 0, s{SRD_W+2}"]})
    step(A, 3, o, extra={52: [f"s_add_u32 s{S_N}, s{S_N}, 1"]}, tail=[f"s_branch L_{tag}_p0"])
    A.label(f"L_{tag}_done")

def get4(A, blk, tmp):
    f, b = blk
    if f == "v": return b
    for r in range(4): A(f"v_accvgpr_read_b32 v{tmp+r}, a{b+r}")
    return tmp

def pack_store(A, x, y, soff, imm):
    A(f"v_cvt_pk_bf16_f32 v{x}, v{x}, v{x+1}", f"v_cvt_pk_bf16_f32 v{x+1}, v{x+2}, v{x+3}",
      f"v_cvt_pk_bf16_f32 v{x+2}, v{y}, v{y+1}", f"v_cvt_pk_bf16_f32 v{x+3}, v{y+2}, v{y+3}",
      f"buffer_store_dwordx4 {vr(x,4)}, v{V_L16}, {sr(SRD_WS,4)}, s{soff} offen offset:{imm}")

def epi_WA(A, sdst):
    A("s_nop 7")
    for j in range(8):
        for st in range(2):
            A(f"s_add_u32 s{S_T0}, s{sdst}, {j*8192 + st*4096}")
            for pr in range(2):
                i = 4 * st + 2 * pr
                x = get4(A, acc(i, j), None)
                y = get4(A, acc(i + 1, j), acc(1, j)[1])
                pack_store(A, x, y, S_T0, pr * 1024)
    A("s_nop 1")

def epi_AW(A, sdst):
    A("s_nop 7")
    for jp in range(4):
        for st in range(2):
            A(f"s_add_u32 s{S_T0}, s{sdst}, {jp*16384 + st*8192}")
            for cb in range(4):
                i = 4 * st + cb
                x = get4(A, acc(i, 2 * jp), acc(0, 2 * jp + 1)[1])
                y = get4(A, acc(i, 2 * jp + 1), acc(1, 2 * jp + 1)[1])
                pack_store(A, x, y, S_T0, cb * 1024)
    A("s_nop 1")

def epi_GU(A, sdst):
    A("s_nop 7")
    A(f"s_mov_b32 s{S_LOG2E}, 0xbfb8aa3b")
    for j in range(8):
        A(f"s_add_u32 s{S_T0}, s{sdst}, {j*KSTEPS3*1024}")
        for i in range(4):
            gq = acc(i, j)[1]
            uq = get4(A, acc(i + 4, j), acc(4, j)[1])
            for r in range(4): A(f"v_mul_f32 v{gq+r}, s{S_LOG2E}, v{gq+r}")
            for r in range(4): A(f"v_exp_f32 v{gq+r}, v{gq+r}")
            for r in range(4): A(f"v_add_f32 v{gq+r}, 1.0, v{gq+r}")
            for r in range(4): A(f"v_rcp_f32 v{gq+r}, v{gq+r}")
            for r in range(4): A(f"v_mul_f32 v{gq+r}, v{uq+r}, v{gq+r}")
            if i & 1:
                pack_store(A, acc(i - 1, j)[1], gq, S_T0, (i >> 1) * 1024)

def voffs(A, dstA, dstW, strideA, strideW):
    t0, t1, t2 = V_T, V_T + 1, V_T + 2
    for j in range(4):
        A(f"v_lshrrev_b32 v{t0}, 3, v0", f"v_add_u32 v{t0}, {8*j}, v{t0}", f"v_mul_lo_u32 v{t0}, v{t0}, {strideA}",
          f"v_lshrrev_b32 v{t1}, 4, v0", f"v_add_u32 v{t1}, {4*(j&1)}, v{t1}", f"v_and_b32 v{t2}, 7, v0",
          f"v_xor_b32 v{t1}, v{t1}, v{t2}", f"v_lshlrev_b32 v{t1}, 4, v{t1}", f"v_add_u32 v{t0}, v{t0}, v{t1}",
          f"v_subrev_u32 v{dstA+j}, {1024*j}, v{t0}")
        A(f"v_lshrrev_b32 v{t1}, 4, v0", f"v_add_u32 v{t0}, {4*j}, v{t1}", f"v_mul_lo_u32 v{t0}, v{t0}, {strideW}",
          f"v_lshlrev_b32 v{t1}, 1, v{t1}", f"v_add_u32 v{t1}, {8*(j>>1)}, v{t1}", f"v_and_b32 v{t2}, 15, v0",
          f"v_xor_b32 v{t1}, v{t1}, v{t2}", f"v_lshlrev_b32 v{t1}, 4, v{t1}", f"v_add_u32 v{t0}, v{t0}, v{t1}",
          f"v_subrev_u32 v{dstW+j}, {1024*j}, v{t0}")

def fin(A):
    if not asmlib.STAMPS: return
    stamp(A, 5)
    A("s_waitcnt vmcnt(0)")
    stamp(A, 6); stamp_rt(A, 8)
    stamp_flush(A, SRD_WS, S_W, 0)

def gen_k1(A, name="k1_kernel", side=None):
    kernel_begin(A, name)
    A("s_cmp_ge_u32 s2, 256", "s_cbranch_scc1 L_k1_end")
    load_kernargs(A)
    stamp_rt(A, 7); stamp(A, 0)
    A(f"v_lshrrev_b32 v{V_T}, 6, v0", "v_and_b32 v0, 63, v0", f"v_readfirstlane_b32 s{S_W}, v{V_T}",
      f"v_lshlrev_b32 v{V_L16}, 4, v0")
    A(f"s_and_b32 s{S_XCD}, s2, 7", f"s_lshr_b32 s{S_IDX}, s2, 3",
      f"s_and_b32 s{S_WM}, s{S_W}, 1", f"s_lshr_b32 s{S_WN}, s{S_W}, 1",
      f"s_lshl_b32 s{S_W8192}, s{S_W}, 13",
      f"s_and_b32 s{S_RT1}, s{S_IDX}, 7",
      f"s_lshr_b32 s{S_T0}, s{S_IDX}, 3", f"s_and_b32 s{S_T0}, s{S_T0}, 1",
      f"s_lshl_b32 s{S_HEAD1}, s{S_XCD}, 1", f"s_add_u32 s{S_HEAD1}, s{S_HEAD1}, s{S_T0}")
    A(f"s_lshl_b32 s{S_T0}, s{S_RT1}, 8", f"s_lshl_b32 s{S_T1}, s{S_W}, 6", f"s_add_u32 s{S_T0}, s{S_T0}, s{S_T1}",
      f"s_lshl_b32 s{S_SOA0}, s{S_T0}, 11", f"s_add_u32 s{S_SOA1}, s{S_SOA0}, {32*2048}")
    A(f"s_lshl_b32 s{S_T0}, s{S_WM}, 17", f"s_lshl_b32 s{S_T1}, s{S_HEAD1}, 9", f"s_add_u32 s{S_SOW}, s{S_T0}, s{S_T1}",
      f"s_lshl_b32 s{S_T1}, s{S_WN}, 8", f"s_add_u32 s{S_SOW}, s{S_SOW}, s{S_T1}",
      f"s_mov_b32 s{S_WINC}, {32*8192}")
    A(f"s_lshl_b32 s{S_WM0}, s{S_W}, 12", f"s_add_u32 s{S_WM0}, s{S_WM0}, {WBASE}")
    A(f"s_mov_b32 s{S_T2}, 2048", f"s_mov_b32 s{S_T3}, 8192")
    voffs(A, V_A, V_W, f"s{S_T2}", f"s{S_T3}")
    A("s_waitcnt lgkmcnt(0)")
    A(f"s_mov_b32 s{SRD_A}, s{P_CKV}", f"s_mov_b32 s{SRD_A+1}, s{P_CKV+1}", f"s_mov_b32 s{SRD_A+2}, {2048*1024*2}",
      f"s_mov_b32 s{SRD_A+3}, 0x20000")
    A(f"s_cmp_ge_u32 s{S_IDX}, 16",
      f"s_cselect_b32 s{SRD_W}, s{P_WUV}, s{P_WUK}", f"s_cselect_b32 s{SRD_W+1}, s{P_WUV+1}, s{P_WUK+1}",
      f"s_mov_b32 s{SRD_W+2}, {1024*4096*2}", f"s_mov_b32 s{SRD_W+3}, 0x20000")
    A(f"s_mov_b32 s{SRD_WS}, s{P_WS}", f"s_mov_b32 s{SRD_WS+1}, s{P_WS+1}", f"s_mov_b32 s{SRD_WS+2}, {WS_BYTES}",
      f"s_mov_b32 s{SRD_WS+3}, 0x20000")
    def a_group(slot, hf):
        A(f"s_add_u32 m0, s{S_W8192}, {slot*32768 + hf*4096}", "s_nop 0")
        for j in range(4): A(dma_a(j, hf))
        so = S_SOA1 if hf else S_SOA0
        A(f"s_add_u32 s{so}, s{so}, 128")
    def w_group(slot):
        A(f"s_add_u32 m0, s{S_WM0}, {slot*16384}", "s_nop 0")
        for j in range(4): A(dma_w(j))
        A(f"s_add_u32 s{S_SOW}, s{S_SOW}, s{S_WINC}")
    a_group(0, 0); a_group(0, 1); w_group(0); a_group(1, 0); w_group(1); a_group(1, 1); w_group(2)
    a_group(2, 0); w_group(3)
    A(f"s_add_u32 s{S_DSLOT}, s{S_W8192}, {2*32768}", f"s_mov_b32 s{S_RSLOT}, 0")
    t0, t1, t2, t3 = V_T, V_T + 1, V_T + 2, V_T + 3
    A(f"v_lshrrev_b32 v{t0}, 4, v0",
      f"v_bfe_u32 v{t1}, v0, 2, 2",
      f"v_lshl_add_u32 v{t2}, v{t0}, 3, v{t1}",
      f"v_lshlrev_b32 v{t2}, 8, v{t2}",
      f"v_and_b32 v{t3}, 1, v0", f"v_lshl_add_u32 v{t2}, v{t3}, 3, v{t2}",
      f"v_add_u32 v{t2}, {WBASE}, v{t2}",
      f"v_and_b32 v{t0}, 1, v{t0}", f"v_lshl_add_u32 v{t1}, v{t0}, 2, v{t1}", f"v_lshlrev_b32 v{t1}, 1, v{t1}",
      f"v_bfe_u32 v{t3}, v0, 1, 1",
      f"s_lshl_b32 s{S_T0}, s{S_WM}, 3",
      f"v_add_u32 v{t3}, s{S_T0}, v{t3}")
    for cb in range(4):
        A(f"v_add_u32 v{t0}, {2*cb}, v{t3}", f"v_xor_b32 v{t0}, v{t0}, v{t1}",
          f"v_lshl_add_u32 v{V_RW+cb}, v{t0}, 4, v{t2}")
    A(f"v_and_b32 v{t0}, 15, v0", f"s_lshl_b32 s{S_T0}, s{S_WN}, 7", f"v_add_u32 v{t1}, s{S_T0}, v{t0}",
      f"v_lshlrev_b32 v{t1}, 7, v{t1}", f"v_lshrrev_b32 v{t0}, 1, v{t0}", f"v_lshrrev_b32 v{t2}, 4, v0")
    for ks in range(2):
        A(f"v_add_u32 v{t3}, {4*ks}, v{t2}", f"v_xor_b32 v{t3}, v{t3}, v{t0}",
          f"v_lshl_add_u32 v{V_RA+ks}, v{t3}, 4, v{t1}")
    A(f"s_mul_i32 s{S_T0}, s{S_XCD}, 14", f"s_add_u32 s{S_T0}, s{S_T0}, s{S_IDX}", f"s_sub_u32 s{S_T0}, s{S_T0}, 16",
      f"s_lshr_b32 s{S_T1}, s{S_T0}, 3", f"s_and_b32 s{S_T0}, s{S_T0}, 7",
      f"s_cmp_ge_u32 s{S_IDX}, 16",
      f"s_cselect_b32 s{S_RT2}, s{S_T0}, s{S_RT1}",
      f"s_cselect_b32 s{S_C2}, s{S_T1}, s{S_HEAD1}",
      f"s_mov_b32 s{S_STW2}, 8192", f"s_cselect_b32 s{S_STW2}, 3584, s{S_STW2}",
      f"s_cselect_b32 s{S_KIND}, 1, 0")
    A(f"s_mov_b32 s{S_T2}, {448*1792*2}", f"s_mov_b32 s{S_T3}, {448*4096*2}",
      f"s_cselect_b32 s{S2_WSZ}, s{S_T2}, s{S_T3}")
    A(f"s_cmp_eq_u32 s{S_WN}, 1",
      f"s_cselect_b32 s{S_T2}, s{P_WU}, s{P_WG}", f"s_cselect_b32 s{S_T3}, s{P_WU+1}, s{P_WG+1}",
      f"s_cmp_ge_u32 s{S_IDX}, 16",
      f"s_cselect_b32 s{S2_W0}, s{S_T2}, s{P_WQ}", f"s_cselect_b32 s{S2_W1}, s{S_T3}, s{P_WQ+1}")
    A(f"s_lshl_b32 s{S_T0}, s{S_C2}, 9", f"s_lshl_b32 s{S_T1}, s{S_WN}, 8", f"s_add_u32 s{S_T0}, s{S_T0}, s{S_T1}",
      f"s_lshl_b32 s{S_T1}, s{S_C2}, 8",
      f"s_cmp_ge_u32 s{S_IDX}, 16", f"s_cselect_b32 s{S_T0}, s{S_T1}, s{S_T0}",
      f"s_mul_i32 s{S_T1}, s{S_WM}, s{S_STW2}", f"s_lshl_b32 s{S_T1}, s{S_T1}, 4",
      f"s_add_u32 s{S2_SOW}, s{S_T0}, s{S_T1}", f"s_lshl_b32 s{S2_WINC}, s{S_STW2}, 5")
    A(f"s_mov_b32 s{S2_A0}, s{P_X}", f"s_mov_b32 s{S2_A1}, s{P_X+1}", f"s_mov_b32 s{S2_ASZ}, {2048*448*2}",
      f"s_lshl_b32 s{S_T0}, s{S_RT2}, 8", f"s_lshl_b32 s{S_T1}, s{S_W}, 6", f"s_add_u32 s{S_T0}, s{S_T0}, s{S_T1}",
      f"s_mul_i32 s{S2_SOA0}, s{S_T0}, 896", f"s_add_u32 s{S2_SOA1}, s{S2_SOA0}, {32*896}")
    A(f"s_cmp_ge_u32 s{S_IDX}, 30", f"s_cselect_b32 s{S2_ASZ}, 0, s{S2_ASZ}", f"s_cselect_b32 s{S2_WSZ}, 0, s{S2_WSZ}",
      f"s_cselect_b32 s{S_KIND}, 2, s{S_KIND}")
    A(f"s_mov_b32 s{S_STA2}, 896")
    voffs(A, V_A2, V_W2, f"s{S_STA2}", f"s{S_STW2}")
    A(f"s_lshl_b32 s{S_T0}, s{S_HEAD1}, 20", f"s_lshl_b32 s{S_T1}, s{S_RT1}, 17", f"s_add_u32 s{S_T0}, s{S_T0}, s{S_T1}",
      f"s_lshl_b32 s{S_T1}, s{S_WN}, 16", f"s_add_u32 s{S_T0}, s{S_T0}, s{S_T1}",
      f"s_lshl_b32 s{S_T1}, s{S_WM}, 11", f"s_add_u32 s{S_T2}, s{S_T0}, s{S_T1}",
      f"s_lshl_b32 s{S_T1}, s{S_WM}, 12", f"s_add_u32 s{S_T3}, s{S_T0}, s{S_T1}",
      f"s_add_u32 s{S_DST2}, s{S_T2}, {QF_OFF}",
      f"s_add_u32 s{S_T2}, s{S_T2}, {KF_OFF}", f"s_add_u32 s{S_T3}, s{S_T3}, {VF_OFF}",
      f"s_cmp_ge_u32 s{S_IDX}, 16", f"s_cselect_b32 s{S_DST1}, s{S_T3}, s{S_T2}")
    A(f"s_lshl_b32 s{S_T0}, s{S_RT2}, 4", f"s_lshl_b32 s{S_T1}, s{S_WN}, 3", f"s_add_u32 s{S_T0}, s{S_T0}, s{S_T1}",
      f"s_mul_i32 s{S_T0}, s{S_T0}, {KSTEPS3}", f"s_lshl_b32 s{S_T1}, s{S_C2}, 2", f"s_add_u32 s{S_T0}, s{S_T0}, s{S_T1}",
      f"s_lshl_b32 s{S_T1}, s{S_WM}, 1", f"s_add_u32 s{S_T0}, s{S_T0}, s{S_T1}", f"s_add_u32 s{S_T0}, s{S_T0}, 128",
      f"s_lshl_b32 s{S_T0}, s{S_T0}, 10", f"s_add_u32 s{S_T0}, s{S_T0}, {AF_OFF}",
      f"s_cmp_ge_u32 s{S_IDX}, 16", f"s_cselect_b32 s{S_DST2}, s{S_T0}, s{S_DST2}")
    A(f"v_mov_b32 v{V_RCUR}, v{V_RA}")
    A("s_waitcnt vmcnt(24)", "s_barrier")
    A(reads_for(0, 0))
    A("s_waitcnt vmcnt(16) lgkmcnt(0)", "s_barrier")
    stamp(A, 1)
    A(f"s_cmp_ge_u32 s{S_IDX}, 16", "s_cbranch_scc1 L_k1_V")
    loop_job1(A, "k1K", "WA")
    stamp(A, 2)
    epi_WA(A, S_DST1)
    A("s_branch L_k1_job2")
    switch_code(A, "k1K")
    switch_code(A, "k1V")
    A.label("L_k1_V")
    loop_job1(A, "k1V", "AW")
    stamp(A, 2)
    epi_AW(A, S_DST1)
    A(f"s_cmp_eq_u32 s{S_KIND}, 2", "s_cbranch_scc1 L_k1_side")
    A.label("L_k1_job2")
    stamp(A, 3)
    loop_job2(A, "k1J2")
    stamp(A, 4)
    A(f"s_cmp_eq_u32 s{S_KIND}, 1", "s_cbranch_scc1 L_k1_gu")
    epi_WA(A, S_DST2)
    fin(A)
    A("s_endpgm")
    A.label("L_k1_gu")
    epi_GU(A, S_DST2)
    fin(A)
    A("s_endpgm")
    A.label("L_k1_side")
    if side: side(A)
    A.label("L_k1_end")
    A("s_endpgm")

def desc_k1(A, name="k1_kernel"):
    kernel_desc(A, name, 256 + 160, 256)
```

```python
from asmlib import *
import asmlib

SRD_K, SRD_V, SRD_WS, SRD_DBG = 4, 8, 12, 60
S_W, S_W8192, S_CUR, S_NXT, S_KSO, S_VSO = 16, 17, 18, 19, 20, 21
S_T, S_NT, S_DIAG, S_MODE, S_QSO, S_C, S_THR = 22, 23, 24, 25, 26, 27, 28
S_T0, S_T1, S_T2, S_T3 = 29, 30, 31, 64
S_HEAD, S_PAIR, S_QB, S_TILE0, S_WSSZ, S_PART, S_FLAG, S_NTM1 = 65, 66, 67, 68, 69, 70, 71, 72
S_MASK = 74
V_L16, V_AK, V_AV, V_D0, V_D, V_MC, V_L, V_TS, V_T, V_X = 1, 2, 3, 4, 5, 6, 8, 10, 14, 16
S0, P0, O0 = 32, 96, 128
QA, FA, PA = 0, 64, 128
NSLOT = 5
PART_STRIDE = 4 * 33 * 1024
THR = 0x44800000

def S(par, kb, qb, r=0): return S0 + par * 32 + (kb * 2 + qb) * 4 + r
def P(par, ks, qb, d=0): return P0 + par * 16 + (ks * 2 + qb) * 4 + d
def O(db, qb, r=0): return O0 + (db * 2 + qb) * 4 + r
def Q(qb, ds): return QA + (qb * 8 + ds) * 4
def F(k): return FA + (k % 16) * 4
def TS(par, qb): return V_TS + par * 2 + qb

def rd(k, vaddr): return f"ds_read_b128 {ar(F(k),4)}, v{vaddr} offset:{(k % 32) * 1024}"

def qk_mfmas(par):
    m = []
    for kb in range(4):
        for ds in range(8):
            for qb in range(2):
                c = "0" if ds == 0 else vr(S(par, kb, qb), 4)
                m.append(f"v_mfma_f32_16x16x32_bf16 {vr(S(par,kb,qb),4)}, {ar(F(kb*8+ds),4)}, {ar(Q(qb,ds),4)}, {c}")
    return m
def pv_mfmas(par):
    m = []
    for ks in range(2):
        for db in range(16):
            for qb in range(2):
                m.append(f"v_mfma_f32_16x16x32_bf16 {vr(O(db,qb),4)}, {ar(F(ks*16+db),4)}, {vr(P(par,ks,qb),4)}, {vr(O(db,qb),4)}")
    return m

def sm_pair(par, h, p):
    kb, qb, rr = 2 * h + (p >> 2), (p >> 1) & 1, (p & 1) * 2
    xa, xb = V_X + (p & 1) * 2, V_X + (p & 1) * 2 + 1
    ts = TS(par, qb)
    first = (h == 0 and (p >> 2) == 0 and (p & 1) == 0)
    return dict(
        fa=f"v_fma_f32 v{xa}, v{S(par,kb,qb,rr)}, s{S_C}, -v{V_MC+qb}",
        fb=f"v_fma_f32 v{xb}, v{S(par,kb,qb,rr+1)}, s{S_C}, -v{V_MC+qb}",
        ea=f"v_exp_f32 v{xa}, v{xa}", eb=f"v_exp_f32 v{xb}, v{xb}",
        aa=(f"v_mov_b32 v{ts}, v{xa}" if first else f"v_add_f32 v{ts}, v{ts}, v{xa}"),
        ab=f"v_add_f32 v{ts}, v{ts}, v{xb}",
        cv=f"v_cvt_pk_bf16_f32 v{P(par,h,qb,2*(kb&1)+(p&1))}, v{xa}, v{xb}")

def sm_plain(A, par, h):
    for p in range(0, 8, 2):
        a, b = sm_pair(par, h, p), sm_pair(par, h, p + 1)
        A(a["fa"], a["fb"], b["fa"], b["fb"], a["ea"], a["eb"], b["ea"], b["eb"],
          a["aa"], a["ab"], a["cv"], b["aa"], b["ab"], b["cv"])

def dma(srd, so, j): return f"buffer_load_dwordx4 v{V_L16}, {sr(srd,4)}, s{so} offen offset:{(j&3)*1024} lds"

def phase(A, kind, par, sm=True, dmas=True, look=True):
    if kind == "A":
        m = qk_mfmas(1 - par); vcur, vnxt = V_AK, V_AV; srd, so = SRD_K, S_KSO; nsrd, ahead = SRD_V, 2
        smp, smh = par, 1
    else:
        m = pv_mfmas(par); vcur, vnxt = V_AV, V_AK; srd, so = SRD_V, S_VSO; nsrd, ahead = SRD_K, 4
        smp, smh = 1 - par, 0
    g = {}
    def put(k, *ins): g.setdefault(k, []).extend(ins)
    sc = {}
    if dmas:
        sc[3] = f"s_add_u32 s{S_NXT}, s{S_NXT}, 32768"
        sc[5] = f"s_cmp_eq_u32 s{S_NXT}, {NSLOT*32768}"
        sc[11] = f"s_cselect_b32 s{S_NXT}, 0, s{S_NXT}"
        sc[27] = "s_add_u32 m0, m0, 4096"
        sc[29] = f"s_add_u32 s{so}, s{so}, 4096"
        sc[35] = f"s_add_u32 s{S_T0}, s{S_T}, {ahead}"
        sc[37] = f"s_cmp_lt_u32 s{S_T0}, s{S_NT}"
        sc[43] = f"s_cselect_b32 s{nsrd+2}, s{S_WSSZ}, 0"
        sc[59] = f"s_add_u32 m0, s{S_CUR}, s{S_W8192}"
        sc[61] = f"s_add_u32 s{so}, s{so}, 28672"
        if kind == "B":
            sc[45] = f"s_add_u32 s{S_T}, s{S_T}, 1"
    for grp in range(8):
        b = grp * 8
        d = sm_pair(smp, smh, grp) if sm else None
        for i in range(4):
            k = 4 * (grp + 2) + i
            if k < 32: put(b + 2 * i, rd(k, vcur))
            elif look: put(b + 2 * i, rd(k, vnxt))
        if dmas: put(b + 1, dma(srd, so, grp))
        for k in (3, 5):
            if b + k in sc: put(b + k, sc[b + k])
        if grp < 7 or look:
            put(b + 7, "s_waitcnt lgkmcnt(4)" if (grp < 6 or look) else "s_waitcnt lgkmcnt(0)")
        if d:
            put(b + 0, d["fa"]); put(b + 2, d["fb"]); put(b + 3, d["ea"]); put(b + 5, d["eb"])
            put(b + 6, d["aa"]); put(b + 7, d["ab"], d["cv"])
    if look: put(5 * 8 + 4, f"v_add_u32 v{vnxt}, s{S_NXT}, v{V_L16}")
    if kind == "B":
        put(4, f"v_add_f32 v{V_L}, v{V_L}, v{TS(par,0)}")
        put(12, f"v_add_f32 v{V_L+1}, v{V_L+1}, v{TS(par,1)}")
    interleave(A, m, g)
    if dmas: A(f"s_mov_b32 s{S_CUR}, s{S_NXT}")

def check(A, par, tag):
    A(f"v_add_f32 v{V_T}, v{TS(par,0)}, v{TS(par,1)}",
      f"v_cmp_nge_f32 vcc, s{S_THR}, v{V_T}")

def xmax(A, v, t):
    A(f"v_mov_b32 v{t}, v{v}", "s_nop 1", f"v_permlane16_swap_b32 v{v}, v{t}", "s_nop 1", f"v_max_f32 v{v}, v{v}, v{t}",
      f"v_mov_b32 v{t}, v{v}", "s_nop 1", f"v_permlane32_swap_b32 v{v}, v{t}", "s_nop 1", f"v_max_f32 v{v}, v{v}, v{t}")
def xsum(A, v, t):
    A(f"v_mov_b32 v{t}, v{v}", "s_nop 1", f"v_permlane16_swap_b32 v{v}, v{t}", "s_nop 1", f"v_add_f32 v{v}, v{v}, v{t}",
      f"v_mov_b32 v{t}, v{v}", "s_nop 1", f"v_permlane32_swap_b32 v{v}, v{t}", "s_nop 1", f"v_add_f32 v{v}, v{v}, v{t}")

def rowmax(A, par, qb, dst, t):
    regs = [S(par, kb, qb, r) for kb in range(4) for r in range(4)]
    A(f"v_max3_f32 v{dst}, v{regs[0]}, v{regs[1]}, v{regs[2]}")
    for i in range(3, 15, 2):
        A(f"v_max3_f32 v{dst}, v{dst}, v{regs[i]}, v{regs[i+1]}")
    A(f"v_max_f32 v{dst}, v{dst}, v{regs[15]}")
    xmax(A, dst, t)
    A(f"v_mul_f32 v{dst}, s{S_C}, v{dst}")

def slow(A, par, lab, back):
    A.label(lab)
    for qb in range(2):
        rowmax(A, par, qb, V_T, V_T + 1)
        A(f"v_max_f32 v{V_T}, v{V_T}, v{V_MC+qb}",
          f"v_sub_f32 v{V_T+1}, v{V_MC+qb}, v{V_T}", f"v_exp_f32 v{V_T+1}, v{V_T+1}",
          f"v_mov_b32 v{V_MC+qb}, v{V_T}",
          f"v_mul_f32 v{V_L+qb}, v{V_L+qb}, v{V_T+1}")
        for db in range(16):
            for r in range(4): A(f"v_mul_f32 v{O(db,qb,r)}, v{O(db,qb,r)}, v{V_T+1}")
    sm_plain(A, par, 0); sm_plain(A, par, 1)
    A("s_nop 1", f"s_branch {back}")

def mask(A, par, toff):
    A(f"s_add_u32 s{S_T0}, s{S_T}, {toff}", f"s_sub_u32 s{S_T0}, s{S_T0}, s{S_DIAG}", f"s_lshl_b32 s{S_T0}, s{S_T0}, 6",
      f"s_lshl_b32 s{S_T1}, s{S_W}, 5", f"s_sub_u32 s{S_T0}, s{S_T1}, s{S_T0}",
      f"v_add_u32 v{V_D}, s{S_T0}, v{V_D0}", f"v_mov_b32 v{V_T}, 0xff800000", "s_nop 4")
    for kb in range(4):
        for qb in range(2):
            for r in range(4):
                A(f"v_cmp_le_i32 {sr(S_MASK+2*r,2)}, {16*kb + r - 16*qb}, v{V_D}")
            for r in range(4):
                A(f"v_cndmask_b32 v{S(par,kb,qb,r)}, v{V_T}, v{S(par,kb,qb,r)}, {sr(S_MASK+2*r,2)}")

def piece_loads(A):
    for qb in range(2):
        for ds in range(8):
            if ds % 4 == 0: A(f"s_add_u32 s{S_T0}, s{S_QSO}, {(qb*8+ds)*1024}")
            A(f"buffer_load_dwordx4 {ar(Q(qb,ds),4)}, v{V_L16}, {sr(SRD_WS,4)}, s{S_T0} offen offset:{(ds%4)*1024}")
    for slot, (kind, t) in enumerate((("K", 0), ("K", 1), ("V", 0), ("K", 2), ("V", 1))):
        srd, so = (SRD_K, S_KSO) if kind == "K" else (SRD_V, S_VSO)
        A(f"s_cmp_gt_u32 s{S_NT}, {t}", f"s_cselect_b32 s{srd+2}, s{S_WSSZ}, 0")
        for hf in range(2):
            A(f"s_add_u32 m0, s{S_W8192}, {slot*32768 + hf*4096}", "s_nop 0")
            for j in range(4): A(dma(srd, so, j))
            A(f"s_add_u32 s{so}, s{so}, {28672 if hf else 4096}")
    A(f"s_cmp_gt_u32 s{S_NT}, 3", f"s_cselect_b32 s{SRD_K+2}, s{S_WSSZ}, 0")

def set_piece(A, qblk, tile0, nt, diag):
    A(f"s_lshl_b32 s{S_T0}, s{S_HEAD}, 20", f"s_lshl_b32 s{S_T1}, s{qblk}, 16", f"s_add_u32 s{S_QSO}, s{S_T0}, s{S_T1}",
      f"s_lshl_b32 s{S_T1}, s{S_W}, 14", f"s_add_u32 s{S_QSO}, s{S_QSO}, s{S_T1}")
    if QF_OFF: A(f"s_add_u32 s{S_QSO}, s{S_QSO}, {QF_OFF}")
    A(f"s_lshl_b32 s{S_T1}, s{tile0}, 15", f"s_add_u32 s{S_T0}, s{S_T0}, s{S_T1}", f"s_add_u32 s{S_T0}, s{S_T0}, s{S_W8192}",
      f"s_add_u32 s{S_KSO}, s{S_T0}, {KF_OFF}", f"s_add_u32 s{S_VSO}, s{S_T0}, {VF_OFF}")

def final_store(A):
    A(f"s_lshl_b32 s{S_T0}, s{S_QB}, 3", f"s_lshl_b32 s{S_T1}, s{S_W}, 1", f"s_add_u32 s{S_T0}, s{S_T0}, s{S_T1}",
      f"s_mul_i32 s{S_T0}, s{S_T0}, {KSTEPS3}", f"s_lshl_b32 s{S_T1}, s{S_HEAD}, 3", f"s_add_u32 s{S_T0}, s{S_T0}, s{S_T1}",
      f"s_lshl_b32 s{S_T0}, s{S_T0}, 10", f"s_add_u32 s{S_T0}, s{S_T0}, {AF_OFF}")

def gen_k2(A, name="k2_kernel"):
    kernel_begin(A, name)
    A("s_cmp_ge_u32 s2, 256", "s_cbranch_scc1 L_k2_end")
    A("s_load_dwordx4 s[56:59], s[0:1], 96")
    stamp_rt(A, 7); stamp(A, 0)
    A(f"v_lshrrev_b32 v{V_T}, 6, v0", "v_and_b32 v0, 63, v0", f"v_readfirstlane_b32 s{S_W}, v{V_T}",
      f"v_lshlrev_b32 v{V_L16}, 4, v0")
    A(f"v_and_b32 v{V_D0}, 15, v0", f"v_lshrrev_b32 v{V_T}, 4, v0", f"v_lshlrev_b32 v{V_T}, 2, v{V_T}",
      f"v_sub_u32 v{V_D0}, v{V_D0}, v{V_T}")
    A(f"s_lshl_b32 s{S_W8192}, s{S_W}, 13",
      f"s_and_b32 s{S_T0}, s2, 7", f"s_lshr_b32 s{S_T1}, s2, 3",
      f"s_lshl_b32 s{S_HEAD}, s{S_T0}, 1", f"s_lshr_b32 s{S_T0}, s{S_T1}, 4", f"s_add_u32 s{S_HEAD}, s{S_HEAD}, s{S_T0}",
      f"s_and_b32 s{S_MODE}, s{S_T1}, 1",
      f"s_lshr_b32 s{S_PAIR}, s{S_T1}, 1", f"s_and_b32 s{S_PAIR}, s{S_PAIR}, 7",
      f"s_sub_u32 s{S_QB}, 15, s{S_PAIR}",
      f"s_lshl_b32 s{S_T0}, s{S_PAIR}, 1", f"s_sub_u32 s{S_T0}, 15, s{S_T0}",
      f"s_cmp_eq_u32 s{S_MODE}, 0",
      f"s_cselect_b32 s{S_TILE0}, s{S_T0}, 0", f"s_cselect_b32 s{S_NT}, 17, s{S_T0}",
      f"s_cselect_b32 s{S_DIAG}, 15, 0x7fff",
      f"s_mov_b32 s{S_C}, 0x3db8aa3b",
      f"s_mov_b32 s{S_THR}, {THR}", f"s_mov_b32 s{S_WSSZ}, {WS_BYTES}")
    A(f"s_lshl_b32 s{S_T0}, s{S_HEAD}, 3", f"s_add_u32 s{S_T0}, s{S_T0}, s{S_PAIR}",
      f"s_lshl_b32 s{S_FLAG}, s{S_T0}, 1",
      f"s_mul_i32 s{S_PART}, s{S_T0}, {PART_STRIDE}", f"s_mul_i32 s{S_T1}, s{S_W}, {33*1024}",
      f"s_add_u32 s{S_PART}, s{S_PART}, s{S_T1}", f"s_add_u32 s{S_PART}, s{S_PART}, {PART_OFF}")
    set_piece(A, S_QB, S_TILE0, S_NT, None)
    A("s_waitcnt lgkmcnt(0)")
    for srd in (SRD_K, SRD_V, SRD_WS):
        A(f"s_mov_b32 s{srd}, s{P_WS}", f"s_mov_b32 s{srd+1}, s{P_WS+1}", f"s_mov_b32 s{srd+2}, {WS_BYTES}",
          f"s_mov_b32 s{srd+3}, 0x20000")
    A(f"s_mov_b32 s{SRD_DBG}, s{P_DBG}", f"s_mov_b32 s{SRD_DBG+1}, s{P_DBG+1}", f"s_mov_b32 s{SRD_DBG+2}, 256",
      f"s_mov_b32 s{SRD_DBG+3}, 0x20000")
    piece_loads(A)
    for i in range(128): A(f"v_mov_b32 v{O0+i}, 0")
    A("s_waitcnt vmcnt(24)")
    A.label("L_k2_piece")
    A(f"v_mov_b32 v{V_L}, 0", f"v_mov_b32 v{V_L+1}, 0", f"s_mov_b32 s{S_T}, 0", f"s_sub_u32 s{S_NTM1}, s{S_NT}, 1")
    A(f"v_mov_b32 v{V_AV}, v{V_L16}", f"v_add_u32 v{V_AK}, 32768, v{V_L16}")
    A("s_barrier")
    stamp(A, 1)
    for k in range(8): A(rd(k, V_AV))
    m = qk_mfmas(0)
    g = {}
    for grp in range(8):
        for i in range(4):
            k = 4 * (grp + 2) + i
            g.setdefault(grp * 8 + 2 * i, []).append(rd(k, V_AV if k < 32 else V_AK))
        g.setdefault(grp * 8 + 7, []).append("s_waitcnt lgkmcnt(4)")
    A("s_waitcnt lgkmcnt(4)")
    interleave(A, m, g)
    A("s_nop 7")
    A(f"s_cmp_eq_u32 s{S_DIAG}, 0", "s_cbranch_scc0 L_k2_nomask0")
    mask(A, 0, 0)
    A.label("L_k2_nomask0")
    for qb in range(2): rowmax(A, 0, qb, V_MC + qb, V_T)
    sm_plain(A, 0, 0)
    A(f"s_mov_b32 s{S_CUR}, 32768", f"s_mov_b32 s{S_NXT}, 32768", f"s_mov_b32 m0, s{S_W8192}")
    A(f"s_cmp_eq_u32 s{S_MODE}, 2", "s_cbranch_scc1 L_k2_pub")
    A("s_waitcnt vmcnt(16)", "s_barrier")
    A.label("L_k2_pubback")
    stamp(A, 2)
    A(f"s_cmp_eq_u32 s{S_NTM1}, 0", "s_cbranch_scc1 L_k2_tail0")
    A(".p2align 6")
    A.label("L_k2_loop")
    for par in range(2):
        phase(A, "A", par)
        check(A, par, "")
        A("s_waitcnt vmcnt(16)", "s_barrier")
        A(f"s_add_u32 s{S_T0}, s{S_T}, 1", f"s_cmp_ge_u32 s{S_T0}, s{S_DIAG}")
        A(f"s_cbranch_vccnz L_k2_slow{par}")
        A.label(f"L_k2_slowback{par}")
        A(f"s_cbranch_scc1 L_k2_mask{par}")
        A.label(f"L_k2_maskback{par}")
        phase(A, "B", par)
        A(f"s_cmp_eq_u32 s{S_T}, s{S_NTM1}", "s_waitcnt vmcnt(16)", "s_barrier")
        if par == 0: A("s_cbranch_scc1 L_k2_tail1")
        else: A("s_cbranch_scc0 L_k2_loop")
    for par in range(2):
        A.label(f"L_k2_tail{par}")
        A(f"s_add_u32 s{S_NXT}, s{S_NXT}, 32768", f"s_cmp_eq_u32 s{S_NXT}, {NSLOT*32768}", f"s_cselect_b32 s{S_NXT}, 0, s{S_NXT}",
          f"v_add_u32 v{V_AV}, s{S_NXT}, v{V_L16}", "s_waitcnt lgkmcnt(0)")
        for k in range(8): A(rd(k, V_AV))
        sm_plain(A, par, 1)
        check(A, par, "")
        A("s_nop 1", f"s_cbranch_vccnz L_k2_tslow{par}")
        A.label(f"L_k2_tslowback{par}")
        A("s_waitcnt lgkmcnt(4)")
        phase(A, "B", par, sm=False, dmas=False, look=False)
        if par == 0: A("s_branch L_k2_epi")
    A.label("L_k2_epi")
    stamp(A, 3)
    A(f"s_cmp_eq_u32 s{S_MODE}, 1", "s_cbranch_scc1 L_k2_epi_part")
    A(f"s_cmp_eq_u32 s{S_MODE}, 0", "s_cbranch_scc1 L_k2_epi_comb")
    A("s_nop 7")
    for qb in range(2):
        xsum(A, V_L + qb, V_T)
        A(f"v_rcp_f32 v{V_L+qb}, v{V_L+qb}")
    final_store(A)
    def scale_store(scale):
        for qb in range(2):
            for dp in range(8):
                if dp % 4 == 0: A(f"s_add_u32 s{S_T1}, s{S_T0}, {qb*KSTEPS3*1024 + dp*1024}")
                x, y = O(2 * dp, qb), O(2 * dp + 1, qb)
                scale(qb, 2 * dp); scale(qb, 2 * dp + 1)
                A(f"v_cvt_pk_bf16_f32 v{x}, v{x}, v{x+1}", f"v_cvt_pk_bf16_f32 v{x+1}, v{x+2}, v{x+3}",
                  f"v_cvt_pk_bf16_f32 v{x+2}, v{y}, v{y+1}", f"v_cvt_pk_bf16_f32 v{x+3}, v{y+2}, v{y+3}",
                  f"buffer_store_dwordx4 {vr(x,4)}, v{V_L16}, {sr(SRD_WS,4)}, s{S_T1} offen offset:{(dp%4)*1024}")
    def sc_plain(qb, db):
        for r in range(4): A(f"v_mul_f32 v{O(db,qb,r)}, v{O(db,qb,r)}, v{V_L+qb}")
    scale_store(sc_plain)
    fin(A)
    A("s_endpgm")
    A.label("L_k2_epi_part")
    A("s_barrier")
    A(f"s_mov_b32 s{S_QB}, s{S_PAIR}", f"s_mov_b32 s{S_TILE0}, 0", f"s_lshl_b32 s{S_DIAG}, s{S_PAIR}, 1",
      f"s_add_u32 s{S_NT}, s{S_DIAG}, 2", f"s_mov_b32 s{S_MODE}, 2")
    set_piece(A, S_QB, S_TILE0, S_NT, None)
    piece_loads(A)
    for i in range(32):
        if i % 4 == 0: A(f"s_add_u32 s{S_T0}, s{S_PART}, {i*1024}")
        A(f"buffer_store_dwordx4 {vr(O0+4*i,4)}, v{V_L16}, {sr(SRD_WS,4)}, s{S_T0} offen offset:{(i%4)*1024} sc0 sc1")
    A(f"s_add_u32 s{S_T0}, s{S_PART}, {32*1024}")
    A(f"buffer_store_dwordx4 {vr(V_MC,4)}, v{V_L16}, {sr(SRD_WS,4)}, s{S_T0} offen sc0 sc1")
    A("s_nop 1")
    for i in range(128): A(f"v_mov_b32 v{O0+i}, 0")
    A(f"s_waitcnt vmcnt({24+33})")
    A("s_branch L_k2_piece")
    A.label("L_k2_pub")
    A("s_waitcnt vmcnt(0)", "s_barrier")
    A(f"s_cmp_eq_u32 s{S_W}, 0", "s_cbranch_scc0 L_k2_pubback")
    A(f"v_mov_b32 v{V_T}, 1", f"v_mov_b32 v{V_T+1}, 0", "s_mov_b64 exec, 1",
      f"buffer_store_short v{V_T}, v{V_T+1}, {sr(SRD_DBG,4)}, s{S_FLAG} offen sc0 sc1",
      "s_mov_b64 exec, -1", "s_nop 4", "s_branch L_k2_pubback")
    A.label("L_k2_epi_comb")
    A(f"v_mov_b32 v{V_T+1}, 0", f"s_mov_b32 s{S_T1}, 0")
    A.label("L_k2_poll")
    A(f"buffer_load_ushort v{V_T}, v{V_T+1}, {sr(SRD_DBG,4)}, s{S_FLAG} offen sc0 sc1", "s_waitcnt vmcnt(0)",
      f"v_readfirstlane_b32 s{S_T0}, v{V_T}", "s_nop 3", f"s_cmp_eq_u32 s{S_T0}, 1", "s_cbranch_scc1 L_k2_got",
      f"s_add_u32 s{S_T1}, s{S_T1}, 1", f"s_cmp_lt_u32 s{S_T1}, 0x20000",
      "s_sleep 8", "s_cbranch_scc1 L_k2_poll")
    A.label("L_k2_got")
    stamp(A, 4)
    A(f"s_add_u32 s{S_T0}, s{S_PART}, {32*1024}")
    A(f"buffer_load_dwordx4 {vr(V_X,4)}, v{V_L16}, {sr(SRD_WS,4)}, s{S_T0} offen sc0 sc1")
    for i in range(32):
        if i % 4 == 0: A(f"s_add_u32 s{S_T0}, s{S_PART}, {i*1024}")
        dst = vr(32 + 4 * i, 4) if i < 24 else ar(PA + 4 * (i - 24), 4)
        A(f"buffer_load_dwordx4 {dst}, v{V_L16}, {sr(SRD_WS,4)}, s{S_T0} offen offset:{(i%4)*1024} sc0 sc1")
    A("s_waitcnt vmcnt(32)")
    WA_, WB_ = V_X + 4, V_X + 6
    for qb in range(2):
        A(f"v_max_f32 v{V_T}, v{V_MC+qb}, v{V_X+qb}",
          f"v_sub_f32 v{WA_+qb}, v{V_MC+qb}, v{V_T}", f"v_sub_f32 v{WB_+qb}, v{V_X+qb}, v{V_T}",
          f"v_exp_f32 v{WA_+qb}, v{WA_+qb}", f"v_exp_f32 v{WB_+qb}, v{WB_+qb}", "s_nop 0",
          f"v_mul_f32 v{V_L+qb}, v{V_L+qb}, v{WA_+qb}", f"v_fma_f32 v{V_L+qb}, v{V_X+2+qb}, v{WB_+qb}, v{V_L+qb}")
        xsum(A, V_L + qb, V_T)
        A(f"v_rcp_f32 v{V_L+qb}, v{V_L+qb}", "s_nop 0",
          f"v_mul_f32 v{WA_+qb}, v{WA_+qb}, v{V_L+qb}", f"v_mul_f32 v{WB_+qb}, v{WB_+qb}, v{V_L+qb}")
    for i in range(128):
        qb = (i >> 2) & 1
        A(f"v_mul_f32 v{O0+i}, v{O0+i}, v{WA_+qb}")
    final_store(A)
    A("s_waitcnt vmcnt(0)")
    def sc_comb(qb, db):
        i = db * 2 + qb
        for r in range(4):
            if i < 24: src = 32 + 4 * i + r
            else:
                src = V_X + 8 + r
                A(f"v_accvgpr_read_b32 v{src}, a{PA + 4*(i-24) + r}")
            A(f"v_fma_f32 v{O(db,qb,r)}, v{src}, v{WB_+qb}, v{O(db,qb,r)}")
    scale_store(sc_comb)
    fin(A)
    A("s_endpgm")
    for par in range(2):
        slow(A, par, f"L_k2_slow{par}", f"L_k2_slowback{par}")
        slow(A, par, f"L_k2_tslow{par}", f"L_k2_tslowback{par}")
        A.label(f"L_k2_mask{par}")
        mask(A, 1 - par, 1)
        A(f"s_branch L_k2_maskback{par}")
    A.label("L_k2_end")
    A("s_endpgm")

def fin(A):
    if not asmlib.STAMPS: return
    stamp(A, 5)
    A("s_waitcnt vmcnt(0)")
    stamp(A, 6); stamp_rt(A, 8)
    stamp_flush(A, SRD_WS, S_W, 1)

def desc_k2(A, name="k2_kernel"):
    kernel_desc(A, name, 256 + 160, 256)
```

```python
from asmlib import *
import asmlib

SRD_WO, SRD_WD, SRD_WS, SRD_X, SRD_GW, SRD_OUT = 4, 8, 12, 16, 20, 24
S_W, S_RT, S_CT, S_ASO, S_WSO, S_M0, S_T0, S_T1, S_L2E = 60, 61, 62, 63, 64, 65, 66, 67, 68
V_AO, V_WO, V_RW, V_T, V_G = 1, 5, 9, 13, 20
D = 7
NS = 46
ACC_A, ACC_B = 32, 96
XG = 160
AF_R, WF_R, GW_R = 0, 128, 160
WREG = D * 4096
RED = 4 * WREG
RSTR = 272

def areg(s, rb): return AF_R + (s % (D + 1)) * 16 + rb * 4
def wreg(s, cb): return WF_R + (s & 1) * 16 + cb * 4
def acc(s, cb, rb): return (ACC_A if s < 32 else ACC_B) + (cb * 4 + rb) * 4

def loads(s):
    L = []
    srd = SRD_WO if s < 32 else SRD_WD
    pre = [f"s_add_u32 m0, s{S_M0}, {(s % D) * 4096}"]
    ks = s if s < 32 else s - 32
    pre.append(f"s_add_u32 s{S_T0}, s{S_WSO}, {ks * 4 * 32 * 896}")
    pre.append(f"s_add_u32 s{S_T1}, s{S_ASO}, {s * 4096}")
    for j in range(4):
        L.append(f"buffer_load_dwordx4 v{V_WO+j}, {sr(srd,4)}, s{S_T0} offen offset:{j*1024} lds")
    for rb in range(4):
        L.append(f"buffer_load_dwordx4 {ar(areg(s,rb),4)}, v{V_AO+rb}, {sr(SRD_WS,4)}, s{S_T1} offen")
    return pre, L

def treads(s):
    return [f"ds_read_b64_tr_b16 {ar(wreg(s,cb)+2*h,2)}, v{V_RW+cb} offset:{(s % D)*4096 + h*2048}"
            for cb in range(4) for h in range(2)]

def gen_k3(A, name="k3_kernel"):
    kernel_begin(A, name)
    A("s_cmp_ge_u32 s2, 224", "s_cbranch_scc1 L_k3_end")
    load_kernargs(A)
    stamp_rt(A, 7); stamp(A, 0)
    t0, t1, t2, t3 = V_T, V_T + 1, V_T + 2, V_T + 3
    A(f"v_lshrrev_b32 v{t0}, 6, v0", "v_and_b32 v0, 63, v0", f"v_readfirstlane_b32 s{S_W}, v{t0}")
    A(f"v_lshlrev_b32 v{V_AO}, 4, v0")
    for rb in range(1, 4): A(f"v_add_u32 v{V_AO+rb}, {rb*KSTEPS3*1024}, v{V_AO}")
    A(f"s_lshr_b32 s{S_T0}, s2, 3", f"s_mul_i32 s{S_T1}, s{S_T0}, 37", f"s_lshr_b32 s{S_T1}, s{S_T1}, 8",
      f"s_mul_i32 s{S_CT}, s{S_T1}, 7", f"s_sub_u32 s{S_CT}, s{S_T0}, s{S_CT}",
      f"s_and_b32 s{S_RT}, s2, 7", f"s_lshl_b32 s{S_RT}, s{S_RT}, 2", f"s_add_u32 s{S_RT}, s{S_RT}, s{S_T1}")
    A(f"s_mul_i32 s{S_ASO}, s{S_RT}, {4*KSTEPS3*1024}", f"s_lshl_b32 s{S_T0}, s{S_W}, 10",
      f"s_add_u32 s{S_ASO}, s{S_ASO}, s{S_T0}", f"s_add_u32 s{S_ASO}, s{S_ASO}, {AF_OFF}",
      f"s_mul_i32 s{S_WSO}, s{S_W}, {32*896}", f"s_lshl_b32 s{S_T0}, s{S_CT}, 7", f"s_add_u32 s{S_WSO}, s{S_WSO}, s{S_T0}",
      f"s_mul_i32 s{S_M0}, s{S_W}, {WREG}")
    A(f"v_lshrrev_b32 v{t0}, 3, v0", f"v_mul_u32_u24 v{t0}, 896, v{t0}",
      f"v_lshrrev_b32 v{t1}, 4, v0", f"v_lshlrev_b32 v{t1}, 1, v{t1}", f"v_and_b32 v{t2}, 7, v0",
      f"v_xor_b32 v{t1}, v{t1}, v{t2}", f"v_lshl_add_u32 v{V_WO}, v{t1}, 4, v{t0}")
    for j in range(1, 4): A(f"v_add_u32 v{V_WO+j}, {j*(8*896-1024)}, v{V_WO}")
    A("s_waitcnt lgkmcnt(0)")
    for srd, p, sz in ((SRD_WO, P_WO, 4096*448*2), (SRD_WD, P_WD, 1792*448*2), (SRD_WS, P_WS, WS_BYTES),
                       (SRD_X, P_X, 2048*448*2), (SRD_GW, P_GW, 896), (SRD_OUT, P_OUT, 2048*448*2)):
        A(f"s_mov_b32 s{srd}, s{p}", f"s_mov_b32 s{srd+1}, s{p+1}", f"s_mov_b32 s{srd+2}, {sz}", f"s_mov_b32 s{srd+3}, 0x20000")
    for s in range(D):
        pre, L = loads(s)
        A(pre, L)
    A(f"v_lshrrev_b32 v{t0}, 2, v0", f"v_lshlrev_b32 v{t0}, 7, v{t0}",
      f"v_and_b32 v{t1}, 1, v0", f"v_lshl_add_u32 v{t0}, v{t1}, 3, v{t0}", f"v_add_u32 v{t0}, s{S_M0}, v{t0}",
      f"v_bfe_u32 v{t1}, v0, 3, 2", f"v_lshlrev_b32 v{t1}, 1, v{t1}",
      f"v_bfe_u32 v{t2}, v0, 1, 1")
    for cb in range(4):
        A(f"v_add_u32 v{t3}, {2*cb}, v{t2}", f"v_xor_b32 v{t3}, v{t3}, v{t1}", f"v_lshl_add_u32 v{V_RW+cb}, v{t3}, 4, v{t0}")
    VX, VGW = V_T + 4, V_T + 5
    A(f"v_and_b32 v{t0}, 15, v0", f"v_mul_u32_u24 v{t0}, 896, v{t0}", f"v_lshrrev_b32 v{t1}, 4, v0",
      f"v_lshlrev_b32 v{VGW}, 4, v{t1}", f"v_add_u32 v{VX}, v{t0}, v{VGW}",
      f"s_lshl_b32 s{S_T0}, s{S_RT}, 2", f"s_add_u32 s{S_T0}, s{S_T0}, s{S_W}", f"s_mul_i32 s{S_T0}, s{S_T0}, {16*896}",
      f"v_add_u32 v{VX}, s{S_T0}, v{VX}")
    gate_loads = []
    for k in range(14):
        gate_loads.append(f"buffer_load_dwordx4 {vr(XG+4*k,4)}, v{VX}, {sr(SRD_X,4)}, 0 offen offset:{k*64}")
        gate_loads.append(f"buffer_load_dwordx4 {ar(GW_R+4*k,4)}, v{VGW}, {sr(SRD_GW,4)}, 0 offen offset:{k*64}")
    A(f"s_waitcnt vmcnt({8*(D-1)})")
    stamp(A, 1)
    A(treads(0))
    issued = [8] * D
    extra_after = {}
    order = []
    for s in range(D): order += [("s", s)] * 8
    for s in range(NS):
        g = {}
        def put(k, *ins): g.setdefault(k, []).extend(ins)
        pre_wait = []
        if s + 1 < NS:
            last = max(i for i, o in enumerate(order) if o == ("s", s + 1))
            n = len(order) - 1 - last
            A(f"s_waitcnt vmcnt({n}) lgkmcnt(0)")
            for k, r in enumerate(treads(s + 1)): put(2 * k, r)
        else:
            A("s_waitcnt lgkmcnt(0)")
        if s + D < NS:
            pre, L = loads(s + D)
            A(pre)
            for k, x in enumerate(L): put(2 * k + 1, x)
            order += [("s", s + D)] * 8
        elif gate_loads:
            for k in range(8):
                if gate_loads:
                    put(2 * k + 1, gate_loads.pop(0)); order.append(("g", 0))
        m = []
        for cb in range(4):
            for rb in range(4):
                c = "0" if s in (0, 32) else vr(acc(s, cb, rb), 4)
                m.append(f"v_mfma_f32_16x16x32_bf16 {vr(acc(s,cb,rb),4)}, {ar(wreg(s,cb),4)}, {ar(areg(s,rb),4)}, {c}")
        interleave(A, m, g)
    assert not gate_loads
    stamp(A, 2)
    A("s_waitcnt vmcnt(0)")
    for k in range(14):
        c = "0" if k == 0 else vr(V_G, 4)
        A(f"v_mfma_f32_16x16x32_bf16 {vr(V_G,4)}, {ar(GW_R+4*k,4)}, {vr(XG+4*k,4)}, {c}")
    A(f"s_mov_b32 s{S_L2E}, 0xbfb8aa3b", "s_barrier")
    GOFF = 4 * 64 * RSTR
    A(f"v_and_b32 v{t0}, 15, v0", f"v_lshlrev_b32 v{t0}, 2, v{t0}", f"s_lshl_b32 s{S_T0}, s{S_W}, 6",
      f"v_add_u32 v{t1}, s{S_T0}, v{t0}", "s_nop 4",
      f"v_mul_f32 v{V_G}, s{S_L2E}, v{V_G}", f"v_exp_f32 v{V_G}, v{V_G}", "s_nop 0", f"v_add_f32 v{V_G}, 1.0, v{V_G}",
      f"v_rcp_f32 v{V_G}, v{V_G}", f"v_add_u32 v{t1}, {GOFF}, v{t1}", f"v_add_u32 v{t0}, {GOFF}, v{t0}",
      f"ds_write_b32 v{t1}, v{V_G}", "s_waitcnt lgkmcnt(0)", "s_barrier")
    for rb in range(4): A(f"ds_read_b32 v{V_G+rb}, v{t0} offset:{rb*64}")
    A(f"v_and_b32 v{t2}, 15, v0", f"v_mul_u32_u24 v{t2}, {RSTR}, v{t2}", f"v_lshrrev_b32 v{t3}, 4, v0",
      f"v_lshl_add_u32 v{t2}, v{t3}, 4, v{t2}", f"s_mul_i32 s{S_T0}, s{S_W}, {64*RSTR}", f"v_add_u32 v{t2}, s{S_T0}, v{t2}")
    A("s_waitcnt lgkmcnt(0)")
    for cb in range(4):
        for rb in range(4):
            a, b = acc(0, cb, rb), acc(32, cb, rb)
            for r in range(4): A(f"v_sub_f32 v{a+r}, v{a+r}, v{b+r}")
            for r in range(4): A(f"v_fma_f32 v{a+r}, v{a+r}, v{V_G+rb}, v{b+r}")
            A(f"ds_write_b128 v{t2}, {vr(a,4)} offset:{rb*16*RSTR + cb*64}")
    A(f"v_lshrrev_b32 v{t0}, 3, v0", f"v_mul_u32_u24 v{t1}, {RSTR}, v{t0}", f"v_and_b32 v{t3}, 7, v0",
      f"v_lshl_add_u32 v{t1}, v{t3}, 5, v{t1}", f"s_mul_i32 s{S_T0}, s{S_W}, {16*RSTR}", f"v_add_u32 v{t1}, s{S_T0}, v{t1}")
    A(f"v_mul_u32_u24 v{t0}, 896, v{t0}", f"v_lshl_add_u32 v{t0}, v{t3}, 4, v{t0}",
      f"s_lshl_b32 s{S_T0}, s{S_RT}, 2", f"s_add_u32 s{S_T0}, s{S_T0}, s{S_W}", f"s_mul_i32 s{S_T0}, s{S_T0}, {16*896}",
      f"s_lshl_b32 s{S_T1}, s{S_CT}, 7", f"s_add_u32 s{S_T0}, s{S_T0}, s{S_T1}", f"s_add_u32 s{S_T1}, s{S_T0}, {8*896}")
    A("s_waitcnt lgkmcnt(0)", "s_barrier")
    R0 = ACC_B
    for ps in range(2):
        for w in range(4):
            for hh in range(2):
                A(f"ds_read_b128 {vr(R0 + ps*32 + w*8 + hh*4, 4)}, v{t1} offset:{w*64*RSTR + ps*8*RSTR + hh*16}")
    for ps in range(2):
        A(f"s_waitcnt lgkmcnt({8 if ps == 0 else 0})")
        b = R0 + ps * 32
        for i in range(8): A(f"v_add_f32 v{b+i}, v{b+i}, v{b+8+i}")
        for i in range(8): A(f"v_add_f32 v{b+16+i}, v{b+16+i}, v{b+24+i}")
        for i in range(8): A(f"v_add_f32 v{b+i}, v{b+i}, v{b+16+i}")
        for i in range(4): A(f"v_cvt_pk_bf16_f32 v{b+i}, v{b+2*i}, v{b+2*i+1}")
        A(f"buffer_store_dwordx4 {vr(b,4)}, v{t0}, {sr(SRD_OUT,4)}, s{S_T1 if ps else S_T0} offen")
    if asmlib.STAMPS:
        stamp(A, 3); stamp(A, 4); stamp(A, 5)
        A("s_waitcnt vmcnt(0)")
        stamp(A, 6); stamp_rt(A, 8)
        stamp_flush(A, SRD_WS, S_W, 2)
    A.label("L_k3_end")
    A("s_endpgm")

LDS_K3 = max(4 * WREG, 4 * 64 * RSTR + 256)
def desc_k3(A, name="k3_kernel"):
    kernel_desc(A, name, 256 + 216, 256)
```

```python
import sys
sys.path.insert(0, "dev")
from asmlib import *
import k1, k2, k3
HDR = open("gated_mix__compressed_kv_cla__glu_gated_glu__prompt.s.ref").read().split("; Override launch")[0]
def build(which=("k1",)):
    A = Asm()
    A(HDR.rstrip())
    if "k1" in which: A("; @launch kernel=k1_kernel grid=(256,1,1) block=(256,1,1) lds=163840")
    if "k2" in which: A("; @launch kernel=k2_kernel grid=(256,1,1) block=(256,1,1) lds=163840")
    if "k3" in which: A(f"; @launch kernel=k3_kernel grid=(224,1,1) block=(256,1,1) lds={k3.LDS_K3}")
    A('.amdgcn_target "amdgcn-amd-amdhsa--gfx950"')
    if "k1" in which: k1.gen_k1(A)
    if "k2" in which: k2.gen_k2(A)
    if "k3" in which: k3.gen_k3(A)
    if "k1" in which: k1.desc_k1(A)
    if "k3" in which: k3.desc_k3(A)
    if "k2" in which: k2.desc_k2(A)
    return A.text()
if __name__ == "__main__":
    out = sys.argv[1]
    args = sys.argv[2:]
    import asmlib
    if "stamps" in args: asmlib.STAMPS = True
    open(out, "w").write(build(tuple(args) or ("k1",)))
```

```python
class Asm:
    def __init__(self):
        self.lines = []
    def __call__(self, *ss):
        for s in ss:
            if isinstance(s, (list, tuple)):
                self(*s)
            else:
                self.lines.append(s)
    def label(self, n): self.lines.append(f"{n}:")
    def text(self): return "\n".join(self.lines) + "\n"

def vr(b, n=1, f="v"):
    return f"{f}{b}" if n == 1 else f"{f}[{b}:{b+n-1}]"
def ar(b, n=1): return vr(b, n, "a")
def sr(b, n=1): return vr(b, n, "s")

def kernel_begin(A, name):
    A(".text", f".globl {name}", ".p2align 8", f".type {name},@function", f"{name}:")

def kernel_desc(A, name, vgpr, accum, sgpr=102):
    A('.section .rodata,"a"', ".p2align 6", f".amdhsa_kernel {name}",
      f"  .amdhsa_next_free_vgpr {vgpr}", f"  .amdhsa_next_free_sgpr {sgpr}",
      f"  .amdhsa_accum_offset {accum}", "  .amdhsa_group_segment_fixed_size 0",
      "  .amdhsa_kernarg_size 112", "  .amdhsa_user_sgpr_count 2",
      "  .amdhsa_user_sgpr_kernarg_segment_ptr 1", "  .amdhsa_system_sgpr_workgroup_id_x 1",
      ".end_amdhsa_kernel")

MB = 1 << 20
QF_OFF = 0
KF_OFF = 16 * MB
VF_OFF = 32 * MB
AF_OFF = 48 * MB
WF_OFF = 72 * MB
PART_OFF = 80 * MB
RED_OFF = 90 * MB
G_OFF = 79 * MB
FL_OFF = 79 * MB + 65536
MISC_OFF = 108 * MB
WS_BYTES = 268435456
KSTEPS3 = 184
AFS = 184

P_X, P_CKV, P_WQ, P_WUK, P_WUV, P_WO, P_BX, P_WG = 32, 34, 36, 38, 40, 42, 44, 46
P_WU, P_WD, P_GW, P_OUT = 48, 50, 52, 54
P_DBG, P_WS = 56, 58
def load_kernargs(A):
    A("s_load_dwordx16 s[32:47], s[0:1], 0",
      "s_load_dwordx8 s[48:55], s[0:1], 64",
      "s_load_dwordx4 s[56:59], s[0:1], 96")

def interleave(A, mfmas, gaps):
    for i, m in enumerate(mfmas):
        A(m)
        for x in gaps.get(i, []):
            A(x)

STAMPS = False
STAMP_S = 84
def stamp(A, k):
    if _st(): A(f"s_memtime s[{STAMP_S+2*k}:{STAMP_S+2*k+1}]")
def stamp_rt(A, k):
    if _st(): A(f"s_memrealtime s[{STAMP_S+2*k}:{STAMP_S+2*k+1}]")
def stamp_flush(A, srd_ws, s_wave, region, n=9, vt=32):
    if not _st(): return
    A("s_waitcnt lgkmcnt(0) vmcnt(0)")
    A(f"s_lshl_b32 s2, s2, 3", f"s_add_u32 s2, s2, s{s_wave}", "s_lshl_b32 s2, s2, 6",
      f"s_add_u32 s2, s2, {MISC_OFF + region*262144}")
    A(f"v_mov_b32 v{vt+1}, 0")
    for k in range(n):
        A(f"v_mov_b32 v{vt}, s{STAMP_S+2*k}", f"buffer_store_dword v{vt}, v{vt+1}, {sr(srd_ws,4)}, s2 offen offset:{4*k}", "s_nop 0")
def _st():
    import asmlib
    return asmlib.STAMPS
```

```python
from asmlib import *
import asmlib

WBASE = 98304
SRD_A, SRD_W, SRD_WS = 4, 8, 12
S_W, S_WM, S_WN = 16, 17, 18
S_SOA0, S_SOA1, S_SOW, S_WINC = 19, 20, 21, 22
S_RSLOT, S_DSLOT, S_WM0, S_N = 23, 24, 25, 26
S_W8192 = 27
S_DST1, S_DST2, S_T0, S_T1 = 28, 29, 30, 31
S2_A0, S2_A1, S2_ASZ, S2_SOA0, S2_SOA1 = 60, 61, 62, 63, 64
S2_W0, S2_W1, S2_WSZ, S2_SOW, S2_WINC = 65, 66, 67, 68, 69
S_IDX, S_XCD, S_RT1, S_HEAD1, S_RT2, S_C2, S_T2, S_T3, S_KIND = 70, 71, 72, 73, 74, 75, 76, 77, 78
S_STA2, S_STW2, S_LOG2E = 79, 80, 80
S_PF, S_PFO = 44, 82
V_PFD = 31
V_A, V_W, V_RW, V_RA, V_RCUR, V_L16, V_T = 1, 5, 9, 13, 15, 16, 17
V_A2, V_W2 = 32, 36
A_J2 = 160
V_PAD = 22
ACC_V, NACC_V = 32, 56
FR = 32

def acc(i, j):
    b = i * 8 + j
    return ("v", ACC_V + 4 * b) if b < NACC_V else ("a", 4 * (b - NACC_V))
def accs(i, j):
    f, b = acc(i, j)
    return vr(b, 4, f)
def wfrag(p, i): return FR + 64 * p + 4 * i
def afrag(p, j): return FR + 64 * p + 32 + 4 * j

def reads_for(p, wslot):
    R = []
    for i in range(8):
        st, cb = i >> 2, i & 3
        for h in range(2):
            R.append(f"ds_read_b64_tr_b16 {ar(wfrag(p,i)+2*h,2)}, v{V_RW+cb} offset:{wslot*16384+st*8192+h*1024}")
    for j in range(8):
        R.append(f"ds_read_b128 {ar(afrag(p,j),4)}, v{V_RCUR} offset:{j*2048}")
    return R

def dma_w(j): return f"buffer_load_dwordx4 v{V_W+j}, {sr(SRD_W,4)}, s{S_SOW} offen offset:{j*1024} lds"
def dma_a(j, hf): return f"buffer_load_dwordx4 v{V_A+j}, {sr(SRD_A,4)}, s{S_SOA1 if hf else S_SOA0} offen offset:{j*1024} lds"

def step(A, phase, orient, first=False, extra=None, tail=None, nodma=False, vm=16, pf=False, dw=True, da=True, rd=True):
    p = phase & 1
    m = []
    for i in range(8):
        for j in range(8):
            c = "0" if first else accs(i, j)
            w, a = ar(wfrag(p, i), 4), ar(afrag(p, j), 4)
            x, y = (w, a) if orient == "WA" else (a, w)
            m.append(f"v_mfma_f32_16x16x32_bf16 {accs(i,j)}, {x}, {y}, {c}")
    g = {}
    def put(k, *ins): g.setdefault(k, []).extend(ins)
    if phase & 1:
        put(0, f"s_add_u32 s{S_DSLOT}, s{S_RSLOT}, s{S_W8192}", f"s_add_u32 s{S_RSLOT}, s{S_RSLOT}, 32768",
               f"s_cmp_eq_u32 s{S_RSLOT}, 98304")
        put(2, f"s_cselect_b32 s{S_RSLOT}, 0, s{S_RSLOT}")
    put(6, f"v_add_u32 v{V_RCUR}, s{S_RSLOT}, v{V_RA + ((phase + 1) & 1)}")
    R = reads_for(1 - p, (phase + 1) & 3)
    for k, r in enumerate(R):
        if rd: put(1 + 2 * k, r)
    if not nodma and dw:
        put(2, f"s_add_u32 m0, s{S_WM0}, {phase*16384}")
        for j in range(4):
            put(4 + 6 * j, dma_w(j))
        put(24, f"s_add_u32 s{S_SOW}, s{S_SOW}, s{S_WINC}")
    if not nodma and da:
        hf = 0 if (phase & 1) else 1
        put(26, f"s_add_u32 m0, s{S_DSLOT}, {hf*4096}")
        for j in range(4):
            put(28 + 6 * j, dma_a(j, hf))
        so = S_SOA1 if hf else S_SOA0
        put(48, f"s_add_u32 s{so}, s{so}, 128")
    if pf:
        lab = f"L_pf{len(A.lines)}"
        _pf_sites.append(lab)
        put(50, f"s_bitcmp1_b32 s{S_PFM}, s{S_PFC}", f"s_cbranch_scc1 {lab}_do", f"{lab}_back:")
        put(51, f"s_add_u32 s{S_PFC}, s{S_PFC}, 1")
    if extra:
        for k, v in extra.items():
            put(k, *v)
    put(62, f"s_waitcnt vmcnt({vm}) lgkmcnt(0)")
    put(63, "s_barrier")
    if tail: put(63, *tail)
    interleave(A, m, g)

def early_dma(A, phase):
    assert phase % 2 == 0
    A(f"s_add_u32 m0, s{S_WM0}, {phase*16384}", "s_nop 0")
    for j in range(4): A(dma_w(j))
    A(f"s_add_u32 s{S_SOW}, s{S_SOW}, s{S_WINC}", f"s_add_u32 m0, s{S_DSLOT}, 4096", "s_nop 0")
    for j in range(4): A(dma_a(j, 1))
    A(f"s_add_u32 s{S_SOA1}, s{S_SOA1}, 128")

STAGE = 160
TRICKLE = 2
def job(A, tag, orient, nsteps, start, nxt, after=None, pf=False, U=1, hook=None, pf_roll=True):
    gw, ga, ge = nsteps - 4, nsteps - 5, nsteps - 1
    ph = lambda g: (start + g) & 3
    nn = lambda g: (start + g) >> 2
    npeel = U
    order = [-2] * 8 + [-1] * 8
    pend = list(after or [])
    if after is not None: order += [0] * 8 + ["s"] * 8
    assert not (nxt and U > ga)
    for g in range(npeel):
        t = [f"s_branch L_{tag}_p{ph(npeel)}"] if (g == npeel - 1 and npeel < nsteps) else None
        ex = {}
        if g == npeel - 1 and npeel < nsteps: ex[60] = [f"s_mov_b32 s{S_N}, {nn(npeel)}"]
        nod = (g == 0 and after is not None)
        dw, da = g < gw, g < ga
        if not nod: order += [g] * (4 * dw + 4 * da)
        for k in range(TRICKLE):
            if pend:
                sd, c, imm, a = pend.pop(0)
                gp = 52 + k * (8 // TRICKLE)
                ex[gp] = [f"s_add_u32 s{S_T0}, s{sd}, {c}"]
                ex[gp + 1] = [f"buffer_store_dwordx4 {ar(a,4)}, v{V_L16}, {sr(SRD_WS,4)}, s{S_T0} offen offset:{imm}{STORE_SC}"]
                order.append("s")
        if hook: hook(g, ex, order)
        if (g - 2) in order:
            last = max(i for i, o in enumerate(order) if o == g - 2)
            vm = min(63, len(order) - 1 - last)
        else: vm = 63
        step(A, ph(g), orient, first=(g == 0), nodma=nod, vm=vm, pf=pf, tail=t, extra=ex,
             dw=dw, da=da, rd=(nxt or g < nsteps - 1))
    assert not pend
    if npeel == nsteps: return
    A(".p2align 6")
    for p in range(4):
        A.label(f"L_{tag}_p{p}")
        ex = {}
        if p == ph(gw):
            assert p % 2 == 0
            if nxt: ex[0] = [f"s_cmp_eq_u32 s{S_N}, {nn(gw)}", f"s_cbranch_scc1 L_{tag}_swW", f"L_{tag}_backW:"]
            else: ex[0] = [f"s_cmp_ge_u32 s{S_N}, {nn(gw)}", f"s_cselect_b32 s{SRD_W+2}, 0, s{SRD_W+2}"]
        if p == ph(ga):
            if nxt: ex[20] = [f"s_cmp_eq_u32 s{S_N}, {nn(ga)}", f"s_cbranch_scc1 L_{tag}_swA", f"L_{tag}_backA:"]
            else: ex[20] = [f"s_cmp_ge_u32 s{S_N}, {nn(ga)}", f"s_cselect_b32 s{SRD_A+2}, 0, s{SRD_A+2}"]
        tail = []
        if p == 3: ex[52] = [f"s_add_u32 s{S_N}, s{S_N}, 1"]
        if p == ph(ge):
            if p == 3:
                ex[54] = [f"s_cmp_le_u32 s{S_N}, {nn(ge)}"]; tail = [f"s_cbranch_scc1 L_{tag}_p0"]
            else:
                ex[54] = [f"s_cmp_eq_u32 s{S_N}, {nn(ge)}"]; tail = [f"s_cbranch_scc1 L_{tag}_done"]
        elif p == 3:
            tail = [f"s_branch L_{tag}_p0"]
        step(A, p, orient, extra=ex, tail=tail, pf=pf and pf_roll)
    A.label(f"L_{tag}_done")

def switch_code(A, tag):
    A.label(f"L_{tag}_swW")
    A(f"s_mov_b32 s{SRD_W}, s{S2_W0}", f"s_mov_b32 s{SRD_W+1}, s{S2_W1}", f"s_mov_b32 s{SRD_W+2}, s{S2_WSZ}",
      f"s_mov_b32 s{S_SOW}, s{S2_SOW}", f"s_mov_b32 s{S_WINC}, s{S2_WINC}")
    for j in range(4): A(f"v_accvgpr_read_b32 v{V_W+j}, a{A_J2+4+j}")
    A(f"s_branch L_{tag}_backW")
    A.label(f"L_{tag}_swA")
    A(f"s_mov_b32 s{SRD_A}, s{S2_A0}", f"s_mov_b32 s{SRD_A+1}, s{S2_A1}", f"s_mov_b32 s{SRD_A+2}, s{S2_ASZ}",
      f"s_mov_b32 s{S_SOA0}, s{S2_SOA0}", f"s_mov_b32 s{S_SOA1}, s{S2_SOA1}")
    for j in range(4): A(f"v_accvgpr_read_b32 v{V_A+j}, a{A_J2+j}")
    A(f"s_branch L_{tag}_backA")

def get4(A, blk, tmp):
    f, b = blk
    if f == "v": return b
    for r in range(4): A(f"v_accvgpr_read_b32 v{tmp+r}, a{b+r}")
    return tmp

def pack_store(A, x, y, soff, imm):
    A(f"v_cvt_pk_bf16_f32 v{x}, v{x}, v{x+1}", f"v_cvt_pk_bf16_f32 v{x+1}, v{x+2}, v{x+3}",
      f"v_cvt_pk_bf16_f32 v{x+2}, v{y}, v{y+1}", f"v_cvt_pk_bf16_f32 v{x+3}, v{y+2}, v{y+3}",
      f"buffer_store_dwordx4 {vr(x,4)}, v{V_L16}, {sr(SRD_WS,4)}, s{soff} offen offset:{imm}{STORE_SC}")

def epi_WA(A, sdst):
    A("s_nop 7")
    for j in range(8):
        for st in range(2):
            A(f"s_add_u32 s{S_T0}, s{sdst}, {j*8192 + st*4096}")
            for pr in range(2):
                i = 4 * st + 2 * pr
                x = get4(A, acc(i, j), None)
                y = get4(A, acc(i + 1, j), acc(1, j)[1])
                pack_store(A, x, y, S_T0, pr * 1024)
    A("s_nop 1")

def epi_AW(A, sdst):
    A("s_nop 7")
    for jp in range(4):
        for st in range(2):
            A(f"s_add_u32 s{S_T0}, s{sdst}, {jp*16384 + st*8192}")
            for cb in range(4):
                i = 4 * st + cb
                x = get4(A, acc(i, 2 * jp), acc(0, 2 * jp + 1)[1])
                y = get4(A, acc(i, 2 * jp + 1), acc(1, 2 * jp + 1)[1])
                pack_store(A, x, y, S_T0, cb * 1024)
    A("s_nop 1")

def epi_WA_stage(A, sdst):
    A("s_nop 7", ".p2align 3")
    out = []
    c = 0
    for j in range(8):
        for st in range(2):
            if c < 8: A(f"s_add_u32 s{S_T0}, s{sdst}, {j*8192 + st*4096 + 0x10000000 * 0}" if j or st else f"s_add_u32 s{S_T0}, s{sdst}, 0", *(["s_nop 0"] if not (j or st) else []))
            for pr in range(2):
                i = 4 * st + 2 * pr
                x = get4(A, acc(i, j), None)
                y = get4(A, acc(i + 1, j), acc(1, j)[1])
                if c < 8:
                    pack_store(A, x, y, S_T0, pr * 1024)
                else:
                    a = STAGE + 4 * (c - 8)
                    A(f"v_cvt_pk_bf16_f32 v{x}, v{x}, v{x+1}", f"v_cvt_pk_bf16_f32 v{x+1}, v{x+2}, v{x+3}",
                      f"v_cvt_pk_bf16_f32 v{x+2}, v{y}, v{y+1}", f"v_cvt_pk_bf16_f32 v{x+3}, v{y+2}, v{y+3}")
                    for r in range(4): A(f"v_accvgpr_write_b32 a{a+r}, v{x+r}")
                    out.append((sdst, j * 8192 + st * 4096, pr * 1024, a))
                c += 1
    A("s_nop 1")
    return out

def epi_AW_stage(A, sdst):
    A("s_nop 7", ".p2align 3")
    out = []
    c = 0
    for jp in range(4):
        for st in range(2):
            if c < 8: A(f"s_add_u32 s{S_T0}, s{sdst}, {jp*16384 + st*8192}", *(["s_nop 0"] if not (jp or st) else []))
            for cb in range(4):
                i = 4 * st + cb
                x = get4(A, acc(i, 2 * jp), acc(0, 2 * jp + 1)[1])
                y = get4(A, acc(i, 2 * jp + 1), acc(1, 2 * jp + 1)[1])
                if c < 8:
                    pack_store(A, x, y, S_T0, cb * 1024)
                else:
                    a = STAGE + 4 * (c - 8)
                    A(f"v_cvt_pk_bf16_f32 v{x}, v{x}, v{x+1}", f"v_cvt_pk_bf16_f32 v{x+1}, v{x+2}, v{x+3}",
                      f"v_cvt_pk_bf16_f32 v{x+2}, v{y}, v{y+1}", f"v_cvt_pk_bf16_f32 v{x+3}, v{y+2}, v{y+3}")
                    for r in range(4): A(f"v_accvgpr_write_b32 a{a+r}, v{x+r}")
                    out.append((sdst, jp * 16384 + st * 8192, cb * 1024, a))
                c += 1
    A("s_nop 1")
    return out

def epi_GU(A, sdst):
    A("s_nop 7")
    A(f"s_mov_b32 s{S_LOG2E}, 0xbfb8aa3b")
    for j in range(8):
        A(f"s_add_u32 s{S_T0}, s{sdst}, {j*asmlib.AFS*1024}")
        for i in range(4):
            gq = acc(i, j)[1]
            uq = get4(A, acc(i + 4, j), acc(4, j)[1])
            for r in range(4): A(f"v_mul_f32 v{gq+r}, s{S_LOG2E}, v{gq+r}")
            for r in range(4): A(f"v_exp_f32 v{gq+r}, v{gq+r}")
            for r in range(4): A(f"v_add_f32 v{gq+r}, 1.0, v{gq+r}")
            for r in range(4): A(f"v_rcp_f32 v{gq+r}, v{gq+r}")
            for r in range(4): A(f"v_mul_f32 v{gq+r}, v{uq+r}, v{gq+r}")
            if i & 1:
                pack_store(A, acc(i - 1, j)[1], gq, S_T0, (i >> 1) * 1024)

def voffs(A, dstA, dstW, strideA, strideW):
    t0, t1, t2 = V_T, V_T + 1, V_T + 2
    for j in range(4):
        A(f"v_lshrrev_b32 v{t0}, 3, v0", f"v_add_u32 v{t0}, {8*j}, v{t0}", f"v_mul_lo_u32 v{t0}, v{t0}, {strideA}",
          f"v_lshrrev_b32 v{t1}, 4, v0", f"v_add_u32 v{t1}, {4*(j&1)}, v{t1}", f"v_and_b32 v{t2}, 7, v0",
          f"v_xor_b32 v{t1}, v{t1}, v{t2}", f"v_lshlrev_b32 v{t1}, 4, v{t1}", f"v_add_u32 v{t0}, v{t0}, v{t1}",
          f"v_subrev_u32 v{dstA+j}, {1024*j}, v{t0}")
        A(f"v_lshrrev_b32 v{t1}, 4, v0", f"v_add_u32 v{t0}, {4*j}, v{t1}", f"v_mul_lo_u32 v{t0}, v{t0}, {strideW}",
          f"v_lshlrev_b32 v{t1}, 1, v{t1}", f"v_add_u32 v{t1}, {8*(j>>1)}, v{t1}", f"v_and_b32 v{t2}, 15, v0",
          f"v_xor_b32 v{t1}, v{t1}, v{t2}", f"v_lshlrev_b32 v{t1}, 4, v{t1}", f"v_add_u32 v{t0}, v{t0}, v{t1}",
          f"v_subrev_u32 v{dstW+j}, {1024*j}, v{t0}")

def fin(A):
    if not asmlib.STAMPS: return
    stamp(A, 5)
    A("s_waitcnt vmcnt(0)")
    stamp(A, 6); stamp_rt(A, 8)
    stamp_flush(A, SRD_WS, S_W, 0)

WL_LDS = 131072
def wl_setup():
    t0, t1 = V_T, V_T + 1
    return [f"s_cmp_ge_u32 s2, 128",
      f"s_cselect_b32 s{SRD_A}, s{P_WD}, s{P_WO}", f"s_cselect_b32 s{SRD_A+1}, s{P_WD+1}, s{P_WO+1}",
      f"s_mov_b32 s{SRD_A+2}, {4096*448*2}", f"s_cselect_b32 s{SRD_A+2}, {1792*448*2}, s{SRD_A+2}",
      f"s_and_b32 s{S_SOA0}, s2, 127", f"s_mul_i32 s{S_SOA0}, s{S_SOA0}, 28672", f"s_mul_i32 s{S_WINC}, s{S_W}, 7168",
      f"s_add_u32 s{S_SOA0}, s{S_SOA0}, s{S_WINC}", f"s_add_u32 s{S_WINC}, s{S_WINC}, {WL_LDS}",
      f"s_mul_i32 s{S_SOA1}, s2, 7168", f"s_mul_i32 s{S_SOW}, s{S_W}, {KSTEPS3*7168}", f"s_add_u32 s{S_SOA1}, s{S_SOA1}, s{S_SOW}",
      f"s_add_u32 s{S_SOA1}, s{S_SOA1}, {WF_OFF}", f"s_cmp_ge_u32 s2, {KSTEPS3}", f"s_cselect_b32 s{S_SOA1}, 0x40000000, s{S_SOA1}",
      f"s_mul_i32 s{S_SOW}, s{S_W}, 224", f"s_add_u32 s{S_SOW}, s{S_SOW}, {WL_LDS}",
      f"v_lshrrev_b32 v{t0}, 2, v0", f"v_mul_u32_u24 v{t0}, 896, v{t0}", f"v_and_b32 v{t1}, 3, v0",
      f"v_lshl_add_u32 v{t0}, v{t1}, 3, v{t0}", f"v_add_u32 v{V_T+2}, s{S_SOW}, v{t0}"]
def wl_dma():
    L = [[f"s_mov_b32 m0, s{S_WINC}"]]
    for j in range(7):
        if j == 4: L.append([f"s_add_u32 m0, m0, 4096", f"s_add_u32 s{S_SOA0}, s{S_SOA0}, 4096"])
        L.append([f"buffer_load_dwordx4 v{V_L16}, {sr(SRD_A,4)}, s{S_SOA0} offen offset:{(j%4)*1024} lds"])
    return L
def wl_finish(A):
    for c in range(7):
        for h in range(2):
            A(f"ds_read_b64_tr_b16 {ar(FR+4*c+2*h,2)}, v{V_T+2} offset:{h*16*896 + c*32}")
    A("s_waitcnt lgkmcnt(0)")
    for c in range(7):
        if c == 4: A(f"s_add_u32 s{S_SOA1}, s{S_SOA1}, 4096")
        A(f"buffer_store_dwordx4 {ar(FR+4*c,4)}, v{V_L16}, {sr(SRD_WS,4)}, s{S_SOA1} offen offset:{(c%4)*1024}{STORE_SC}")
def wl_hook(g, ex, order):
    if g == 10:
        st = wl_setup()
        for k in range(0, len(st), 2):
            ex.setdefault(8 + 2 * k if 8 + 2 * k < 50 else 50, []).extend(st[k:k + 2])
    if g == 11:
        for k, c in enumerate(wl_dma()): ex.setdefault(8 + 4 * k, []).extend(c)
        n = sum(1 for o in reversed(order[-TRICKLE:]) if o == "s")
        order[len(order) - n:len(order) - n] = [11] * 7

def side_job(A):
    S_U = S_RT2
    t0, t1, t2 = V_T, V_T + 1, V_T + 2
    A(f"s_sub_u32 s{S_U}, s{S_IDX}, 14", f"s_lshl_b32 s{S_U}, s{S_U}, 3", f"s_add_u32 s{S_U}, s{S_U}, s{S_XCD}",
      f"s_lshl_b32 s{S_U}, s{S_U}, 2", f"s_add_u32 s{S_U}, s{S_U}, s{S_W}")
    A(f"s_mov_b32 s{SRD_A}, s{P_X}", f"s_mov_b32 s{SRD_A+1}, s{P_X+1}", f"s_mov_b32 s{SRD_A+2}, {2048*448*2}",
      f"s_mov_b32 s{SRD_W}, s{P_GW}", f"s_mov_b32 s{SRD_W+1}, s{P_GW+1}", f"s_mov_b32 s{SRD_W+2}, 896")
    A(f"v_and_b32 v{t0}, 15, v0", f"v_mul_u32_u24 v{t0}, 896, v{t0}", f"v_lshrrev_b32 v{t1}, 4, v0",
      f"v_lshlrev_b32 v{t1}, 4, v{t1}", f"v_add_u32 v{t0}, v{t0}, v{t1}",
      f"s_mul_i32 s{S_T0}, s{S_U}, {32*896}", f"s_add_u32 s{S_T1}, s{S_T0}, {16*896}")
    GA = 64
    for k in range(14):
        A(f"buffer_load_dwordx4 {ar(GA+4*k,4)}, v{t1}, {sr(SRD_W,4)}, 0 offen offset:{k*64}")
        A(f"buffer_load_dwordx4 {ar(GA+56+4*k,4)}, v{t0}, {sr(SRD_A,4)}, s{S_T0} offen offset:{k*64}")
        A(f"buffer_load_dwordx4 {ar(GA+112+4*k,4)}, v{t0}, {sr(SRD_A,4)}, s{S_T1} offen offset:{k*64}")
    A("s_waitcnt vmcnt(42)", "s_barrier")
    A(wl_setup())
    for c in wl_dma(): A(c, "s_nop 0")
    A("s_waitcnt vmcnt(7)")
    G = 144
    for k in range(14):
        A(f"v_mfma_f32_16x16x32_bf16 {vr(G,4)}, {ar(GA+4*k,4)}, {ar(GA+56+4*k,4)}, {'0' if k == 0 else vr(G,4)}")
        A(f"v_mfma_f32_16x16x32_bf16 {vr(G+4,4)}, {ar(GA+4*k,4)}, {ar(GA+112+4*k,4)}, {'0' if k == 0 else vr(G+4,4)}")
    A(f"s_mov_b32 s{S_LOG2E}, 0xbfb8aa3b", f"v_and_b32 v{t0}, 15, v0", f"v_lshlrev_b32 v{t0}, 2, v{t0}",
      f"s_lshl_b32 s{S_T0}, s{S_U}, 7", f"s_add_u32 s{S_T0}, s{S_T0}, {G_OFF}", "s_waitcnt vmcnt(0)", "s_barrier", "s_nop 2")
    for rb in range(2):
        v = G + 4 * rb
        A(f"v_mul_f32 v{v}, s{S_LOG2E}, v{v}", f"v_exp_f32 v{v}, v{v}", "s_nop 0", f"v_add_f32 v{v}, 1.0, v{v}",
          f"v_rcp_f32 v{v}, v{v}", "s_nop 0",
          f"buffer_store_dword v{v}, v{t0}, {sr(SRD_WS,4)}, s{S_T0} offen offset:{rb*64}{STORE_SC}")
    wl_finish(A)

STORE_SC = " sc0 sc1"
ORDER = "LS"
PREFETCH = True

S_PFM, S_PFC = 83, 3
V_PQ = 22
PF_T0 = 3
_pf_sites = []
def prefetch_setup(A):
    late = [(P_X, 224), (P_WQ, 448), (S_KIND, 196), (P_WU, 196), (P_WO, 448), (P_WD, 196)]
    n1 = 160 * (16 - PF_T0)
    sv, st, sr_, sb0, sb1, so, sstr = S_T0, S_T1, S_T2, S_PF, S_PF + 1, S_PF + 2, S_PF + 3
    for k in range(4):
        A(f"s_lshl_b32 s{sv}, s2, 2", f"s_add_u32 s{sv}, s{sv}, s{S_W}", f"s_add_u32 s{sv}, s{sv}, {1024*k}")
        lo, hi = 1024 * k, 1024 * k + 1023
        if lo < n1:
            A(f"s_mul_i32 s{st}, s{sv}, 52429", f"s_lshr_b32 s{st}, s{st}, 23", f"s_mul_i32 s{sr_}, s{st}, 160",
              f"s_sub_u32 s{sr_}, s{sv}, s{sr_}", f"s_add_u32 s{st}, s{st}, {PF_T0}")
            A(f"s_mov_b32 s{sb0}, s{P_CKV}", f"s_mov_b32 s{sb1}, s{P_CKV+1}", f"s_lshl_b32 s{so}, s{sr_}, 17",
              f"s_lshl_b32 s{S_T3}, s{st}, 7", f"s_add_u32 s{so}, s{so}, s{S_T3}", f"s_mov_b32 s{sstr}, 2048")
            A(f"s_lshl_b32 s{st}, s{st}, 19", f"s_add_u32 s{S_T3}, s{sr_}, 32", f"s_and_b32 s{S_T3}, s{S_T3}, 63",
              f"s_lshl_b32 s{S_T3}, s{S_T3}, 13", f"s_add_u32 s{st}, s{st}, s{S_T3}")
            A(f"s_cmp_ge_u32 s{sr_}, 32", f"s_cselect_b32 s{sb0}, s{P_WUK}, s{sb0}", f"s_cselect_b32 s{sb1}, s{P_WUK+1}, s{sb1}",
              f"s_cselect_b32 s{so}, s{st}, s{so}", f"s_cselect_b32 s{sstr}, 128, s{sstr}",
              f"s_cmp_ge_u32 s{sr_}, 96", f"s_cselect_b32 s{sb0}, s{P_WUV}, s{sb0}", f"s_cselect_b32 s{sb1}, s{P_WUV+1}, s{sb1}")
        base = n1
        for p, n in late + [(P_X, 1 << 20)]:
            if base + n > lo and base <= hi:
                last = n == 1 << 20
                A(f"s_sub_u32 s{st}, s{sv}, {base}", f"s_lshl_b32 s{st}, s{st}, 13")
                if last: A(f"s_mov_b32 s{st}, 0")
                A(f"s_cmp_ge_u32 s{sv}, {base}", f"s_cselect_b32 s{sb0}, s{p}, s{sb0}", f"s_cselect_b32 s{sb1}, s{p+1}, s{sb1}",
                  f"s_cselect_b32 s{so}, s{st}, s{so}", f"s_cselect_b32 s{sstr}, 128, s{sstr}")
            base += n
        A(f"s_add_u32 s{sb0}, s{sb0}, s{so}", f"s_addc_u32 s{sb1}, s{sb1}, 0",
          f"v_mul_lo_u32 v{V_T}, v0, s{sstr}", f"v_mov_b32 v{V_T+1}, s{sb1}",
          f"v_add_co_u32 v{V_PQ+2*k}, vcc, s{sb0}, v{V_T}", "s_nop 1",
          f"v_addc_co_u32 v{V_PQ+2*k+1}, vcc, 0, v{V_T+1}, vcc")
    A(f"s_lshr_b32 s{S_T0}, s2, 5", f"s_lshl_b32 s{S_PFM}, 0x01010101, s{S_T0}", f"s_mov_b32 s{S_PFC}, 0")
def pf_blocks(A):
    for lab in _pf_sites:
        A.label(f"{lab}_do")
        A(f"global_load_dword v{V_PFD}, {vr(V_PQ,2)}, off")
        for i in range(6): A(f"v_mov_b32 v{V_PQ+i}, v{V_PQ+2+i}")
        A(f"s_branch {lab}_back")
    _pf_sites.clear()

def code_touch(A, nbytes):
    A(f"s_getpc_b64 {sr(S_PF,2)}", f"s_mov_b32 s{S_PF+2}, {nbytes}", f"s_mov_b32 s{S_PF+3}, 0x20000",
      f"s_lshl_b32 s{S_T0}, s{S_IDX}, 2", f"s_add_u32 s{S_T0}, s{S_T0}, s{S_W}", f"s_lshl_b32 s{S_T0}, s{S_T0}, 10",
      f"v_and_b32 v{V_T}, 7, v0", f"v_lshlrev_b32 v{V_T}, 7, v{V_T}",
      f"buffer_load_dword v{V_PFD}, v{V_T}, {sr(S_PF,4)}, s{S_T0} offen")

CODE_BYTES = 49152
def k1_body(A, fused=False, hooks=None):
    hooks = hooks or {}
    load_kernargs(A)
    stamp_rt(A, 7); stamp(A, 0)
    A(f"v_lshrrev_b32 v{V_T}, 6, v0", "v_and_b32 v0, 63, v0", f"v_readfirstlane_b32 s{S_W}, v{V_T}",
      f"v_lshlrev_b32 v{V_L16}, 4, v0")
    A(f"s_and_b32 s{S_XCD}, s2, 7", f"s_lshr_b32 s{S_IDX}, s2, 3",
      f"s_and_b32 s{S_WM}, s{S_W}, 1", f"s_lshr_b32 s{S_WN}, s{S_W}, 1",
      f"s_lshl_b32 s{S_W8192}, s{S_W}, 13",
      f"s_and_b32 s{S_RT1}, s{S_IDX}, 7",
      f"s_lshr_b32 s{S_T0}, s{S_IDX}, 3", f"s_and_b32 s{S_T0}, s{S_T0}, 1",
      f"s_lshl_b32 s{S_HEAD1}, s{S_XCD}, 1", f"s_add_u32 s{S_HEAD1}, s{S_HEAD1}, s{S_T0}")
    LO = f"s_cmp_lt_u32 s{S_IDX}, 16"
    LS = ORDER == "LS"
    J1L = f"s_cmp_lt_u32 s{S_IDX}, {32 if LS else 16}"
    A(f"s_mov_b32 s{S_T2}, 896", J1L, f"s_cselect_b32 s{S_T2}, 2048, s{S_T2}",
      f"s_mov_b32 s{S_STA2}, 2048", f"s_cselect_b32 s{S_STA2}, 896, s{S_STA2}", f"s_mov_b32 s{S_T3}, 8192")
    A(f"s_lshl_b32 s{S_T0}, s{S_RT1}, 8", f"s_lshl_b32 s{S_T1}, s{S_W}, 6", f"s_add_u32 s{S_T0}, s{S_T0}, s{S_T1}",
      f"s_mul_i32 s{S_SOA0}, s{S_T0}, s{S_T2}", f"s_lshl_b32 s{S_T1}, s{S_T2}, 5", f"s_add_u32 s{S_SOA1}, s{S_SOA0}, s{S_T1}")
    A(f"s_lshl_b32 s{S_T0}, s{S_WM}, 17", f"s_lshl_b32 s{S_T1}, s{S_HEAD1}, 9", f"s_add_u32 s{S_SOW}, s{S_T0}, s{S_T1}",
      f"s_lshl_b32 s{S_T1}, s{S_WN}, 8", f"s_add_u32 s{S_SOW}, s{S_SOW}, s{S_T1}",
      f"s_mov_b32 s{S2_SOW}, s{S_SOW}",
      f"s_mov_b32 s{S_WINC}, {32*8192}")
    A(f"s_lshl_b32 s{S_WM0}, s{S_W}, 12", f"s_add_u32 s{S_WM0}, s{S_WM0}, {WBASE}")
    voffs(A, V_A, V_W, f"s{S_T2}", f"s{S_T3}")
    A(f"s_mov_b32 s{S_T0}, {2048*448*2}", f"s_mov_b32 s{S_T1}, {448*4096*2}")
    A("s_waitcnt lgkmcnt(0)")
    w1lo, w1hi, w2hi = (P_WUV, P_WUK, P_WQ) if LS else (P_WUK, P_WQ, P_WUV)
    A(J1L,
      f"s_cselect_b32 s{SRD_A}, s{P_CKV}, s{P_X}", f"s_cselect_b32 s{SRD_A+1}, s{P_CKV+1}, s{P_X+1}",
      f"s_cselect_b32 s{SRD_A+2}, {2048*1024*2}, s{S_T0}", f"s_mov_b32 s{SRD_A+3}, 0x20000",
      f"s_cselect_b32 s{SRD_W+2}, {1024*4096*2}, s{S_T1}", f"s_mov_b32 s{SRD_W+3}, 0x20000",
      LO, f"s_cselect_b32 s{SRD_W}, s{w1lo}, s{w1hi}", f"s_cselect_b32 s{SRD_W+1}, s{w1lo+1}, s{w1hi+1}")
    def a_group(slot, hf):
        A(f"s_add_u32 m0, s{S_W8192}, {slot*32768 + hf*4096}", "s_nop 0")
        for j in range(4): A(dma_a(j, hf))
        so = S_SOA1 if hf else S_SOA0
        A(f"s_add_u32 s{so}, s{so}, 128")
    def w_group(slot):
        A(f"s_add_u32 m0, s{S_WM0}, {slot*16384}", "s_nop 0")
        for j in range(4): A(dma_w(j))
        A(f"s_add_u32 s{S_SOW}, s{S_SOW}, s{S_WINC}")
    a_group(0, 0); a_group(0, 1); w_group(0); a_group(1, 0); w_group(1); a_group(1, 1); w_group(2)
    a_group(2, 0); w_group(3)
    npf = 0
    A(f"s_mov_b32 s{SRD_WS}, s{P_WS}", f"s_mov_b32 s{SRD_WS+1}, s{P_WS+1}", f"s_mov_b32 s{SRD_WS+2}, {WS_BYTES}",
      f"s_mov_b32 s{SRD_WS+3}, 0x20000")
    A(f"s_add_u32 s{S_DSLOT}, s{S_W8192}, {2*32768}", f"s_mov_b32 s{S_RSLOT}, 0")
    A(f"v_lshlrev_b32 v{V_T}, 2, v0", f"v_mov_b32 v{V_T+1}, 0",
      f"s_lshl_b32 s{S_T0}, s2, 8", f"s_add_u32 s{S_T0}, s{S_T0}, {FL_OFF}",
      f"buffer_store_dword v{V_T+1}, v{V_T}, {sr(SRD_WS,4)}, s{S_T0} offen sc0 sc1")
    npf += 1
    t0, t1, t2, t3 = V_T, V_T + 1, V_T + 2, V_T + 3
    A(f"v_lshrrev_b32 v{t0}, 4, v0",
      f"v_bfe_u32 v{t1}, v0, 2, 2",
      f"v_lshl_add_u32 v{t2}, v{t0}, 3, v{t1}",
      f"v_lshlrev_b32 v{t2}, 8, v{t2}",
      f"v_and_b32 v{t3}, 1, v0", f"v_lshl_add_u32 v{t2}, v{t3}, 3, v{t2}",
      f"v_add_u32 v{t2}, {WBASE}, v{t2}",
      f"v_and_b32 v{t0}, 1, v{t0}", f"v_lshl_add_u32 v{t1}, v{t0}, 2, v{t1}", f"v_lshlrev_b32 v{t1}, 1, v{t1}",
      f"v_bfe_u32 v{t3}, v0, 1, 1",
      f"s_lshl_b32 s{S_T0}, s{S_WM}, 3",
      f"v_add_u32 v{t3}, s{S_T0}, v{t3}")
    for cb in range(4):
        A(f"v_add_u32 v{t0}, {2*cb}, v{t3}", f"v_xor_b32 v{t0}, v{t0}, v{t1}",
          f"v_lshl_add_u32 v{V_RW+cb}, v{t0}, 4, v{t2}")
    A(f"v_and_b32 v{t0}, 15, v0", f"s_lshl_b32 s{S_T0}, s{S_WN}, 7", f"v_add_u32 v{t1}, s{S_T0}, v{t0}",
      f"v_lshlrev_b32 v{t1}, 7, v{t1}", f"v_lshrrev_b32 v{t0}, 1, v{t0}", f"v_lshrrev_b32 v{t2}, 4, v0")
    for ks in range(2):
        A(f"v_add_u32 v{t3}, {4*ks}, v{t2}", f"v_xor_b32 v{t3}, v{t3}, v{t0}",
          f"v_lshl_add_u32 v{V_RA+ks}, v{t3}, 4, v{t1}")
    A(f"s_mul_i32 s{S_T0}, s{S_XCD}, 14", f"s_add_u32 s{S_T0}, s{S_T0}, s{S_IDX}",
      f"s_lshr_b32 s{S_C2}, s{S_T0}, 3", f"s_and_b32 s{S_T0}, s{S_T0}, 7",
      LO,
      f"s_cselect_b32 s{S_RT2}, s{S_T0}, s{S_RT1}",
      f"s_mov_b32 s{S_STW2}, 8192", f"s_cselect_b32 s{S_STW2}, 3584, s{S_STW2}",
      f"s_mov_b32 s{S2_WSZ}, {(448 if LS else 1024)*4096*2}", f"s_cselect_b32 s{S2_WSZ}, {448*1792*2}, s{S2_WSZ}",
      J1L,
      f"s_mov_b32 s{S2_ASZ}, {2048*1024*2}", f"s_cselect_b32 s{S2_ASZ}, {2048*448*2}, s{S2_ASZ}",
      f"s_cselect_b32 s{S2_A0}, s{P_X}, s{P_CKV}", f"s_cselect_b32 s{S2_A1}, s{P_X+1}, s{P_CKV+1}")
    A(f"s_cmp_eq_u32 s{S_WN}, 1",
      f"s_cselect_b32 s{S_T2}, s{P_WU}, s{P_WG}", f"s_cselect_b32 s{S_T3}, s{P_WU+1}, s{P_WG+1}",
      f"s_lshl_b32 s{S_T1}, s{S_C2}, 8", f"s_mul_i32 s{S_T0}, s{S_WM}, {16*3584}", f"s_add_u32 s{S_T0}, s{S_T0}, s{S_T1}",
      LO,
      f"s_cselect_b32 s{S2_W0}, s{S_T2}, s{w2hi}", f"s_cselect_b32 s{S2_W1}, s{S_T3}, s{w2hi+1}",
      f"s_cselect_b32 s{S2_SOW}, s{S_T0}, s{S2_SOW}",
      f"s_lshl_b32 s{S2_WINC}, s{S_STW2}, 5")
    A(f"s_lshl_b32 s{S_T0}, s{S_RT2}, 8", f"s_lshl_b32 s{S_T1}, s{S_W}, 6", f"s_add_u32 s{S_T0}, s{S_T0}, s{S_T1}",
      f"s_mul_i32 s{S2_SOA0}, s{S_T0}, s{S_STA2}", f"s_lshl_b32 s{S_T1}, s{S_STA2}, 5", f"s_add_u32 s{S2_SOA1}, s{S2_SOA0}, s{S_T1}")
    A(f"s_and_b32 s{S_T0}, s{S_IDX}, 30", f"s_cmp_eq_u32 s{S_T0}, 14",
      f"s_cselect_b32 s{S2_ASZ}, 0, s{S2_ASZ}", f"s_cselect_b32 s{S2_WSZ}, 0, s{S2_WSZ}")
    voffs(A, V_A2, V_W2, f"s{S_STA2}", f"s{S_STW2}")
    for j in range(8): A(f"v_accvgpr_write_b32 a{A_J2+j}, v{V_A2+j}")
    A(f"s_lshl_b32 s{S_T0}, s{S_HEAD1}, 20", f"s_lshl_b32 s{S_T1}, s{S_RT1}, 17", f"s_add_u32 s{S_T0}, s{S_T0}, s{S_T1}",
      f"s_lshl_b32 s{S_T1}, s{S_WN}, 16", f"s_add_u32 s{S_T0}, s{S_T0}, s{S_T1}",
      f"s_lshl_b32 s{S_T1}, s{S_WM}, 11", f"s_add_u32 s{S_T2}, s{S_T0}, s{S_T1}",
      f"s_lshl_b32 s{S_T1}, s{S_WM}, 12", f"s_add_u32 s{S_T3}, s{S_T0}, s{S_T1}",
      )
    if LS:
        A(f"s_add_u32 s{S_DST2}, s{S_T2}, {QF_OFF}", f"s_add_u32 s{S_T3}, s{S_T3}, {VF_OFF}", f"s_add_u32 s{S_T2}, s{S_T2}, {KF_OFF}",
          LO, f"s_cselect_b32 s{S_DST1}, s{S_T3}, s{S_T2}")
    else:
        A(f"s_add_u32 s{S_DST2}, s{S_T3}, {VF_OFF}", f"s_add_u32 s{S_T3}, s{S_T2}, {KF_OFF}", f"s_add_u32 s{S_T2}, s{S_T2}, {QF_OFF}",
          LO, f"s_cselect_b32 s{S_DST1}, s{S_T3}, s{S_T2}")
    A(f"s_lshl_b32 s{S_T0}, s{S_RT2}, 4", f"s_lshl_b32 s{S_T1}, s{S_WN}, 3", f"s_add_u32 s{S_T0}, s{S_T0}, s{S_T1}",
      f"s_mul_i32 s{S_T0}, s{S_T0}, {asmlib.AFS}", f"s_lshl_b32 s{S_T1}, s{S_C2}, 2", f"s_add_u32 s{S_T0}, s{S_T0}, s{S_T1}",
      f"s_lshl_b32 s{S_T1}, s{S_WM}, 1", f"s_add_u32 s{S_T0}, s{S_T0}, s{S_T1}", f"s_add_u32 s{S_T0}, s{S_T0}, 128",
      f"s_lshl_b32 s{S_T0}, s{S_T0}, 10", f"s_add_u32 s{S_T0}, s{S_T0}, {AF_OFF}",
      LO, f"s_cselect_b32 s{S_DST2}, s{S_T0}, s{S_DST2}")
    A(f"s_mov_b32 s{S_KIND}, s{P_WG}", f"s_mov_b32 s{S_STA2}, s{P_WG+1}")
    if CODE_BYTES:
        code_touch(A, CODE_BYTES); npf += 1
    if PREFETCH: prefetch_setup(A)
    A(f"v_mov_b32 v{V_RCUR}, v{V_RA}")
    A(f"s_waitcnt vmcnt({24+npf})", "s_barrier")
    A(reads_for(0, 0))
    A(f"s_waitcnt vmcnt({16+npf}) lgkmcnt(0)", "s_barrier")
    stamp(A, 1)
    A(LO, "s_cbranch_scc0 L_k1_hi")
    job(A, "k1L", "AW" if LS else "WA", 32, 0, True, pf=PREFETCH)
    stamp(A, 2)
    A(f"s_cmp_ge_u32 s{S_IDX}, 14", "s_cbranch_scc1 L_k1_side")
    early_dma(A, 0)
    aft = (epi_AW_stage if LS else epi_WA_stage)(A, S_DST1)
    stamp(A, 3)
    job(A, "k1G", "WA", 14, 0, False, after=aft, U=14, hook=hooks.get("G", wl_hook))
    stamp(A, 4)
    wl_finish(A)
    if "Gend" in hooks: hooks["Gend"](A)
    else:
        epi_GU(A, S_DST2); fin(A); A("s_endpgm")
    switch_code(A, "k1L")
    switch_code(A, "k1H")
    pf_blocks(A)
    A.label("L_k1_hi")
    job(A, "k1H", "WA", 32 if LS else 14, 0, True, pf=PREFETCH)
    stamp(A, 2)
    early_dma(A, 0 if LS else 2)
    aft = epi_WA_stage(A, S_DST1)
    stamp(A, 3)
    if LS: job(A, "k1Q", "WA", 14, 0, False, after=aft, U=14, hook=hooks.get("Q", wl_hook))
    else: job(A, "k1V", "AW", 32, 2, False, after=aft, U=24 // TRICKLE, pf=PREFETCH, pf_roll=False)
    stamp(A, 4)
    assert LS
    wl_finish(A)
    if "Hend" in hooks: hooks["Hend"](A)
    else:
        (epi_WA if LS else epi_AW)(A, S_DST2); fin(A); A("s_endpgm")
    pf_blocks(A)
    A.label("L_k1_side")
    (epi_AW if LS else epi_WA)(A, S_DST1)
    stamp(A, 3)
    side_job(A)
    stamp(A, 4)
    if "Send" in hooks: hooks["Send"](A)
    else: fin(A)

def gen_k1(A, name="k1_kernel"):
    kernel_begin(A, name)
    A("s_cmp_ge_u32 s2, 256", "s_cbranch_scc1 L_k1_end")
    k1_body(A)
    A.label("L_k1_end")
    A("s_endpgm")

def desc_k1(A, name="k1_kernel"):
    kernel_desc(A, name, 512, 256)
```

```python
from asmlib import *
import asmlib

SRD_K, SRD_V, SRD_WS, SRD_DBG = 4, 8, 12, 60
S_W, S_W8192, S_CUR, S_NXT, S_KSO, S_VSO = 16, 17, 18, 19, 20, 21
S_T, S_T1N, S_EVA, S_MODE, S_QSO, S_C, S_THR = 22, 23, 24, 25, 26, 27, 28
S_T0, S_T1, S_T2, S_T3 = 29, 30, 31, 64
S_HEAD, S_PAIR, S_QB, S_EVB, S_WSSZ, S_PART, S_FLAG, S_KB0, S_VB0 = 65, 66, 67, 68, 69, 70, 71, 72, 73
S_POLLT, S_X = 82, 83
NT = 17
V_X8 = 24
V_SV = 20
SPLIT = 15
S_MASK = 74
V_L16, V_AK, V_AV, V_D0, V_D, V_MC, V_L, V_TS, V_T, V_X = 1, 2, 3, 4, 5, 6, 8, 10, 14, 16
S0, P0, O0 = 32, 96, 128
QA, FA, PA = 0, 64, 128
NSLOT = 5
PART_STRIDE = 4 * 17 * 1024
THR = 0x44800000

def S(par, kb, qb, r=0): return S0 + par * 32 + (kb * 2 + qb) * 4 + r
def P(par, ks, qb, d=0): return P0 + par * 16 + (ks * 2 + qb) * 4 + d
def O(db, qb, r=0): return O0 + (db * 2 + qb) * 4 + r
def Q(qb, ds): return QA + (qb * 8 + ds) * 4
def F(k): return FA + (k % 16) * 4
def TS(par, qb): return V_TS + par * 2 + qb

def rd(k, vaddr): return f"ds_read_b128 {ar(F(k),4)}, v{vaddr} offset:{(k % 32) * 1024}"

def qk_mfmas(par):
    m = []
    for kb in range(4):
        for ds in range(8):
            for qb in range(2):
                c = "0" if ds == 0 else vr(S(par, kb, qb), 4)
                m.append(f"v_mfma_f32_16x16x32_bf16 {vr(S(par,kb,qb),4)}, {ar(F(kb*8+ds),4)}, {ar(Q(qb,ds),4)}, {c}")
    return m
def pv_mfmas(par):
    m = []
    for ks in range(2):
        for db in range(16):
            for qb in range(2):
                m.append(f"v_mfma_f32_16x16x32_bf16 {vr(O(db,qb),4)}, {ar(F(ks*16+db),4)}, {vr(P(par,ks,qb),4)}, {vr(O(db,qb),4)}")
    return m

def sm_pair(par, h, p):
    kb, qb, rr = 2 * h + (p >> 2), (p >> 1) & 1, (p & 1) * 2
    xa, xb = V_X + (p & 1) * 2, V_X + (p & 1) * 2 + 1
    if h == 1 and p == 0: xa, xb = V_X8, V_X8 + 1
    ts = TS(par, qb)
    first = (h == 0 and (p >> 2) == 0 and (p & 1) == 0)
    return dict(
        fa=f"v_fma_f32 v{xa}, v{S(par,kb,qb,rr)}, s{S_C}, -v{V_MC+qb}",
        fb=f"v_fma_f32 v{xb}, v{S(par,kb,qb,rr+1)}, s{S_C}, -v{V_MC+qb}",
        ea=f"v_exp_f32 v{xa}, v{xa}", eb=f"v_exp_f32 v{xb}, v{xb}",
        aa=(f"v_mov_b32 v{ts}, v{xa}" if first else f"v_add_f32 v{ts}, v{ts}, v{xa}"),
        ab=f"v_add_f32 v{ts}, v{ts}, v{xb}",
        cv=f"v_cvt_pk_bf16_f32 v{P(par,h,qb,2*(kb&1)+(p&1))}, v{xa}, v{xb}")

def sm_plain(A, par, h, split=False):
    for p in range(0, 8, 2):
        a, b = sm_pair(par, h, p), sm_pair(par, h, p + 1)
        if split and h == 1 and p == 0:
            A(b["fa"], b["fb"], a["ab"], b["ea"], b["eb"], a["cv"], b["aa"], b["ab"], b["cv"])
        else:
            A(a["fa"], a["fb"], b["fa"], b["fb"], a["ea"], a["eb"], b["ea"], b["eb"],
              a["aa"], a["ab"], a["cv"], b["aa"], b["ab"], b["cv"])
    if split and h == 0:
        a = sm_pair(par, 1, 0)
        A(a["fa"], a["fb"], a["ea"], a["eb"], a["aa"])

def dma(srd, so, j): return f"buffer_load_dwordx4 v{V_L16}, {sr(srd,4)}, s{so} offen offset:{(j&3)*1024} lds"

def phase(A, kind, par, sm=True, dmas=True, look=True):
    if kind == "A":
        m = qk_mfmas(1 - par); vcur, vnxt = V_AK, V_AV; srd, so = SRD_K, S_KSO
        nsrd, nso, nb0, ahead, ev = SRD_V, S_VSO, S_VB0, 2, S_EVA
        smp, smh = par, 1
    else:
        m = pv_mfmas(par); vcur, vnxt = V_AV, V_AK; srd, so = SRD_V, S_VSO
        nsrd, nso, nb0, ahead, ev = SRD_K, S_KSO, S_KB0, 4, S_EVB
        smp, smh = 1 - par, 0
    g = {}
    def put(k, *ins): g.setdefault(k, []).extend(ins)
    sc = {}
    if dmas:
        sc[3] = f"s_add_u32 s{S_NXT}, s{S_CUR}, 32768"
        sc[5] = f"s_cmp_eq_u32 s{S_NXT}, {NSLOT*32768}"
        sc[11] = f"s_cselect_b32 s{S_NXT}, 0, s{S_NXT}"
        sc[13] = f"s_add_u32 s{S_T0}, s{S_T}, {ahead}"
        sc[19] = f"s_cmp_lt_u32 s{S_T0}, {NT}"
        sc[21] = f"s_cselect_b32 s{nsrd+2}, s{S_WSSZ}, 0"
        sc[27] = "s_add_u32 m0, m0, 4096"
        sc[29] = f"s_add_u32 s{so}, s{so}, 4096"
        sc[35] = f"s_cmp_eq_u32 s{S_T0}, s{S_T1N}"
        sc[37] = f"s_cselect_b32 s{nso}, s{nb0}, s{nso}"
        if kind == "B": sc[43] = f"s_add_u32 s{S_T}, s{S_T}, 1"
        sc[45] = f"s_add_u32 s{S_T1}, s{S_CUR}, s{S_W8192}"
        sc[51] = f"s_mov_b32 s{S_CUR}, s{S_NXT}"
        sc[53] = f"s_add_u32 s{S_T2}, s{so}, 28672"
        sc[59] = f"s_bitcmp1_b32 s{ev}, s{S_T}"
        sc[61] = "s_barrier"
    for grp in range(8):
        b = grp * 8
        d = None
        if sm and kind == "B": d = sm_pair(smp, 0, grp)
        if sm and kind == "A" and grp < 7: d = sm_pair(smp, 1, grp + 1)
        for i in range(4):
            k = 4 * (grp + 2) + i
            if k < 32: put(b + 2 * i, rd(k, vcur))
            elif look: put(b + 2 * i, rd(k, vnxt))
        if dmas:
            put(b + 1, dma(srd, so, grp))
            if grp == 7: put(b + 1, "s_waitcnt vmcnt(16)")
        for k in (3, 5):
            if b + k in sc: put(b + k, sc[b + k])
        if grp < 7 or look:
            put(b + 7, "s_waitcnt lgkmcnt(4)" if (grp < 6 or look) else "s_waitcnt lgkmcnt(0)")
        if d:
            put(b + 0, d["fa"]); put(b + 2, d["fb"]); put(b + 3, d["ea"]); put(b + 5, d["eb"])
            put(b + 6, d["aa"]); put(b + 7, d["ab"], d["cv"])
    if look: put(5 * 8 + 4, f"v_add_u32 v{vnxt}, s{S_NXT}, v{V_L16}")
    if kind == "B":
        put(4, f"v_add_f32 v{V_L}, v{V_L}, v{TS(par,0)}")
        put(12, f"v_add_f32 v{V_L+1}, v{V_L+1}, v{TS(par,1)}")
    if sm:
        e = sm_pair(smp, 1, 0)
        if kind == "B":
            put(20, e["fa"]); put(28, e["fb"]); put(36, e["ea"]); put(52, e["eb"]); put(60, e["aa"])
        else:
            put(4, e["ab"]); put(12, e["cv"])
            put(56, f"v_add_f32 v{V_T}, v{TS(par,0)}, v{TS(par,1)}")
            put(58, f"v_cmp_nge_f32 vcc, s{S_THR}, v{V_T}")
    if dmas:
        if kind == "A": put(60, f"s_mov_b32 m0, s{S_T1}"); put(62, f"s_mov_b32 s{so}, s{S_T2}")
        else: put(57, f"s_mov_b32 m0, s{S_T1}")
    interleave(A, m, g)
    if dmas and kind == "B": A(f"s_mov_b32 s{so}, s{S_T2}")

def check(A, par, tag):
    A(f"v_add_f32 v{V_T}, v{TS(par,0)}, v{TS(par,1)}",
      f"v_cmp_nge_f32 vcc, s{S_THR}, v{V_T}")

def xmax(A, v, t):
    A(f"v_mov_b32 v{t}, v{v}", "s_nop 1", f"v_permlane16_swap_b32 v{v}, v{t}", "s_nop 1", f"v_max_f32 v{v}, v{v}, v{t}",
      f"v_mov_b32 v{t}, v{v}", "s_nop 1", f"v_permlane32_swap_b32 v{v}, v{t}", "s_nop 1", f"v_max_f32 v{v}, v{v}, v{t}")
def xsum(A, v, t):
    A(f"v_mov_b32 v{t}, v{v}", "s_nop 1", f"v_permlane16_swap_b32 v{v}, v{t}", "s_nop 1", f"v_add_f32 v{v}, v{v}, v{t}",
      f"v_mov_b32 v{t}, v{v}", "s_nop 1", f"v_permlane32_swap_b32 v{v}, v{t}", "s_nop 1", f"v_add_f32 v{v}, v{v}, v{t}")

def rowmax(A, par, qb, dst, t):
    regs = [S(par, kb, qb, r) for kb in range(4) for r in range(4)]
    A(f"v_max3_f32 v{dst}, v{regs[0]}, v{regs[1]}, v{regs[2]}")
    for i in range(3, 15, 2):
        A(f"v_max3_f32 v{dst}, v{dst}, v{regs[i]}, v{regs[i+1]}")
    A(f"v_max_f32 v{dst}, v{dst}, v{regs[15]}")
    xmax(A, dst, t)
    A(f"v_mul_f32 v{dst}, s{S_C}, v{dst}")

def slow(A, par, lab, back):
    A.label(lab)
    for qb in range(2):
        rowmax(A, par, qb, V_T, V_T + 1)
        A(f"v_max_f32 v{V_T}, v{V_T}, v{V_MC+qb}",
          f"v_sub_f32 v{V_T+1}, v{V_MC+qb}, v{V_T}", f"v_exp_f32 v{V_T+1}, v{V_T+1}",
          f"v_mov_b32 v{V_MC+qb}, v{V_T}",
          f"v_mul_f32 v{V_L+qb}, v{V_L+qb}, v{V_T+1}")
        for db in range(16):
            for r in range(4): A(f"v_mul_f32 v{O(db,qb,r)}, v{O(db,qb,r)}, v{V_T+1}")
    sm_plain(A, par, 0); sm_plain(A, par, 1)
    A("s_nop 1", f"s_branch {back}")

def mask(A, par, toff):
    A(f"s_sub_u32 s{S_T0}, s{S_T}, {NT - 2 - toff}", f"s_lshl_b32 s{S_T0}, s{S_T0}, 6",
      f"s_lshl_b32 s{S_T1}, s{S_W}, 5", f"s_sub_u32 s{S_T0}, s{S_T1}, s{S_T0}",
      f"v_add_u32 v{V_D}, s{S_T0}, v{V_D0}", f"v_mov_b32 v{V_T}, 0xff800000", "s_nop 4")
    for kb in range(4):
        for qb in range(2):
            for r in range(4):
                A(f"v_cmp_le_i32 {sr(S_MASK+2*r,2)}, {16*kb + r - 16*qb}, v{V_D}")
            for r in range(4):
                A(f"v_cndmask_b32 v{S(par,kb,qb,r)}, v{V_T}, v{S(par,kb,qb,r)}, {sr(S_MASK+2*r,2)}")

def q_loads(A, base, srd):
    for qb in range(2):
        for ds in range(8):
            if ds % 4 == 0: A(f"s_add_u32 s{S_T0}, s{S_QSO}, {(qb*8+ds)*1024}")
            A(f"buffer_load_dwordx4 {ar(base + (qb*8+ds)*4,4)}, v{V_L16}, {sr(srd,4)}, s{S_T0} offen offset:{(ds%4)*1024}")

def item_load(A, slot, kind, t):
    srd, so, b0 = (SRD_K, S_KSO, S_KB0) if kind == "K" else (SRD_V, S_VSO, S_VB0)
    if t: A(f"s_cmp_eq_u32 s{S_T1N}, {t}", f"s_cselect_b32 s{so}, s{b0}, s{so}")
    for hf in range(2):
        A(f"s_add_u32 m0, s{S_W8192}, {slot*32768 + hf*4096}", "s_nop 0")
        for j in range(4): A(dma(srd, so, j))
        A(f"s_add_u32 s{so}, s{so}, {28672 if hf else 4096}")

def q_off(A, qblk):
    A(f"s_lshl_b32 s{S_T0}, s{S_HEAD}, 20", f"s_lshl_b32 s{S_T1}, s{qblk}, 16", f"s_add_u32 s{S_QSO}, s{S_T0}, s{S_T1}",
      f"s_lshl_b32 s{S_T1}, s{S_W}, 14", f"s_add_u32 s{S_QSO}, s{S_QSO}, s{S_T1}")
    if QF_OFF: A(f"s_add_u32 s{S_QSO}, s{S_QSO}, {QF_OFF}")

def pack_pair(A, x, y):
    A(f"v_cvt_pk_bf16_f32 v{x}, v{x}, v{x+1}", f"v_cvt_pk_bf16_f32 v{x+1}, v{x+2}, v{x+3}",
      f"v_cvt_pk_bf16_f32 v{x+2}, v{y}, v{y+1}", f"v_cvt_pk_bf16_f32 v{x+3}, v{y+2}, v{y+3}")

FINAL_SC = " sc0 sc1"
DIAG2 = False
_stamp0 = stamp
def stamp(A, k):
    if DIAG2:
        k = {0: 0, 2: 1, 3: 5, 6: 6}.get(k)
        if k is None: return
    _stamp0(A, k)
def final_store(A):
    A(f"s_lshl_b32 s{S_T0}, s{S_QB}, 3", f"s_lshl_b32 s{S_T1}, s{S_W}, 1", f"s_add_u32 s{S_T0}, s{S_T0}, s{S_T1}",
      f"s_mul_i32 s{S_T0}, s{S_T0}, {asmlib.AFS}", f"s_lshl_b32 s{S_T1}, s{S_HEAD}, 3", f"s_add_u32 s{S_T0}, s{S_T0}, s{S_T1}",
      f"s_lshl_b32 s{S_T0}, s{S_T0}, 10", f"s_add_u32 s{S_T0}, s{S_T0}, {AF_OFF}")

def poll_and_fetch(A, tag):
    A(f"v_mov_b32 v{V_T+1}, 0", f"s_mov_b32 s{S_T1}, 0")
    A.label(f"L_k2_poll{tag}")
    A(f"buffer_load_ushort v{V_T}, v{V_T+1}, {sr(SRD_DBG,4)}, s{S_FLAG} offen sc0 sc1", "s_waitcnt vmcnt(0)",
      f"v_readfirstlane_b32 s{S_T0}, v{V_T}", "s_nop 3", f"s_cmp_eq_u32 s{S_T0}, 1", f"s_cbranch_scc1 L_k2_got{tag}",
      f"s_add_u32 s{S_T1}, s{S_T1}, 1", f"s_cmp_lt_u32 s{S_T1}, 0x40000",
      "s_sleep 4", f"s_cbranch_scc1 L_k2_poll{tag}")
    A.label(f"L_k2_got{tag}")
    for i in range(16):
        if i % 4 == 0: A(f"s_add_u32 s{S_T0}, s{S_PART}, {i*1024}")
        A(f"buffer_load_dwordx4 {ar(PA+4*i,4)}, v{V_L16}, {sr(SRD_WS,4)}, s{S_T0} offen offset:{(i%4)*1024} sc0 sc1")
    A(f"s_add_u32 s{S_T0}, s{S_PART}, {16*1024}")
    A(f"buffer_load_dwordx4 {vr(V_SV,4)}, v{V_L16}, {sr(SRD_WS,4)}, s{S_T0} offen sc0 sc1")

def gen_k2(A, name="k2_kernel"):
    kernel_begin(A, name)
    A("s_cmp_ge_u32 s2, 256", "s_cbranch_scc1 L_k2_end")
    A("s_load_dwordx4 s[56:59], s[0:1], 96")
    stamp_rt(A, 7); stamp(A, 0)
    A(f"v_lshrrev_b32 v{V_T}, 6, v0", "v_and_b32 v0, 63, v0", f"v_readfirstlane_b32 s{S_W}, v{V_T}",
      f"v_lshlrev_b32 v{V_L16}, 4, v0")
    A(f"s_lshl_b32 s{S_W8192}, s{S_W}, 13",
      f"s_and_b32 s{S_T0}, s2, 7", f"s_lshr_b32 s{S_T1}, s2, 3",
      f"s_lshl_b32 s{S_HEAD}, s{S_T0}, 1", f"s_lshr_b32 s{S_T0}, s{S_T1}, 4", f"s_add_u32 s{S_HEAD}, s{S_HEAD}, s{S_T0}",
      f"s_and_b32 s{S_MODE}, s{S_T1}, 1",
      f"s_lshr_b32 s{S_PAIR}, s{S_T1}, 1", f"s_and_b32 s{S_PAIR}, s{S_PAIR}, 7",
      f"s_sub_u32 s{S_QB}, 15, s{S_PAIR}",
      f"s_lshl_b32 s{S_T2}, s{S_PAIR}, 1", f"s_sub_u32 s{S_T2}, {SPLIT}, s{S_T2}")
    q_off(A, S_QB)
    A(f"s_add_u32 s{S_T0}, s{S_T0}, s{S_W8192}",
      f"s_add_u32 s{S_KB0}, s{S_T0}, {KF_OFF}", f"s_add_u32 s{S_VB0}, s{S_T0}, {VF_OFF}",
      f"s_lshl_b32 s{S_T1}, s{S_T2}, 15",
      f"s_cmp_eq_u32 s{S_MODE}, 0",
      f"s_cselect_b32 s{S_T1}, s{S_T1}, 0", f"s_cselect_b32 s{S_T1N}, 0x7fff, s{S_T2}",
      f"s_add_u32 s{S_KSO}, s{S_KB0}, s{S_T1}", f"s_add_u32 s{S_VSO}, s{S_VB0}, s{S_T1}",
      f"s_mov_b32 s{S_WSSZ}, {WS_BYTES}")
    A("s_waitcnt lgkmcnt(0)")
    for srd in (SRD_K, SRD_V, SRD_WS):
        A(f"s_mov_b32 s{srd}, s{P_WS}", f"s_mov_b32 s{srd+1}, s{P_WS+1}", f"s_mov_b32 s{srd+2}, {WS_BYTES}",
          f"s_mov_b32 s{srd+3}, 0x20000")
    item_load(A, 0, "K", 0)
    q_loads(A, QA, SRD_WS)
    item_load(A, 1, "K", 1)
    A(f"s_mov_b32 s{SRD_DBG}, s{P_DBG}", f"s_mov_b32 s{SRD_DBG+1}, s{P_DBG+1}", f"s_mov_b32 s{SRD_DBG+2}, 256",
      f"s_mov_b32 s{SRD_DBG+3}, 0x20000")
    A(f"v_and_b32 v{V_D0}, 15, v0", f"v_lshrrev_b32 v{V_T}, 4, v0", f"v_lshlrev_b32 v{V_T}, 2, v{V_T}",
      f"v_sub_u32 v{V_D0}, v{V_D0}, v{V_T}")
    A(f"s_mov_b32 s{S_C}, 0x3db8aa3b", f"s_mov_b32 s{S_THR}, {THR}")
    A(f"s_lshl_b32 s{S_T0}, s{S_HEAD}, 3", f"s_add_u32 s{S_T0}, s{S_T0}, s{S_PAIR}",
      f"s_lshl_b32 s{S_FLAG}, s{S_T0}, 1",
      f"s_mul_i32 s{S_PART}, s{S_T0}, {PART_STRIDE}", f"s_mul_i32 s{S_T1}, s{S_W}, {17*1024}",
      f"s_add_u32 s{S_PART}, s{S_PART}, s{S_T1}", f"s_add_u32 s{S_PART}, s{S_PART}, {PART_OFF}")
    A(f"s_sub_u32 s{S_X}, s{S_T1N}, 1", f"s_lshl_b32 s{S_T0}, 3, s{S_X}",
      f"s_cmp_eq_u32 s{S_MODE}, 0", f"s_cselect_b32 s{S_T0}, 0, s{S_T0}",
      f"s_or_b32 s{S_EVA}, s{S_T0}, {3 << (NT-3)}", f"s_or_b32 s{S_EVB}, s{S_T0}, {3 << (NT-2)}",
      f"s_mov_b32 s{S_POLLT}, {NT-2}",
      f"s_cmp_eq_u32 s{S_PAIR}, 0", f"s_cselect_b32 s{S_POLLT}, {NT-1}, s{S_POLLT}",
      f"s_cmp_eq_u32 s{S_MODE}, 1", f"s_cselect_b32 s{S_POLLT}, 0x7fff, s{S_POLLT}")
    for i in range(128): A(f"v_mov_b32 v{O0+i}, 0")
    A(f"v_mov_b32 v{V_L}, 0", f"v_mov_b32 v{V_L+1}, 0", f"s_mov_b32 s{S_T}, 0")
    A(f"v_mov_b32 v{V_AV}, v{V_L16}", f"v_add_u32 v{V_AK}, 32768, v{V_L16}")
    q_off(A, S_PAIR)
    A("s_waitcnt vmcnt(8)", "s_barrier")
    stamp(A, 1)
    for k in range(8): A(rd(k, V_AV))
    B1 = Asm()
    item_load(B1, 2, "V", 0); item_load(B1, 3, "K", 2); item_load(B1, 4, "V", 1)
    B2 = Asm()
    B2(f"s_cmp_eq_u32 s{S_T1N}, 3", f"s_cselect_b32 s{S_KSO}, s{S_KB0}, s{S_KSO}")
    B2(f"s_cmp_eq_u32 s{S_MODE}, 1", f"s_cselect_b32 s{SRD_V+2}, s{S_WSSZ}, 0")
    q_loads(B2, PA, SRD_V)
    def chunks(lines, per):
        out, cur, n = [], [], 0
        for l in lines:
            if l.startswith("buffer_") and n == per:
                out.append(cur); cur, n = [], 0
            cur.append(l)
            if l.startswith("buffer_"): n += 1
        out.append(cur)
        return out
    m = qk_mfmas(0)
    g = {}
    for grp in range(8):
        for i in range(4):
            k = 4 * (grp + 2) + i
            g.setdefault(grp * 8 + 2 * i, []).append(rd(k, V_AV if k < 32 else V_AK))
    c1 = chunks([l for l in B1.lines if l != "s_nop 0"], 1)
    c1[0].insert(1, "s_nop 0")
    assert len(c1) == 24
    for k, c in enumerate(c1): g.setdefault(2 * k + 1, []).extend(c)
    g[47].extend(["s_waitcnt vmcnt(24)", "s_barrier"])
    c2 = chunks(B2.lines, 2)
    assert len(c2) == 8
    for k, c in enumerate(c2): g.setdefault(49 + 2 * k, []).extend(c)
    for grp in range(8): g.setdefault(grp * 8 + 7, []).append("s_waitcnt lgkmcnt(4)")
    A("s_waitcnt lgkmcnt(4)")
    interleave(A, m, g)
    A("s_nop 7")
    for qb in range(2): rowmax(A, 0, qb, V_MC + qb, V_T)
    sm_plain(A, 0, 0, split=True)
    A(f"s_mov_b32 s{S_CUR}, 32768", f"s_mov_b32 m0, s{S_W8192}")
    A("s_waitcnt vmcnt(32)", "s_barrier")
    stamp(A, 2)
    A(f"s_bitcmp1_b32 s{S_EVB}, 0", "s_cbranch_scc1 L_k2_evb0")
    A(".p2align 6")
    for par in range(2):
        A.label(f"L_k2_a{par}")
        if DIAG2 and par == 0 and asmlib.STAMPS:
            for k, u in ((2, 2), (3, 6), (4, 14)):
                A(f"s_cmp_eq_u32 s{S_T}, {u}", f"s_cbranch_scc0 L_k2_ns{k}"); _stamp0(A, k); A.label(f"L_k2_ns{k}")
        phase(A, "A", par)
        A(f"s_cbranch_scc1 L_k2_eva{par}")
        A(f"s_cbranch_vccnz L_k2_slow{par}")
        A.label(f"L_k2_b{par}")
        phase(A, "B", par)
        if par == 0: A("s_cbranch_scc1 L_k2_evb1")
        else: A("s_cbranch_scc0 L_k2_a0")
    A.label("L_k2_evb0")
    A(f"s_cmp_eq_u32 s{S_T}, {NT-1}", "s_cbranch_scc1 L_k2_tail")
    A(f"s_cmp_eq_u32 s{S_T}, 0", "s_cbranch_scc0 L_k2_qcopy", "s_waitcnt vmcnt(0)")
    A.label("L_k2_qcopy")
    for i in range(64): A(f"v_accvgpr_mov_b32 a{QA+i}, a{PA+i}")
    A("s_nop 1", "s_branch L_k2_a0")
    A.label("L_k2_evb1")
    A(f"s_cmp_eq_u32 s{S_T}, s{S_T1N}", "s_cbranch_scc1 L_k2_ostore")
    A(f"s_cmp_eq_u32 s{S_T}, s{S_POLLT}", "s_cbranch_scc0 L_k2_a1")
    poll_and_fetch(A, "L")
    A("s_branch L_k2_a1")
    A.label("L_k2_ostore")
    A("s_nop 4")
    for i in range(16):
        qb, dp = i >> 3, i & 7
        if i % 4 == 0: A(f"s_add_u32 s{S_T0}, s{S_PART}, {i*1024}")
        x, y = O(2 * dp, qb), O(2 * dp + 1, qb)
        pack_pair(A, x, y)
        A(f"buffer_store_dwordx4 {vr(x,4)}, v{V_L16}, {sr(SRD_WS,4)}, s{S_T0} offen offset:{(i%4)*1024} sc0 sc1")
        for r in range(4): A(f"v_mov_b32 v{y+r}, 0")
        for r in range(4): A(f"v_mov_b32 v{x+r}, 0")
    A(f"s_add_u32 s{S_T0}, s{S_PART}, {16*1024}")
    A(f"buffer_store_dwordx4 {vr(V_SV,4)}, v{V_L16}, {sr(SRD_WS,4)}, s{S_T0} offen sc0 sc1")
    A(f"s_mov_b32 s{S_QB}, s{S_PAIR}", "s_branch L_k2_a1")
    for par in range(2):
        A.label(f"L_k2_eva{par}")
        A(f"s_cbranch_vccnz L_k2_eslow{par}")
        A.label(f"L_k2_eslowback{par}")
        A(f"s_cmp_lt_u32 s{S_T}, {NT-3}", f"s_cbranch_scc1 L_k2_nomask{par}")
        mask(A, 1 - par, 1)
        A.label(f"L_k2_nomask{par}")
        if par == 0:
            A(f"s_cmp_eq_u32 s{S_T}, s{S_X}", "s_cbranch_scc0 L_k2_b0", "s_nop 4")
            for qb in range(2):
                A(f"v_mov_b32 v{V_SV+qb}, v{V_MC+qb}", f"v_add_f32 v{V_SV+2+qb}, v{V_L+qb}, v{TS(0,qb)}",
                  f"v_mov_b32 v{V_L+qb}, 0", f"v_mov_b32 v{TS(0,qb)}, 0")
                rowmax(A, 1, qb, V_MC + qb, V_T)
            A("s_branch L_k2_b0")
        else:
            A(f"s_cmp_eq_u32 s{S_T}, s{S_T1N}", "s_cbranch_scc0 L_k2_b1")
            A("s_waitcnt vmcnt(8)", "s_barrier")
            A(f"s_cmp_eq_u32 s{S_W}, 0", "s_cbranch_scc0 L_k2_b1")
            A(f"v_mov_b32 v{V_T}, 1", f"v_mov_b32 v{V_T+1}, 0", "s_mov_b64 exec, 1",
              f"buffer_store_short v{V_T}, v{V_T+1}, {sr(SRD_DBG,4)}, s{S_FLAG} offen sc0 sc1",
              "s_mov_b64 exec, -1", "s_nop 4", "s_branch L_k2_b1")
    A.label("L_k2_tail")
    A(f"s_add_u32 s{S_NXT}, s{S_CUR}, 32768", f"s_cmp_eq_u32 s{S_NXT}, {NSLOT*32768}", f"s_cselect_b32 s{S_NXT}, 0, s{S_NXT}",
      f"v_add_u32 v{V_AV}, s{S_NXT}, v{V_L16}", "s_waitcnt lgkmcnt(0)")
    for k in range(8): A(rd(k, V_AV))
    sm_plain(A, 0, 1, split=True)
    A(f"s_cmp_eq_u32 s{S_POLLT}, {NT-1}", "s_cbranch_scc0 L_k2_nopoll")
    poll_and_fetch(A, "T")
    A.label("L_k2_nopoll")
    check(A, 0, "")
    A("s_nop 1", "s_cbranch_vccnz L_k2_tslow")
    A.label("L_k2_tslowback")
    A("s_waitcnt lgkmcnt(4)")
    phase(A, "B", 0, sm=False, dmas=False, look=False)
    stamp(A, 3)
    final_store(A)
    def scale_store(scale):
        for qb in range(2):
            for dp in range(8):
                if dp % 4 == 0: A(f"s_add_u32 s{S_T1}, s{S_T0}, {qb*asmlib.AFS*1024 + dp*1024}")
                x, y = O(2 * dp, qb), O(2 * dp + 1, qb)
                scale(qb, dp)
                pack_pair(A, x, y)
                A(f"buffer_store_dwordx4 {vr(x,4)}, v{V_L16}, {sr(SRD_WS,4)}, s{S_T1} offen offset:{(dp%4)*1024}{FINAL_SC}")
    A(f"s_cmp_eq_u32 s{S_MODE}, 0", "s_cbranch_scc1 L_k2_epi_comb")
    for qb in range(2):
        xsum(A, V_L + qb, V_T)
        A(f"v_rcp_f32 v{V_L+qb}, v{V_L+qb}")
    A("s_nop 0")
    def sc_plain(qb, dp):
        for db in (2 * dp, 2 * dp + 1):
            for r in range(4): A(f"v_mul_f32 v{O(db,qb,r)}, v{O(db,qb,r)}, v{V_L+qb}")
    scale_store(sc_plain)
    stamp(A, 4)
    fin(A)
    A("s_endpgm")
    A.label("L_k2_epi_comb")
    A("s_waitcnt vmcnt(0)")
    stamp(A, 4)
    WA_, WB_ = V_X, V_X + 2
    for qb in range(2):
        A(f"v_max_f32 v{V_T}, v{V_MC+qb}, v{V_SV+qb}",
          f"v_sub_f32 v{WA_+qb}, v{V_MC+qb}, v{V_T}", f"v_sub_f32 v{WB_+qb}, v{V_SV+qb}, v{V_T}",
          f"v_exp_f32 v{WA_+qb}, v{WA_+qb}", f"v_exp_f32 v{WB_+qb}, v{WB_+qb}", "s_nop 0",
          f"v_mul_f32 v{V_L+qb}, v{V_L+qb}, v{WA_+qb}", f"v_fma_f32 v{V_L+qb}, v{V_SV+2+qb}, v{WB_+qb}, v{V_L+qb}")
        xsum(A, V_L + qb, V_T)
        A(f"v_rcp_f32 v{V_L+qb}, v{V_L+qb}", "s_nop 0",
          f"v_mul_f32 v{WA_+qb}, v{WA_+qb}, v{V_L+qb}", f"v_mul_f32 v{WB_+qb}, v{WB_+qb}, v{V_L+qb}")
    A(f"s_mov_b32 s{S_T2}, 0xffff0000")
    def sc_comb(qb, dp):
        i = qb * 8 + dp
        t = S0 + (i & 1) * 8
        regs = [O(2 * dp, qb, r) for r in range(4)] + [O(2 * dp + 1, qb, r) for r in range(4)]
        for d in range(4): A(f"v_accvgpr_read_b32 v{t+2*d+1}, a{PA + 4*i + d}")
        for r in regs: A(f"v_mul_f32 v{r}, v{r}, v{WA_+qb}")
        for d in range(4):
            A(f"v_lshlrev_b32 v{t+2*d}, 16, v{t+2*d+1}", f"v_and_b32 v{t+2*d+1}, s{S_T2}, v{t+2*d+1}")
        for k, r in enumerate(regs): A(f"v_fma_f32 v{r}, v{t+k}, v{WB_+qb}, v{r}")
    scale_store(sc_comb)
    fin(A)
    A("s_endpgm")
    for par in range(2):
        slow(A, par, f"L_k2_slow{par}", f"L_k2_b{par}")
        slow(A, par, f"L_k2_eslow{par}", f"L_k2_eslowback{par}")
    slow(A, 0, "L_k2_tslow", "L_k2_tslowback")
    A.label("L_k2_end")
    A("s_endpgm")

def fin(A):
    if not asmlib.STAMPS: return
    stamp(A, 5)
    A("s_waitcnt vmcnt(0)")
    stamp(A, 6); stamp_rt(A, 8)
    stamp_flush(A, SRD_WS, S_W, 1)

def desc_k2(A, name="k2_kernel"):
    kernel_desc(A, name, 256 + 192, 256)
```

```python
from asmlib import *
import asmlib

SRD_WS, SRD_OUT = 12, 24
S_W, S_QB, S_CT, S_J, S_ASO, S_WSO, S_WSO3, S_M0, S_T0, S_T1, S_RED, S_FL, S_T2 = 16, 61, 62, 63, 64, 65, 66, 67, 68, 69, 70, 71, 72
V_L16, V_AO, V_T, V_G, V_RD = 1, 2, 4, 8, 10
V_PH, V_PC, V_PI, V_PD = 13, 14, 15, 16
VGAPS = [1, 4, 8, 11, 15, 18, 22, 25]
WGAP = 27
PF = 0
D = 4
NH, NC = 7, 16
NS = NH + NC
ACC_A, ACC_B = 32, 96
WF_R, AF_R = 0, 112
def nslot(): return D + 1
WF_CT = KSTEPS3 * 7 * 1024

def areg(s, k, rb): return AF_R + (s % (D + 1)) * 16 + (k * 2 + rb) * 4
def wreg(s, k, cb): return WF_R + (s & 1) * 56 + (k * 7 + cb) * 4
def acc(s, cb, rb): return (ACC_B if s < NH else ACC_A) + (rb * 7 + cb) * 4
def kbase(s):
    return 2 * s if s < NH else 2 * (s - NH)

def switch_ctx():
    return [f"s_mul_i32 s{S_T0}, s{S_J}, 18", f"s_sub_u32 s{S_T0}, 128, s{S_T0}"]

def w_loads(s):
    kb = kbase(s)
    pre = [f"s_add_u32 m0, s{S_M0}, {(s % nslot()) * 16384}",
           f"s_add_u32 s{S_T0}, s{S_WSO + (0 if s < NH else 10)}, {kb * 7168}",
           f"s_add_u32 s{S_T1}, s{S_T0}, s{S_WSO3}"]
    L = [f"buffer_load_dwordx4 v{V_L16}, {sr(SRD_WS,4)}, s{S_T0} offen offset:{j*1024} lds" for j in range(3)]
    L.append(f"buffer_load_dwordx4 v{V_L16}, {sr(SRD_WS,4)}, s{S_T1} offen offset:3072 lds")
    return pre, L
def a_loads(s):
    kb = kbase(s)
    pre = [f"s_add_u32 s{S_T2}, s{S_ASO + (0 if s < NH else 10)}, {kb * 1024}"]
    L = [f"buffer_load_dwordx4 {ar(areg(s,k,rb),4)}, v{V_AO+rb}, {sr(SRD_WS,4)}, s{S_T2} offen offset:{k*1024}"
         for k in range(2) for rb in range(2)]
    return pre, L
def fpos(f):
    if f < 8: return f * 1024
    if f < 11: return 8192 + (f - 8) * 1024
    return 12288 + (f - 11) * 1024
def reads(s):
    o = (s % nslot()) * 16384
    v = V_RD + o // 49152
    o = o % 49152
    return [f"ds_read_b128 {ar(wreg(s,k,cb),4)}, v{v} offset:{o + fpos(k*7+cb)}" for k in range(2) for cb in range(7)]

def setup(A):
    A(f"s_and_b32 s{S_T0}, s2, 7", f"s_lshr_b32 s{S_J}, s{S_T0}, 1", f"s_and_b32 s{S_T0}, s{S_T0}, 1",
      f"s_lshl_b32 s{S_QB}, s{S_T0}, 3", f"s_lshr_b32 s{S_T1}, s2, 5", f"s_add_u32 s{S_QB}, s{S_QB}, s{S_T1}",
      f"s_lshr_b32 s{S_CT}, s2, 3", f"s_and_b32 s{S_CT}, s{S_CT}, 3")
    A(f"v_mov_b32 v{V_AO}, v{V_L16}", f"v_add_u32 v{V_AO+1}, {asmlib.AFS*1024}, v{V_L16}",
      f"v_mov_b32 v{V_RD}, v{V_L16}", f"v_add_u32 v{V_RD+1}, 49152, v{V_L16}", f"v_add_u32 v{V_RD+2}, 98304, v{V_L16}")
    A(f"s_lshl_b32 s{S_T0}, s{S_QB}, 2", f"s_add_u32 s{S_T0}, s{S_T0}, s{S_W}", f"s_mul_i32 s{S_T0}, s{S_T0}, {2*asmlib.AFS*1024}",
      f"s_add_u32 s{S_T0}, s{S_T0}, {AF_OFF}",
      f"s_mul_i32 s{S_T1}, s{S_J}, {14*1024}", f"s_add_u32 s{S_ASO}, s{S_T0}, s{S_T1}", f"s_add_u32 s{S_ASO}, s{S_ASO}, {128*1024}",
      f"s_lshl_b32 s{S_T1}, s{S_J}, 15", f"s_add_u32 s{S_ASO+10}, s{S_T0}, s{S_T1}")
    A(f"s_mul_i32 s{S_T0}, s{S_CT}, {WF_CT}", f"s_lshl_b32 s{S_T1}, s{S_W}, 12", f"s_add_u32 s{S_T0}, s{S_T0}, s{S_T1}",
      f"s_cmp_eq_u32 s{S_W}, 3", f"s_cselect_b32 s{S_T1}, 1024, 0", f"s_sub_u32 s{S_T0}, s{S_T0}, s{S_T1}",
      f"s_add_u32 s{S_T0}, s{S_T0}, {WF_OFF}",
      f"s_mul_i32 s{S_T1}, s{S_J}, {14*7168}", f"s_add_u32 s{S_WSO}, s{S_T0}, s{S_T1}", f"s_add_u32 s{S_WSO}, s{S_WSO}, {128*7168}",
      f"s_mul_i32 s{S_T1}, s{S_J}, {32*7168}", f"s_add_u32 s{S_WSO+10}, s{S_T0}, s{S_T1}",
      f"s_cmp_ge_u32 s{S_W}, 2", f"s_cselect_b32 s{S_WSO3}, 0x40000000, 0",
      f"s_lshl_b32 s{S_M0}, s{S_W}, 12")

def touch_setup(A):
    t0, t1 = V_T, V_T + 1
    A(f"s_lshr_b32 s{S_T0}, s{S_CT}, 1", f"s_mul_i32 s{S_T0}, s{S_T0}, {asmlib.AFS*1024}", f"s_and_b32 s{S_T1}, s{S_CT}, 1",
      f"s_lshl_b32 s{S_T1}, s{S_T1}, 10", f"s_add_u32 s{S_T0}, s{S_T0}, s{S_T1}",
      f"v_lshlrev_b32 v{t0}, 7, v0", f"v_add_u32 v{t0}, s{S_T0}, v{t0}",
      f"v_add_u32 v{V_PH}, s{S_ASO}, v{t0}", f"v_add_u32 v{V_PC}, s{S_ASO+10}, v{t0}")
    A(f"s_and_b32 s{S_T0}, s{S_QB}, 7", f"s_lshl_b32 s{S_T0}, s{S_T0}, 9", f"s_sub_u32 s{S_T0}, s{S_T0}, 1024",
      f"v_lshlrev_b32 v{t0}, 7, v0", f"v_add_u32 v{t0}, s{S_T0}, v{t0}",
      f"v_add_u32 v{t1}, s{S_WSO}, v{t0}", f"v_cmp_gt_u32 vcc, 8, v0", f"v_add_u32 v{t0}, s{S_WSO+10}, v{t0}",
      f"v_mov_b32 v{V_PI}, 2048", f"v_mov_b32 v{V_PD}, 14336",
      f"v_cndmask_b32 v{V_PH}, v{t1}, v{V_PH}, vcc", f"v_cndmask_b32 v{V_PC}, v{t0}, v{V_PC}, vcc",
      f"v_cndmask_b32 v{V_PI}, v{V_PD}, v{V_PI}, vcc",
      f"v_cmp_gt_u32 vcc, 12, v0", f"v_mov_b32 v{t0}, 0x80000000", "s_nop 0",
      f"v_cndmask_b32 v{V_PH}, v{t0}, v{V_PH}, vcc", f"v_cndmask_b32 v{V_PC}, v{t0}, v{V_PC}, vcc")
    for _ in range(D): A(f"v_add_u32 v{V_PH}, v{V_PI}, v{V_PH}")
def touch(s):
    v = V_PH if s < NH else V_PC
    return [f"buffer_load_dword v{V_PD}, v{v}, {sr(SRD_WS,4)}, 0 offen", f"v_add_u32 v{v}, v{V_PI}, v{v}"]

def body(A):
    order = []
    for s in range(D):
        for f in (w_loads, a_loads):
            pre, L = f(s); A(pre, L); order += [s] * 4
    if PF:
        touch_setup(A)
        for s in range(D, D + PF): A(touch(s)); order.append(-1)
    A(f"v_and_b32 v{V_T}, 15, v0", f"v_lshlrev_b32 v{V_T}, 2, v{V_T}",
      f"s_lshl_b32 s{S_T0}, s{S_QB}, 2", f"s_add_u32 s{S_T0}, s{S_T0}, s{S_W}", f"s_lshl_b32 s{S_T0}, s{S_T0}, 7",
      f"s_add_u32 s{S_T0}, s{S_T0}, {G_OFF}")
    for rb in range(2):
        A(f"buffer_load_dword v{V_G+rb}, v{V_T}, {sr(SRD_WS,4)}, s{S_T0} offen offset:{rb*64}"); order.append(-1)
    def wait_for(s):
        last = max(i for i, o in enumerate(order) if o == s)
        return len(order) - 1 - last
    A(f"s_waitcnt vmcnt({wait_for(0)})", "s_barrier")
    stamp(A, 1)
    A(reads(0))
    A(f"s_waitcnt vmcnt({wait_for(1)})", "s_barrier")
    for s in range(NS):
        g = {}
        def put(k, *ins): g.setdefault(k, []).extend(ins)
        A("s_waitcnt lgkmcnt(0)")
        vg = VGAPS
        if s + 1 < NS:
            rg = [k for k in range(28) if k not in vg][:14]
            for k, r in zip(rg, reads(s + 1)): put(k, r)
        wpos = WGAP
        nbefore = 0
        if s + D < NS:
            pw, Lw = w_loads(s + D); pa, La = a_loads(s + D)
            A(pa, pw)
            for k, x in zip(vg, La + Lw): put(k, x)
            nbefore = sum(1 for k in vg if k > wpos)
            order += [s + D] * 8
        if PF and s + D + PF < NS:
            t = touch(s + D + PF); put(27, t[0], t[1]); order.append(-1); nbefore += 1
        if s + 2 < NS:
            put(wpos, f"s_waitcnt vmcnt({wait_for(s + 2) - nbefore})"); put(wpos, "s_barrier")
        m = []
        for k in range(2):
            for cb in range(7):
                for rb in range(2):
                    c = "0" if (s in (0, NH) and k == 0) else vr(acc(s, cb, rb), 4)
                    m.append(f"v_mfma_f32_16x16x32_bf16 {vr(acc(s,cb,rb),4)}, {ar(wreg(s,k,cb),4)}, {ar(areg(s,k,rb),4)}, {c}")
        interleave(A, m, g)
    stamp(A, 2)
    A(f"s_lshl_b32 s{S_T0}, s{S_QB}, 2", f"s_add_u32 s{S_T0}, s{S_T0}, s{S_CT}",
      f"s_lshl_b32 s{S_FL}, s{S_T0}, 7", f"s_add_u32 s{S_FL}, s{S_FL}, {FL_OFF}",
      f"s_lshl_b32 s{S_T0}, s{S_T0}, 4", f"s_add_u32 s{S_T0}, s{S_T0}, s{S_W}", f"s_mul_i32 s{S_RED}, s{S_T0}, 14336",
      f"s_add_u32 s{S_RED}, s{S_RED}, {RED_OFF}",
      f"s_mul_i32 s{S_T0}, s{S_J}, {4*14336}", f"s_add_u32 s{S_T0}, s{S_T0}, s{S_RED}")
    for b in range(14):
        rb = b // 7
        a, bb = ACC_A + 4 * b, ACC_B + 4 * b
        if b % 4 == 0 and b: A(f"s_add_u32 s{S_T0}, s{S_T0}, 4096")
        for r in range(4): A(f"v_sub_f32 v{a+r}, v{a+r}, v{bb+r}")
        for r in range(4): A(f"v_fma_f32 v{a+r}, v{a+r}, v{V_G+rb}, v{bb+r}")
        A(f"buffer_store_dwordx4 {vr(a,4)}, v{V_L16}, {sr(SRD_WS,4)}, s{S_T0} offen offset:{(b%4)*1024} sc0 sc1")
    A(f"v_mov_b32 v{V_T}, 1", f"v_lshlrev_b32 v{V_T+1}, 2, v0", f"s_lshl_b32 s{S_T0}, s{S_J}, 2", f"s_add_u32 s{S_T0}, s{S_T0}, s{S_FL}")
    A("s_waitcnt vmcnt(0)", "s_barrier")
    stamp(A, 3)
    A(f"s_cmp_eq_u32 s{S_W}, 0", "s_cbranch_scc0 L_k3_nosig", "s_mov_b64 exec, 1",
      f"buffer_store_dword v{V_T}, v{V_T+1}, {sr(SRD_WS,4)}, s{S_T0} offen sc0 sc1", "s_mov_b64 exec, -1")
    A.label("L_k3_nosig")
    A(f"v_and_b32 v{V_T+2}, 15, v0", f"v_mul_u32_u24 v{V_T+2}, 896, v{V_T+2}", f"v_lshrrev_b32 v{V_T+3}, 4, v0",
      f"v_lshl_add_u32 v{V_T+2}, v{V_T+3}, 3, v{V_T+2}",
      f"s_lshl_b32 s{S_T0}, s{S_QB}, 2", f"s_add_u32 s{S_T0}, s{S_T0}, s{S_W}", f"s_mul_i32 s{S_ASO}, s{S_T0}, {32*896}",
      f"s_mul_i32 s{S_T0}, s{S_CT}, 224", f"s_add_u32 s{S_ASO}, s{S_ASO}, s{S_T0}",
      f"s_lshl_b32 s{S_T0}, s{S_J}, 10", f"s_add_u32 s{S_RED}, s{S_RED}, s{S_T0}",
      f"s_mov_b32 s{S_T1}, 0", "s_mov_b64 exec, 15")
    A.label("L_k3_poll")
    A(f"buffer_load_dword v{V_T}, v{V_T+1}, {sr(SRD_WS,4)}, s{S_FL} offen sc0 sc1", "s_waitcnt vmcnt(0)",
      f"v_cmp_ne_u32 vcc, 1, v{V_T}", "s_nop 4", "s_cbranch_vccz L_k3_got",
      f"s_add_u32 s{S_T1}, s{S_T1}, 1", f"s_cmp_lt_u32 s{S_T1}, 0x40000", "s_sleep 2", "s_cbranch_scc1 L_k3_poll")
    A.label("L_k3_got")
    A("s_mov_b64 exec, -1")
    stamp(A, 4)
    R0 = ACC_A
    for i in range(4):
        for jj in range(4):
            A(f"s_add_u32 s{S_T0}, s{S_RED}, {jj*4*14336 + i*4096}",
              f"buffer_load_dwordx4 {vr(R0 + (i*4+jj)*4, 4)}, v{V_L16}, {sr(SRD_WS,4)}, s{S_T0} offen sc0 sc1")
    for i in range(4):
        b = R0 + i * 16
        A(f"s_add_u32 s{S_T0}, s{S_J}, {4*i}", f"s_lshl_b32 s{S_T1}, s{S_T0}, 5",
          f"s_cmp_ge_u32 s{S_T0}, 7", f"s_cselect_b32 s{S_T2}, {16*896 - 7*32}, 0", f"s_add_u32 s{S_T1}, s{S_T1}, s{S_T2}",
          f"s_cmp_ge_u32 s{S_T0}, 14", f"s_cselect_b32 s{S_T2}, 0x40000000, 0", f"s_add_u32 s{S_T1}, s{S_T1}, s{S_T2}",
          f"s_add_u32 s{S_T1}, s{S_T1}, s{S_ASO}")
        A(f"s_waitcnt vmcnt({12 - 4*i + i})")
        for r in range(4): A(f"v_add_f32 v{b+r}, v{b+r}, v{b+4+r}")
        for r in range(4): A(f"v_add_f32 v{b+8+r}, v{b+8+r}, v{b+12+r}")
        for r in range(4): A(f"v_add_f32 v{b+r}, v{b+r}, v{b+8+r}")
        A(f"v_cvt_pk_bf16_f32 v{b}, v{b}, v{b+1}", f"v_cvt_pk_bf16_f32 v{b+1}, v{b+2}, v{b+3}",
          f"buffer_store_dwordx2 {vr(b,2)}, v{V_T+2}, {sr(SRD_OUT,4)}, s{S_T1} offen")

def gen_k3(A, name="k3_kernel"):
    kernel_begin(A, name)
    A("s_cmp_ge_u32 s2, 256", "s_cbranch_scc1 L_k3_end")
    A("s_load_dwordx2 s[54:55], s[0:1], 88", "s_load_dwordx2 s[58:59], s[0:1], 104")
    stamp_rt(A, 7); stamp(A, 0)
    A(f"v_lshrrev_b32 v{V_T}, 6, v0", "v_and_b32 v0, 63, v0", f"v_readfirstlane_b32 s{S_W}, v{V_T}",
      f"v_lshlrev_b32 v{V_L16}, 4, v0")
    setup(A)
    A("s_waitcnt lgkmcnt(0)")
    for srd, p, sz in ((SRD_WS, P_WS, WS_BYTES), (SRD_OUT, P_OUT, 2048*448*2)):
        A(f"s_mov_b32 s{srd}, s{p}", f"s_mov_b32 s{srd+1}, s{p+1}", f"s_mov_b32 s{srd+2}, {sz}", f"s_mov_b32 s{srd+3}, 0x20000")
    body(A)
    if asmlib.STAMPS:
        stamp(A, 5)
        A("s_waitcnt vmcnt(0)")
        stamp(A, 6); stamp_rt(A, 8)
        stamp_flush(A, SRD_WS, S_W, 2)
    A.label("L_k3_end")
    A("s_endpgm")

LDS_K3 = 131072
GRID_K3 = 256
def desc_k3(A, name="k3_kernel"):
    kernel_desc(A, name, 256 + 112 + 16 * (D + 1), 256)
```

```python
import sys
sys.path.insert(0, "dev")
from asmlib import *
import k1, k2, k3
HDR = open("gated_mix__compressed_kv_cla__glu_gated_glu__prompt.s.ref").read().split("; Override launch")[0]
def build(which=("k1",)):
    A = Asm()
    A(HDR.rstrip())
    if "k1" in which: A("; @launch kernel=k1_kernel grid=(256,1,1) block=(256,1,1) lds=163840")
    if "k2" in which: A("; @launch kernel=k2_kernel grid=(256,1,1) block=(256,1,1) lds=163840")
    if "k3" in which: A(f"; @launch kernel=k3_kernel grid=({k3.GRID_K3},1,1) block=(256,1,1) lds={k3.LDS_K3}")
    A('.amdgcn_target "amdgcn-amd-amdhsa--gfx950"')
    if "k1" in which: k1.gen_k1(A)
    if "k2" in which: k2.gen_k2(A)
    if "k3" in which: k3.gen_k3(A)
    if "k1" in which: k1.desc_k1(A)
    if "k3" in which: k3.desc_k3(A)
    if "k2" in which: k2.desc_k2(A)
    return A.text()
if __name__ == "__main__":
    out = sys.argv[1]
    args = sys.argv[2:]
    import asmlib
    if "stamps" in args: asmlib.STAMPS = True
    for a in args:
        if "=" in a:
            k, v = a.split("=")
            mod, var = k.split(".")
            setattr(sys.modules[mod], var, eval(v))
    open(out, "w").write(build(tuple(args) or ("k1",)))
```

```python
class Asm:
    def __init__(self):
        self.lines = []
    def __call__(self, *ss):
        for s in ss:
            if isinstance(s, (list, tuple)):
                self(*s)
            else:
                self.lines.append(s)
    def label(self, n): self.lines.append(f"{n}:")
    def text(self): return "\n".join(self.lines) + "\n"

def vr(b, n=1, f="v"):
    return f"{f}{b}" if n == 1 else f"{f}[{b}:{b+n-1}]"
def ar(b, n=1): return vr(b, n, "a")
def sr(b, n=1): return vr(b, n, "s")

def kernel_begin(A, name):
    A(".text", f".globl {name}", ".p2align 8", f".type {name},@function", f"{name}:")

def kernel_desc(A, name, vgpr, accum, sgpr=102):
    A('.section .rodata,"a"', ".p2align 6", f".amdhsa_kernel {name}",
      f"  .amdhsa_next_free_vgpr {vgpr}", f"  .amdhsa_next_free_sgpr {sgpr}",
      f"  .amdhsa_accum_offset {accum}", "  .amdhsa_group_segment_fixed_size 0",
      "  .amdhsa_kernarg_size 112", "  .amdhsa_user_sgpr_count 2",
      "  .amdhsa_user_sgpr_kernarg_segment_ptr 1", "  .amdhsa_system_sgpr_workgroup_id_x 1",
      ".end_amdhsa_kernel")

MB = 1 << 20
QF_OFF = 0
KF_OFF = 16 * MB
VF_OFF = 32 * MB
AF_OFF = 48 * MB
WF_OFF = 72 * MB
PART_OFF = 80 * MB
RED_OFF = 90 * MB
G_OFF = 79 * MB
FL_OFF = 79 * MB + 65536
MISC_OFF = 108 * MB
WS_BYTES = 268435456
KSTEPS3 = 184
AFS = 184

P_X, P_CKV, P_WQ, P_WUK, P_WUV, P_WO, P_BX, P_WG = 32, 34, 36, 38, 40, 42, 44, 46
P_WU, P_WD, P_GW, P_OUT = 48, 50, 52, 54
P_DBG, P_WS = 56, 58
def load_kernargs(A):
    A("s_load_dwordx16 s[32:47], s[0:1], 0",
      "s_load_dwordx8 s[48:55], s[0:1], 64",
      "s_load_dwordx4 s[56:59], s[0:1], 96")

def interleave(A, mfmas, gaps):
    for i, m in enumerate(mfmas):
        A(m)
        for x in gaps.get(i, []):
            A(x)

STAMPS = False
STAMP_S = 84
def stamp(A, k):
    if _st(): A(f"s_memtime s[{STAMP_S+2*k}:{STAMP_S+2*k+1}]")
def stamp_rt(A, k):
    if _st(): A(f"s_memrealtime s[{STAMP_S+2*k}:{STAMP_S+2*k+1}]")
def stamp_flush(A, srd_ws, s_wave, region, n=9, vt=32):
    if not _st(): return
    A("s_waitcnt lgkmcnt(0) vmcnt(0)")
    A(f"s_lshl_b32 s2, s2, 3", f"s_add_u32 s2, s2, s{s_wave}", "s_lshl_b32 s2, s2, 6",
      f"s_add_u32 s2, s2, {MISC_OFF + region*262144}")
    A(f"v_mov_b32 v{vt+1}, 0")
    for k in range(n):
        A(f"v_mov_b32 v{vt}, s{STAMP_S+2*k}", f"buffer_store_dword v{vt}, v{vt+1}, {sr(srd_ws,4)}, s2 offen offset:{4*k}", "s_nop 0")
def _st():
    import asmlib
    return asmlib.STAMPS

F_KV, F_J2, F_PART, F_CTX, F_RED, F_AUX = 0, 1, 2, 3, 4, 5
SPIN_MAX = 0x40000
ACQ = False
_lbl = [0]
def signal(A, srd_ws, s_wave, idx, vt, st):
    _lbl[0] += 1
    l = f"L_sig{_lbl[0]}"
    A(f"s_cmp_eq_u32 s{s_wave}, 0", f"s_cbranch_scc0 {l}",
      f"s_lshl_b32 s{st}, s2, 8", f"s_add_u32 s{st}, s{st}, {FL_OFF + 4*idx}",
      f"v_mov_b32 v{vt}, 1", f"v_mov_b32 v{vt+1}, 0", "s_mov_b64 exec, 1",
      f"buffer_store_dword v{vt}, v{vt+1}, {sr(srd_ws,4)}, s{st} offen sc0 sc1", "s_mov_b64 exec, -1", f"{l}:")
def poll(A, loads, st, sleep=4, wave0=None, pre=None):
    _lbl[0] += 1
    l = f"L_poll{_lbl[0]}"
    if wave0 is not None: A(f"s_cmp_eq_u32 s{wave0}, 0", f"s_cbranch_scc0 {l}_ok")
    if pre: pre(A)
    A(f"s_mov_b32 s{st}, 0", f"{l}:")
    for ins, v, want in loads: A(ins)
    A("s_waitcnt vmcnt(0)")
    for k, (ins, v, want) in enumerate(loads):
        A(f"v_cmp_ne_u32 vcc, {want}, v{v}", "s_nop 4", f"s_cbranch_vccnz {l}_r")
    A(f"s_branch {l}_ok", f"{l}_r:", f"s_add_u32 s{st}, s{st}, 1", f"s_cmp_lt_u32 s{st}, {SPIN_MAX}", f"s_sleep {sleep}",
      f"s_cbranch_scc1 {l}", f"{l}_ok:")
    if wave0 is not None: A("s_barrier")
    import asmlib
    if asmlib.ACQ: A("buffer_inv sc1")
```

```python
from asmlib import *
import asmlib, k1, k2, k3

SIG_STEP = 10
DIAG = 0
S_HD, S_WLD, S_E0, S_E1 = 33, 34, 32, 35
def dstamp(A, k):
    if DIAG == 1: stamp(A, k)
def gen_f12(A, name="f_kernel"):
    k1.SMAP = {0: 0, 2: 1, 4: 2}
    if DIAG == 1: k1.SMAP = {0: 0, 4: 1}; k2.SMAP = {2: 5}
    elif DIAG == 2: k1.SMAP = {}; k2.SMAP = {}; k3.SMAP = {2: 1, 3: 2, 4: 3, 5: 4, 6: 5}
    else: k2.SMAP = {2: 3, 3: 4}
    kernel_begin(A, name)
    A("s_cmp_ge_u32 s2, 256", "s_cbranch_scc1 L_f_end")
    def kvsig(A): signal(A, k1.SRD_WS, k1.S_W, F_KV, 23, k1.S_T1)
    reloc = [f"s_mov_b32 s{S_HD}, s{k1.S_DST2}", f"s_mov_b32 s{S_WLD}, s{k1.S_SOA1}", f"s_mov_b32 s37, s{k1.S_WN}", f"s_mov_b32 s38, s{k1.S_WM}"]
    def j2hook(g, ex, order):
        k1.wl_hook(g, ex, order)
        if g == CT_STEP:
            L = k1.code_touch_ops(k1.S_PF, k1.S_T1, k1.V_T, k1.V_PFD)
            for k, gp in enumerate((8, 12, 14, 18, 20)): ex.setdefault(gp, []).extend(L[2 * k:2 * k + 2])
            ex.setdefault(50, []).append(L[10])
        if g == 12:
            for k, x in enumerate(k2.kv_addr() + reloc): ex.setdefault(8 + 2 * k, []).append(x)
            ex["vm"] = 0
        if g == 13:
            for k, r in enumerate(k1.wl_reads()): ex.setdefault(1 + 2 * k, []).append(r)
            B = Asm(); k2.k2_setup1(B)
            L = B.lines
            for k in range(0, len(L), 2): ex.setdefault(min(2 + k, 60), []).extend(L[k:k + 2])
            ex.setdefault(KV_GAP, []).append(k2.kv_issue())
            ex["vm"] = 0
    def with_regs(f, *a, **kw):
        sv = k1.S_T0, k1.S_LOG2E
        k1.S_T0, k1.S_LOG2E = S_E0, S_E1
        f(*a, **kw)
        k1.S_T0, k1.S_LOG2E = sv
    def k3_early(A):
        k3.setup(A)
        A(k1.code_touch_ops(k1.S_PF + 4 * 0 + 32, k3.S_T0, k2.V_T, 31))
    k2.DEFER = {2: lambda A: k1.wl_stores(A, k2.V_L16, S_WLD),
                4: lambda A: k1.h_stores(A, k2.V_L16, S_HD, k2.S_T0, 0, 4),
                6: lambda A: k1.h_stores(A, k2.V_L16, S_HD, k2.S_T0, 4, 8),
                8: lambda A: signal(A, k2.SRD_WS, k2.S_W, F_AUX, k2.V_T, k2.S_T0),
                12: k3_early}
    k2.TAILX = k3.prefetch_chunks()
    k2.TAILCHK = k3.aux_check
    def p0_with(A, lo, extra=None):
        B = Asm(); k2.items(B, lo, 5)
        c = k2.chunks([l for l in B.lines if l != "s_nop 0"], 1)
        c[0].insert(len(c[0]) - 1, "s_nop 0")
        ex = {2 * k + 1: list(v) for k, v in enumerate(c)}
        for k, v in (extra or {}).items(): ex.setdefault(k, []).extend(v)
        k2.p0(A, ex)
    def getq(A):
        dstamp(A, 3)
        k2.poll_partner(A, F_J2)
        dstamp(A, 4)
        k2.q_loads(A, k2.QA, k2.SRD_WS)
    def gend(A):
        k2.kv_check(A)
        dstamp(A, 2)
        B = Asm(); k2.items(B, 0, ANIT)
        c = k2.chunks(B.lines, 1)
        n = min(QMID, 8) * 8
        fill = [[] for _ in range(n)]
        for k, x in enumerate(c): fill[k * n // len(c)] = x
        with_regs(k1.epi_GU, A, S_HD, stage=True, fill=fill, mid=(QMID, getq))
        if QMID >= 8: getq(A)
        A.label("L_f_aq")
        k2.k2_setup2(A)
        A("s_waitcnt vmcnt(0)", "s_barrier")
        if ANIT < 5: p0_with(A, ANIT)
        else: k2.p0(A)
        A("s_branch L_f_main")
    def hend(A):
        k2.kv_check(A)
        dstamp(A, 2)
        VL = 23
        A(f"s_lshl_b32 s{S_E0}, s37, 15", f"s_lshl_b32 s{S_E1}, s38, 11", f"s_add_u32 s{S_E0}, s{S_E0}, s{S_E1}",
          f"v_add_u32 v{VL}, s{S_E0}, v{k2.V_L16}", f"v_add_u32 v{VL+1}, 65536, v{VL}")
        k2.items(A, 0, 1)
        with_regs(k1.epi_Q_x, A, S_HD, VL)
        A(f"s_mov_b32 s{S_HD}, 0x40000000",
          f"s_lshl_b32 s{S_E0}, s{k2.S_W}, 14", f"v_add_u32 v{VL+2}, s{S_E0}, v{k2.V_L16}", f"v_add_u32 v{VL+3}, 65536, v{VL+2}",
          "s_waitcnt lgkmcnt(0)", "s_barrier")
        dstamp(A, 3)
        for f in range(16): A(f"ds_read_b128 {ar(k2.QA+4*f,4)}, v{VL+2} offset:{f*1024}")
        for f in range(16): A(f"ds_read_b128 {ar(k2.PA+4*f,4)}, v{VL+3} offset:{f*1024}")
        k2.k2_setup2(A)
        A("s_waitcnt vmcnt(16) lgkmcnt(0)", "s_barrier")
        dstamp(A, 4)
        S = Asm(); signal(S, k1.SRD_WS, k1.S_W, F_J2, k2.V_T, k2.S_T0)
        p0_with(A, 1, {QSIG: [f"s_waitcnt vmcnt({(QSIG + 1) // 2})", "s_barrier"] + S.lines})
        A.label("L_f_main")
        k2.k2_main(A, done)
    def send(A):
        A(reloc, f"s_mov_b32 s{S_HD}, 0x40000000")
        A(k2.kv_addr()); k2.k2_setup1(A)
        k2.kv_check(A, early=False)
        k2.items(A, 0, ANIT)
        getq(A)
        A("s_branch L_f_aq")
    def done(A, role):
        if role == "B": A("s_branch L_f_k3"); return
        A.label("L_f_k3")
        if DIAG in (0,): stamp(A, 5)
        if DIAG == 2: stamp(A, 0)
        k3.body(A, 16)
        if asmlib.STAMPS:
            A("s_waitcnt vmcnt(0)"); stamp(A, 6); stamp_rt(A, 8)
            stamp_flush(A, k2.SRD_WS, k2.S_W, 0)
        A("s_endpgm")
    k1.k1_body(A, hooks={"J2": j2hook, "sig": (SIG_STEP, kvsig), "Gend": gend, "Hend": hend, "Send": send})
    A.label("L_f_end")
    A("s_endpgm")
KV_GAP = 33
QMID = 8
ANIT = 3
QSIG = 15
CT_STEP = 7

def desc_f(A, name="f_kernel"):
    kernel_desc(A, name, 512, 256)
```

```python
from asmlib import *
import asmlib

WBASE = 98304
SRD_A, SRD_W, SRD_WS = 4, 8, 12
S_W, S_WM, S_WN = 16, 17, 18
S_SOA0, S_SOA1, S_SOW, S_WINC = 19, 20, 21, 22
S_RSLOT, S_DSLOT, S_WM0, S_N = 23, 24, 25, 26
S_W8192 = 27
S_DST1, S_DST2, S_T0, S_T1 = 28, 29, 30, 31
S2_A0, S2_A1, S2_ASZ, S2_SOA0, S2_SOA1 = 60, 61, 62, 63, 64
S2_W0, S2_W1, S2_WSZ, S2_SOW, S2_WINC = 65, 66, 67, 68, 69
S_IDX, S_XCD, S_RT1, S_HEAD1, S_RT2, S_C2, S_T2, S_T3, S_KIND = 70, 71, 72, 73, 74, 75, 76, 77, 78
S_STA2, S_STW2, S_LOG2E = 79, 80, 80
S_PF, S_PFO = 44, 82
V_PFD = 31
V_A, V_W, V_RW, V_RA, V_RCUR, V_L16, V_T = 1, 5, 9, 13, 15, 16, 17
V_A2, V_W2 = 32, 36
A_J2 = 160
V_PAD = 22
ACC_V, NACC_V = 32, 56
FR = 0

_stamp0 = stamp
SMAP = None
def stamp(A, k):
    if SMAP is not None: k = SMAP.get(k)
    if k is not None: _stamp0(A, k)

def acc(i, j):
    b = i * 8 + j
    return ("v", ACC_V + 4 * b) if b < NACC_V else ("a", 128 + 4 * (b - NACC_V))
def accs(i, j):
    f, b = acc(i, j)
    return vr(b, 4, f)
def wfrag(p, i): return FR + 64 * p + 4 * i
def afrag(p, j): return FR + 64 * p + 32 + 4 * j

def reads_for(p, wslot):
    R = []
    for i in range(8):
        st, cb = i >> 2, i & 3
        for h in range(2):
            R.append(f"ds_read_b64_tr_b16 {ar(wfrag(p,i)+2*h,2)}, v{V_RW+cb} offset:{wslot*16384+st*8192+h*1024}")
    for j in range(8):
        R.append(f"ds_read_b128 {ar(afrag(p,j),4)}, v{V_RCUR} offset:{j*2048}")
    return R

def dma_w(j): return f"buffer_load_dwordx4 v{V_W+j}, {sr(SRD_W,4)}, s{S_SOW} offen offset:{j*1024} lds"
def dma_a(j, hf): return f"buffer_load_dwordx4 v{V_A+j}, {sr(SRD_A,4)}, s{S_SOA1 if hf else S_SOA0} offen offset:{j*1024} lds"

def step(A, phase, orient, first=False, extra=None, tail=None, nodma=False, vm=16, pf=False, dw=True, da=True, rd=True):
    p = phase & 1
    m = []
    for i in range(8):
        for j in range(8):
            c = "0" if first else accs(i, j)
            w, a = ar(wfrag(p, i), 4), ar(afrag(p, j), 4)
            x, y = (w, a) if orient == "WA" else (a, w)
            m.append(f"v_mfma_f32_16x16x32_bf16 {accs(i,j)}, {x}, {y}, {c}")
    g = {}
    def put(k, *ins): g.setdefault(k, []).extend(ins)
    if phase & 1 and rd:
        put(0, f"s_add_u32 s{S_DSLOT}, s{S_RSLOT}, s{S_W8192}", f"s_add_u32 s{S_RSLOT}, s{S_RSLOT}, 32768",
               f"s_cmp_eq_u32 s{S_RSLOT}, 98304")
        put(2, f"s_cselect_b32 s{S_RSLOT}, 0, s{S_RSLOT}")
    if rd: put(6, f"v_add_u32 v{V_RCUR}, s{S_RSLOT}, v{V_RA + ((phase + 1) & 1)}")
    R = reads_for(1 - p, (phase + 1) & 3)
    for k, r in enumerate(R):
        if rd: put(1 + 2 * k, r)
    if not nodma and dw:
        put(2, f"s_add_u32 m0, s{S_WM0}, {phase*16384}")
        for j in range(4):
            put(4 + 6 * j, dma_w(j))
        put(24, f"s_add_u32 s{S_SOW}, s{S_SOW}, s{S_WINC}")
    if not nodma and da:
        hf = 0 if (phase & 1) else 1
        put(26, f"s_add_u32 m0, s{S_DSLOT}, {hf*4096}")
        for j in range(4):
            put(28 + 6 * j, dma_a(j, hf))
        so = S_SOA1 if hf else S_SOA0
        put(48, f"s_add_u32 s{so}, s{so}, 128")
    if pf:
        lab = f"L_pf{len(A.lines)}"
        _pf_sites.append(lab)
        put(50, f"s_bitcmp1_b32 s{S_PFM}, s{S_PFC}", f"s_cbranch_scc1 {lab}_do", f"{lab}_back:")
        put(51, f"s_add_u32 s{S_PFC}, s{S_PFC}, 1")
    if extra:
        for k, v in extra.items():
            put(k, *v)
    put(62, f"s_waitcnt vmcnt({vm}) lgkmcnt(0)")
    put(63, "s_barrier")
    if tail: put(63, *tail)
    interleave(A, m, g)

def early_dma(A, phase):
    assert phase % 2 == 0
    A(f"s_add_u32 m0, s{S_WM0}, {phase*16384}", "s_nop 0")
    for j in range(4): A(dma_w(j))
    A(f"s_add_u32 s{S_SOW}, s{S_SOW}, s{S_WINC}", f"s_add_u32 m0, s{S_DSLOT}, 4096", "s_nop 0")
    for j in range(4): A(dma_a(j, 1))
    A(f"s_add_u32 s{S_SOA1}, s{S_SOA1}, 128")

STAGE = 160
TRICKLE = 3
def job(A, tag, orient, nsteps, start, nxt, after=None, pf=False, U=1, hook=None, pf_roll=True, sig=None):
    gw, ga, ge = nsteps - 4, nsteps - 5, nsteps - 1
    ph = lambda g: (start + g) & 3
    nn = lambda g: (start + g) >> 2
    npeel = U
    order = [-2] * 8 + [-1] * 8
    pend = list(after or [])
    if after is not None: order += [0] * 8 + ["s"] * 8
    assert not (nxt and U > ga)
    for g in range(npeel):
        t = [f"s_branch L_{tag}_p{ph(npeel)}"] if (g == npeel - 1 and npeel < nsteps) else None
        ex = {}
        if g == npeel - 1 and npeel < nsteps: ex[60] = [f"s_mov_b32 s{S_N}, {nn(npeel)}"]
        nod = (g == 0 and after is not None)
        dw, da = g < gw, g < ga
        if not nod: order += [g] * (4 * dw + 4 * da)
        for k in range(TRICKLE):
            if pend:
                sd, c, imm, a = pend.pop(0)
                gp = 52 + k * (8 // TRICKLE)
                ex[gp] = [f"s_add_u32 s{S_T0}, s{sd}, {c}"]
                ex[gp + 1] = [f"buffer_store_dwordx4 {ar(a,4)}, v{V_L16}, {sr(SRD_WS,4)}, s{S_T0} offen offset:{imm}{STORE_SC}"]
                order.append("s")
        if hook: hook(g, ex, order)
        if (g - 2) in order:
            last = max(i for i, o in enumerate(order) if o == g - 2)
            vm = min(63, len(order) - 1 - last)
        else: vm = 63
        if "vm" in ex: vm = min(vm, ex.pop("vm"))
        if sig is not None and g == sig[0]:
            assert not pend
            last = max(i for i, o in enumerate(order) if o == "s")
            vm = min(vm, len(order) - 1 - last)
            B = Asm(); sig[1](B); t = B.lines
        step(A, ph(g), orient, first=(g == 0), nodma=nod, vm=vm, pf=pf, tail=t, extra=ex,
             dw=dw, da=da, rd=(nxt or g < nsteps - 1))
    assert not pend
    if npeel == nsteps: return
    A(".p2align 6")
    for p in range(4):
        A.label(f"L_{tag}_p{p}")
        ex = {}
        if p == ph(gw):
            assert p % 2 == 0
            if nxt: ex[0] = [f"s_cmp_eq_u32 s{S_N}, {nn(gw)}", f"s_cbranch_scc1 L_{tag}_swW", f"L_{tag}_backW:"]
            else: ex[0] = [f"s_cmp_ge_u32 s{S_N}, {nn(gw)}", f"s_cselect_b32 s{SRD_W+2}, 0, s{SRD_W+2}"]
        if p == ph(ga):
            if nxt: ex[20] = [f"s_cmp_eq_u32 s{S_N}, {nn(ga)}", f"s_cbranch_scc1 L_{tag}_swA", f"L_{tag}_backA:"]
            else: ex[20] = [f"s_cmp_ge_u32 s{S_N}, {nn(ga)}", f"s_cselect_b32 s{SRD_A+2}, 0, s{SRD_A+2}"]
        tail = []
        if p == 3: ex[52] = [f"s_add_u32 s{S_N}, s{S_N}, 1"]
        if p == ph(ge):
            if p == 3:
                ex[54] = [f"s_cmp_le_u32 s{S_N}, {nn(ge)}"]; tail = [f"s_cbranch_scc1 L_{tag}_p0"]
            else:
                ex[54] = [f"s_cmp_eq_u32 s{S_N}, {nn(ge)}"]; tail = [f"s_cbranch_scc1 L_{tag}_done"]
        elif p == 3:
            tail = [f"s_branch L_{tag}_p0"]
        step(A, p, orient, extra=ex, tail=tail, pf=pf and pf_roll)
    A.label(f"L_{tag}_done")

def switch_code(A, tag):
    A.label(f"L_{tag}_swW")
    A(f"s_mov_b32 s{SRD_W}, s{S2_W0}", f"s_mov_b32 s{SRD_W+1}, s{S2_W1}", f"s_mov_b32 s{SRD_W+2}, s{S2_WSZ}",
      f"s_mov_b32 s{S_SOW}, s{S2_SOW}", f"s_mov_b32 s{S_WINC}, s{S2_WINC}")
    for j in range(4): A(f"v_accvgpr_read_b32 v{V_W+j}, a{A_J2+4+j}")
    A(f"s_branch L_{tag}_backW")
    A.label(f"L_{tag}_swA")
    A(f"s_mov_b32 s{SRD_A}, s{S2_A0}", f"s_mov_b32 s{SRD_A+1}, s{S2_A1}", f"s_mov_b32 s{SRD_A+2}, s{S2_ASZ}",
      f"s_mov_b32 s{S_SOA0}, s{S2_SOA0}", f"s_mov_b32 s{S_SOA1}, s{S2_SOA1}")
    for j in range(4): A(f"v_accvgpr_read_b32 v{V_A+j}, a{A_J2+j}")
    A(f"s_branch L_{tag}_backA")

def get4(A, blk, tmp):
    f, b = blk
    if f == "v": return b
    for r in range(4): A(f"v_accvgpr_read_b32 v{tmp+r}, a{b+r}")
    return tmp

def pack_store(A, x, y, soff, imm):
    A(f"v_cvt_pk_bf16_f32 v{x}, v{x}, v{x+1}", f"v_cvt_pk_bf16_f32 v{x+1}, v{x+2}, v{x+3}",
      f"v_cvt_pk_bf16_f32 v{x+2}, v{y}, v{y+1}", f"v_cvt_pk_bf16_f32 v{x+3}, v{y+2}, v{y+3}",
      f"buffer_store_dwordx4 {vr(x,4)}, v{V_L16}, {sr(SRD_WS,4)}, s{soff} offen offset:{imm}{STORE_SC}")

def epi_WA(A, sdst):
    A("s_nop 7")
    for j in range(8):
        for st in range(2):
            A(f"s_add_u32 s{S_T0}, s{sdst}, {j*8192 + st*4096}")
            for pr in range(2):
                i = 4 * st + 2 * pr
                x = get4(A, acc(i, j), None)
                y = get4(A, acc(i + 1, j), acc(1, j)[1])
                pack_store(A, x, y, S_T0, pr * 1024)
    A("s_nop 1")

def epi_AW(A, sdst):
    A("s_nop 7")
    for jp in range(4):
        for st in range(2):
            A(f"s_add_u32 s{S_T0}, s{sdst}, {jp*16384 + st*8192}")
            for cb in range(4):
                i = 4 * st + cb
                x = get4(A, acc(i, 2 * jp), acc(0, 2 * jp + 1)[1])
                y = get4(A, acc(i, 2 * jp + 1), acc(1, 2 * jp + 1)[1])
                pack_store(A, x, y, S_T0, cb * 1024)
    A("s_nop 1")

def epi_WA_stage(A, sdst):
    A("s_nop 7", ".p2align 3")
    out = []
    c = 0
    for j in range(8):
        for st in range(2):
            if c < 8: A(f"s_add_u32 s{S_T0}, s{sdst}, {j*8192 + st*4096 + 0x10000000 * 0}" if j or st else f"s_add_u32 s{S_T0}, s{sdst}, 0", *(["s_nop 0"] if not (j or st) else []))
            for pr in range(2):
                i = 4 * st + 2 * pr
                x = get4(A, acc(i, j), None)
                y = get4(A, acc(i + 1, j), acc(1, j)[1])
                if c < 8:
                    pack_store(A, x, y, S_T0, pr * 1024)
                else:
                    a = STAGE + 4 * (c - 8)
                    A(f"v_cvt_pk_bf16_f32 v{x}, v{x}, v{x+1}", f"v_cvt_pk_bf16_f32 v{x+1}, v{x+2}, v{x+3}",
                      f"v_cvt_pk_bf16_f32 v{x+2}, v{y}, v{y+1}", f"v_cvt_pk_bf16_f32 v{x+3}, v{y+2}, v{y+3}")
                    for r in range(4): A(f"v_accvgpr_write_b32 a{a+r}, v{x+r}")
                    out.append((sdst, j * 8192 + st * 4096, pr * 1024, a))
                c += 1
    A("s_nop 1")
    return out

def epi_AW_stage(A, sdst):
    A("s_nop 7", ".p2align 3")
    out = []
    c = 0
    for jp in range(4):
        for st in range(2):
            if c < 8: A(f"s_add_u32 s{S_T0}, s{sdst}, {jp*16384 + st*8192}", *(["s_nop 0"] if not (jp or st) else []))
            for cb in range(4):
                i = 4 * st + cb
                x = get4(A, acc(i, 2 * jp), acc(0, 2 * jp + 1)[1])
                y = get4(A, acc(i, 2 * jp + 1), acc(1, 2 * jp + 1)[1])
                if c < 8:
                    pack_store(A, x, y, S_T0, cb * 1024)
                else:
                    a = STAGE + 4 * (c - 8)
                    A(f"v_cvt_pk_bf16_f32 v{x}, v{x}, v{x+1}", f"v_cvt_pk_bf16_f32 v{x+1}, v{x+2}, v{x+3}",
                      f"v_cvt_pk_bf16_f32 v{x+2}, v{y}, v{y+1}", f"v_cvt_pk_bf16_f32 v{x+3}, v{y+2}, v{y+3}")
                    for r in range(4): A(f"v_accvgpr_write_b32 a{a+r}, v{x+r}")
                    out.append((sdst, jp * 16384 + st * 8192, cb * 1024, a))
                c += 1
    A("s_nop 1")
    return out

HST = 160
def epi_GU(A, sdst, stage=False, fill=None, mid=None):
    fill = list(fill or [])
    A("s_nop 7")
    A(f"s_mov_b32 s{S_LOG2E}, 0xbfb8aa3b")
    for j in range(8):
        if not stage: A(f"s_add_u32 s{S_T0}, s{sdst}, {j*asmlib.AFS*1024}")
        if mid and j == mid[0]: mid[1](A)
        for i in range(4):
            gq = acc(i, j)[1]
            uq = get4(A, acc(i + 4, j), acc(4, j)[1])
            for r in range(4): A(f"v_mul_f32 v{gq+r}, s{S_LOG2E}, v{gq+r}")
            for r in range(4): A(f"v_exp_f32 v{gq+r}, v{gq+r}")
            if fill: A(fill.pop(0))
            for r in range(4): A(f"v_add_f32 v{gq+r}, 1.0, v{gq+r}")
            for r in range(4): A(f"v_rcp_f32 v{gq+r}, v{gq+r}")
            if fill: A(fill.pop(0))
            for r in range(4): A(f"v_mul_f32 v{gq+r}, v{uq+r}, v{gq+r}")
            if i & 1:
                x, y = acc(i - 1, j)[1], gq
                if not stage: pack_store(A, x, y, S_T0, (i >> 1) * 1024)
                else:
                    a = HST + 4 * (j * 2 + (i >> 1))
                    A(f"v_cvt_pk_bf16_f32 v{x}, v{x}, v{x+1}", f"v_cvt_pk_bf16_f32 v{x+1}, v{x+2}, v{x+3}",
                      f"v_cvt_pk_bf16_f32 v{x+2}, v{y}, v{y+1}", f"v_cvt_pk_bf16_f32 v{x+3}, v{y+2}, v{y+3}")
                    for r in range(4): A(f"v_accvgpr_write_b32 a{a+r}, v{x+r}")
    assert not fill
def h_stores(A, vl16, sdst, st, j0, j1):
    for j in range(j0, j1):
        A(f"s_add_u32 s{st}, s{sdst}, {j*asmlib.AFS*1024}")
        for p in range(2):
            A(f"buffer_store_dwordx4 {ar(HST+4*(j*2+p),4)}, v{vl16}, {sr(SRD_WS,4)}, s{st} offen offset:{p*1024}{STORE_SC}")

def epi_Q_x(A, sdst, vlds):
    A("s_nop 7")
    for j0 in range(4):
        for st in range(2):
            A(f"s_add_u32 s{S_T0}, s{sdst}, {j0*8192 + st*4096}")
            for pr in range(2):
                for j in (j0, j0 + 4):
                    i = 4 * st + 2 * pr
                    x = get4(A, acc(i, j), None)
                    y = get4(A, acc(i + 1, j), acc(1, j)[1])
                    w = f"ds_write_b128 v{vlds + (j >> 2)}, {vr(x,4)} offset:{(j & 3)*8192 + st*4096 + pr*1024}"
                    if j < 4: pack_store(A, x, y, S_T0, pr * 1024)
                    else:
                        A(f"v_cvt_pk_bf16_f32 v{x}, v{x}, v{x+1}", f"v_cvt_pk_bf16_f32 v{x+1}, v{x+2}, v{x+3}",
                          f"v_cvt_pk_bf16_f32 v{x+2}, v{y}, v{y+1}", f"v_cvt_pk_bf16_f32 v{x+3}, v{y+2}, v{y+3}")
                    A(w)

def voffs(A, dstA, dstW, strideA, strideW):
    t0, t1, t2 = V_T, V_T + 1, V_T + 2
    for j in range(4):
        A(f"v_lshrrev_b32 v{t0}, 3, v0", f"v_add_u32 v{t0}, {8*j}, v{t0}", f"v_mul_lo_u32 v{t0}, v{t0}, {strideA}",
          f"v_lshrrev_b32 v{t1}, 4, v0", f"v_add_u32 v{t1}, {4*(j&1)}, v{t1}", f"v_and_b32 v{t2}, 7, v0",
          f"v_xor_b32 v{t1}, v{t1}, v{t2}", f"v_lshlrev_b32 v{t1}, 4, v{t1}", f"v_add_u32 v{t0}, v{t0}, v{t1}",
          f"v_subrev_u32 v{dstA+j}, {1024*j}, v{t0}")
        A(f"v_lshrrev_b32 v{t1}, 4, v0", f"v_add_u32 v{t0}, {4*j}, v{t1}", f"v_mul_lo_u32 v{t0}, v{t0}, {strideW}",
          f"v_lshlrev_b32 v{t1}, 1, v{t1}", f"v_add_u32 v{t1}, {8*(j>>1)}, v{t1}", f"v_and_b32 v{t2}, 15, v0",
          f"v_xor_b32 v{t1}, v{t1}, v{t2}", f"v_lshlrev_b32 v{t1}, 4, v{t1}", f"v_add_u32 v{t0}, v{t0}, v{t1}",
          f"v_subrev_u32 v{dstW+j}, {1024*j}, v{t0}")

def fin(A):
    if not asmlib.STAMPS: return
    stamp(A, 5)
    A("s_waitcnt vmcnt(0)")
    stamp(A, 6); stamp_rt(A, 8)
    stamp_flush(A, SRD_WS, S_W, 0)

WL_LDS = 131072
def wl_setup():
    t0, t1 = V_T, V_T + 1
    return [f"s_cmp_ge_u32 s2, 128",
      f"s_cselect_b32 s{SRD_A}, s{P_WD}, s{P_WO}", f"s_cselect_b32 s{SRD_A+1}, s{P_WD+1}, s{P_WO+1}",
      f"s_mov_b32 s{SRD_A+2}, {4096*448*2}", f"s_cselect_b32 s{SRD_A+2}, {1792*448*2}, s{SRD_A+2}",
      f"s_and_b32 s{S_SOA0}, s2, 127", f"s_mul_i32 s{S_SOA0}, s{S_SOA0}, 28672", f"s_mul_i32 s{S_WINC}, s{S_W}, 7168",
      f"s_add_u32 s{S_SOA0}, s{S_SOA0}, s{S_WINC}", f"s_add_u32 s{S_WINC}, s{S_WINC}, {WL_LDS}",
      f"s_mul_i32 s{S_SOA1}, s2, 7168", f"s_mul_i32 s{S_SOW}, s{S_W}, {KSTEPS3*7168}", f"s_add_u32 s{S_SOA1}, s{S_SOA1}, s{S_SOW}",
      f"s_add_u32 s{S_SOA1}, s{S_SOA1}, {WF_OFF}", f"s_cmp_ge_u32 s2, {KSTEPS3}", f"s_cselect_b32 s{S_SOA1}, 0x40000000, s{S_SOA1}",
      f"s_mul_i32 s{S_SOW}, s{S_W}, 224", f"s_add_u32 s{S_SOW}, s{S_SOW}, {WL_LDS}",
      f"v_lshrrev_b32 v{t0}, 2, v0", f"v_mul_u32_u24 v{t0}, 896, v{t0}", f"v_and_b32 v{t1}, 3, v0",
      f"v_lshl_add_u32 v{t0}, v{t1}, 3, v{t0}", f"v_add_u32 v{V_T+2}, s{S_SOW}, v{t0}"]
def wl_dma():
    L = [[f"s_mov_b32 m0, s{S_WINC}"]]
    for j in range(7):
        if j == 4: L.append([f"s_add_u32 m0, m0, 4096", f"s_add_u32 s{S_SOA0}, s{S_SOA0}, 4096"])
        L.append([f"buffer_load_dwordx4 v{V_L16}, {sr(SRD_A,4)}, s{S_SOA0} offen offset:{(j%4)*1024} lds"])
    return L
WLR = 224
def wl_reads():
    return [f"ds_read_b64_tr_b16 {ar(WLR+4*c+2*h,2)}, v{V_T+2} offset:{h*16*896 + c*32}" for c in range(7) for h in range(2)]
def wl_stores(A, vl16, sdst):
    for c in range(7):
        if c == 4: A(f"s_add_u32 s{sdst}, s{sdst}, 4096")
        A(f"buffer_store_dwordx4 {ar(WLR+4*c,4)}, v{vl16}, {sr(SRD_WS,4)}, s{sdst} offen offset:{(c%4)*1024}{STORE_SC}")
def wl_finish(A):
    A(wl_reads(), "s_waitcnt lgkmcnt(0)")
    wl_stores(A, V_L16, S_SOA1)
def wl_hook(g, ex, order):
    if g == 10:
        st = wl_setup()
        for k in range(0, len(st), 2):
            ex.setdefault(8 + 2 * k if 8 + 2 * k < 50 else 50, []).extend(st[k:k + 2])
    if g == 11:
        for k, c in enumerate(wl_dma()): ex.setdefault(8 + 4 * k, []).extend(c)
        n = sum(1 for o in reversed(order[-TRICKLE:]) if o == "s")
        order[len(order) - n:len(order) - n] = [11] * 7

def side_job(A, kvsig=None):
    S_U = S_RT2
    t0, t1, t2 = V_T, V_T + 1, V_T + 2
    A(f"s_sub_u32 s{S_U}, s{S_IDX}, 14", f"s_lshl_b32 s{S_U}, s{S_U}, 3", f"s_add_u32 s{S_U}, s{S_U}, s{S_XCD}",
      f"s_lshl_b32 s{S_U}, s{S_U}, 2", f"s_add_u32 s{S_U}, s{S_U}, s{S_W}")
    A(f"s_mov_b32 s{SRD_A}, s{P_X}", f"s_mov_b32 s{SRD_A+1}, s{P_X+1}", f"s_mov_b32 s{SRD_A+2}, {2048*448*2}",
      f"s_mov_b32 s{SRD_W}, s{P_GW}", f"s_mov_b32 s{SRD_W+1}, s{P_GW+1}", f"s_mov_b32 s{SRD_W+2}, 896")
    A(f"v_and_b32 v{t0}, 15, v0", f"v_mul_u32_u24 v{t0}, 896, v{t0}", f"v_lshrrev_b32 v{t1}, 4, v0",
      f"v_lshlrev_b32 v{t1}, 4, v{t1}", f"v_add_u32 v{t0}, v{t0}, v{t1}",
      f"s_mul_i32 s{S_T0}, s{S_U}, {32*896}", f"s_add_u32 s{S_T1}, s{S_T0}, {16*896}")
    GA = 0
    for k in range(14):
        A(f"buffer_load_dwordx4 {ar(GA+4*k,4)}, v{t1}, {sr(SRD_W,4)}, 0 offen offset:{k*64}")
        A(f"buffer_load_dwordx4 {ar(GA+56+4*k,4)}, v{t0}, {sr(SRD_A,4)}, s{S_T0} offen offset:{k*64}")
        A(f"buffer_load_dwordx4 {ar(GA+112+4*k,4)}, v{t0}, {sr(SRD_A,4)}, s{S_T1} offen offset:{k*64}")
    A("s_waitcnt vmcnt(42)", "s_barrier")
    if kvsig: kvsig(A)
    A(wl_setup())
    for c in wl_dma(): A(c, "s_nop 0")
    A("s_waitcnt vmcnt(7)")
    G = 144
    for k in range(14):
        A(f"v_mfma_f32_16x16x32_bf16 {vr(G,4)}, {ar(GA+4*k,4)}, {ar(GA+56+4*k,4)}, {'0' if k == 0 else vr(G,4)}")
        A(f"v_mfma_f32_16x16x32_bf16 {vr(G+4,4)}, {ar(GA+4*k,4)}, {ar(GA+112+4*k,4)}, {'0' if k == 0 else vr(G+4,4)}")
    A(f"s_mov_b32 s{S_LOG2E}, 0xbfb8aa3b", f"v_and_b32 v{t0}, 15, v0", f"v_lshlrev_b32 v{t0}, 2, v{t0}",
      f"s_lshl_b32 s{S_T0}, s{S_U}, 7", f"s_add_u32 s{S_T0}, s{S_T0}, {G_OFF}", "s_waitcnt vmcnt(0)", "s_barrier", "s_nop 2")
    for rb in range(2):
        v = G + 4 * rb
        A(f"v_mul_f32 v{v}, s{S_LOG2E}, v{v}", f"v_exp_f32 v{v}, v{v}", "s_nop 0", f"v_add_f32 v{v}, 1.0, v{v}",
          f"v_rcp_f32 v{v}, v{v}", "s_nop 0",
          f"buffer_store_dword v{v}, v{t0}, {sr(SRD_WS,4)}, s{S_T0} offen offset:{rb*64}{STORE_SC}")
    if kvsig: A(wl_reads(), "s_waitcnt lgkmcnt(0)", "s_barrier")
    else: wl_finish(A)

STORE_SC = " sc0 sc1"
ORDER = "LS"
PREFETCH = True

S_PFM, S_PFC = 83, 3
V_PQ = 22
PF_T0 = 3
_pf_sites = []
def prefetch_setup(A):
    late = [(P_X, 224), (P_WQ, 448), (S_KIND, 196), (P_WU, 196), (P_WO, 448), (P_WD, 196)]
    n1 = 160 * (16 - PF_T0)
    sv, st, sr_, sb0, sb1, so, sstr = S_T0, S_T1, S_T2, S_PF, S_PF + 1, S_PF + 2, S_PF + 3
    for k in range(4):
        A(f"s_lshl_b32 s{sv}, s2, 2", f"s_add_u32 s{sv}, s{sv}, s{S_W}", f"s_add_u32 s{sv}, s{sv}, {1024*k}")
        lo, hi = 1024 * k, 1024 * k + 1023
        if lo < n1:
            A(f"s_mul_i32 s{st}, s{sv}, 52429", f"s_lshr_b32 s{st}, s{st}, 23", f"s_mul_i32 s{sr_}, s{st}, 160",
              f"s_sub_u32 s{sr_}, s{sv}, s{sr_}", f"s_add_u32 s{st}, s{st}, {PF_T0}")
            A(f"s_mov_b32 s{sb0}, s{P_CKV}", f"s_mov_b32 s{sb1}, s{P_CKV+1}", f"s_lshl_b32 s{so}, s{sr_}, 17",
              f"s_lshl_b32 s{S_T3}, s{st}, 7", f"s_add_u32 s{so}, s{so}, s{S_T3}", f"s_mov_b32 s{sstr}, 2048")
            A(f"s_lshl_b32 s{st}, s{st}, 19", f"s_add_u32 s{S_T3}, s{sr_}, 32", f"s_and_b32 s{S_T3}, s{S_T3}, 63",
              f"s_lshl_b32 s{S_T3}, s{S_T3}, 13", f"s_add_u32 s{st}, s{st}, s{S_T3}")
            A(f"s_cmp_ge_u32 s{sr_}, 32", f"s_cselect_b32 s{sb0}, s{P_WUK}, s{sb0}", f"s_cselect_b32 s{sb1}, s{P_WUK+1}, s{sb1}",
              f"s_cselect_b32 s{so}, s{st}, s{so}", f"s_cselect_b32 s{sstr}, 128, s{sstr}",
              f"s_cmp_ge_u32 s{sr_}, 96", f"s_cselect_b32 s{sb0}, s{P_WUV}, s{sb0}", f"s_cselect_b32 s{sb1}, s{P_WUV+1}, s{sb1}")
        base = n1
        for p, n in late + [(P_X, 1 << 20)]:
            if base + n > lo and base <= hi:
                last = n == 1 << 20
                A(f"s_sub_u32 s{st}, s{sv}, {base}", f"s_lshl_b32 s{st}, s{st}, 13")
                if last: A(f"s_mov_b32 s{st}, 0")
                A(f"s_cmp_ge_u32 s{sv}, {base}", f"s_cselect_b32 s{sb0}, s{p}, s{sb0}", f"s_cselect_b32 s{sb1}, s{p+1}, s{sb1}",
                  f"s_cselect_b32 s{so}, s{st}, s{so}", f"s_cselect_b32 s{sstr}, 128, s{sstr}")
            base += n
        A(f"s_add_u32 s{sb0}, s{sb0}, s{so}", f"s_addc_u32 s{sb1}, s{sb1}, 0",
          f"v_mul_lo_u32 v{V_T}, v0, s{sstr}", f"v_mov_b32 v{V_T+1}, s{sb1}",
          f"v_add_co_u32 v{V_PQ+2*k}, vcc, s{sb0}, v{V_T}", "s_nop 1",
          f"v_addc_co_u32 v{V_PQ+2*k+1}, vcc, 0, v{V_T+1}, vcc")
    A(f"s_lshr_b32 s{S_T0}, s2, 5", f"s_lshl_b32 s{S_PFM}, 0x01010101, s{S_T0}", f"s_mov_b32 s{S_PFC}, 0")
V_CNT = 30
def pf_blocks(A):
    for lab in _pf_sites:
        A.label(f"{lab}_do")
        A(f"global_load_dword v{V_PFD}, {vr(V_PQ,2)}, off")
        for i in range(6): A(f"v_mov_b32 v{V_PQ+i}, v{V_PQ+2+i}")
        A(f"s_lshr_b32 s{S_T1}, s{S_PFC}, 3", f"s_lshl_b32 s{S_T0}, s{S_W}, 2", f"s_add_u32 s{S_T1}, s{S_T1}, s{S_T0}",
          f"s_cmp_eq_u32 s{S_T1}, 1", f"s_cbranch_scc0 {lab}_n1",
          f"v_mov_b32 v{V_T}, 1", f"v_mov_b32 v{V_T+1}, 0", "s_mov_b64 exec, 1",
          f"global_atomic_add v{V_T+1}, v{V_T}, {sr(P_DBG,2)} sc1", "s_mov_b64 exec, -1", f"{lab}_n1:",
          f"s_and_b32 s{S_T1}, s{S_T1}, 3", f"s_cmp_eq_u32 s{S_T1}, 3", f"s_cbranch_scc0 {lab}_back", f"v_mov_b32 v{V_T+1}, 0",
          f"global_load_dword v{V_CNT}, v{V_T+1}, {sr(P_DBG,2)} sc0 sc1")
        A(f"s_branch {lab}_back")
    _pf_sites.clear()

S_PC = 0
def code_touch(A, nbytes):
    A(f"s_getpc_b64 {sr(S_PC,2)}")
    A(code_touch_ops(S_PF, S_T0, V_T, V_PFD))
def code_touch_ops(srd, st, vt, vd):
    return [f"s_mov_b32 s{srd}, s{S_PC}", f"s_mov_b32 s{srd+1}, s{S_PC+1}", f"s_mov_b32 s{srd+2}, {CODE_BYTES}", f"s_mov_b32 s{srd+3}, 0x20000",
      f"s_lshr_b32 s{st}, s2, 3", f"s_lshl_b32 s{st}, s{st}, 2", f"s_add_u32 s{st}, s{st}, s{S_W}", f"s_lshl_b32 s{st}, s{st}, 10",
      f"v_and_b32 v{vt}, 7, v0", f"v_lshlrev_b32 v{vt}, 7, v{vt}",
      f"buffer_load_dword v{vd}, v{vt}, {sr(srd,4)}, s{st} offen"]

CODE_BYTES = 90112
def k1_body(A, fused=False, hooks=None):
    hooks = hooks or {}
    load_kernargs(A)
    stamp_rt(A, 7); stamp(A, 0)
    A(f"v_lshrrev_b32 v{V_T}, 6, v0", "v_and_b32 v0, 63, v0", f"v_readfirstlane_b32 s{S_W}, v{V_T}",
      f"v_lshlrev_b32 v{V_L16}, 4, v0")
    A(f"s_and_b32 s{S_XCD}, s2, 7", f"s_lshr_b32 s{S_IDX}, s2, 3",
      f"s_and_b32 s{S_WM}, s{S_W}, 1", f"s_lshr_b32 s{S_WN}, s{S_W}, 1",
      f"s_lshl_b32 s{S_W8192}, s{S_W}, 13",
      f"s_and_b32 s{S_RT1}, s{S_IDX}, 7",
      f"s_lshr_b32 s{S_T0}, s{S_IDX}, 3", f"s_and_b32 s{S_T0}, s{S_T0}, 1",
      f"s_lshl_b32 s{S_HEAD1}, s{S_XCD}, 1", f"s_add_u32 s{S_HEAD1}, s{S_HEAD1}, s{S_T0}")
    LO = f"s_cmp_lt_u32 s{S_IDX}, 16"
    LS = ORDER == "LS"
    J1L = f"s_cmp_lt_u32 s{S_IDX}, {32 if LS else 16}"
    A(f"s_mov_b32 s{S_T2}, 896", J1L, f"s_cselect_b32 s{S_T2}, 2048, s{S_T2}",
      f"s_mov_b32 s{S_STA2}, 2048", f"s_cselect_b32 s{S_STA2}, 896, s{S_STA2}", f"s_mov_b32 s{S_T3}, 8192")
    A(f"s_lshl_b32 s{S_T0}, s{S_RT1}, 8", f"s_lshl_b32 s{S_T1}, s{S_W}, 6", f"s_add_u32 s{S_T0}, s{S_T0}, s{S_T1}",
      f"s_mul_i32 s{S_SOA0}, s{S_T0}, s{S_T2}", f"s_lshl_b32 s{S_T1}, s{S_T2}, 5", f"s_add_u32 s{S_SOA1}, s{S_SOA0}, s{S_T1}")
    A(f"s_lshl_b32 s{S_T0}, s{S_WM}, 17", f"s_lshl_b32 s{S_T1}, s{S_HEAD1}, 9", f"s_add_u32 s{S_SOW}, s{S_T0}, s{S_T1}",
      f"s_lshl_b32 s{S_T1}, s{S_WN}, 8", f"s_add_u32 s{S_SOW}, s{S_SOW}, s{S_T1}",
      f"s_mov_b32 s{S2_SOW}, s{S_SOW}",
      f"s_mov_b32 s{S_WINC}, {32*8192}")
    A(f"s_lshl_b32 s{S_WM0}, s{S_W}, 12", f"s_add_u32 s{S_WM0}, s{S_WM0}, {WBASE}")
    voffs(A, V_A, V_W, f"s{S_T2}", f"s{S_T3}")
    A(f"s_mov_b32 s{S_T0}, {2048*448*2}", f"s_mov_b32 s{S_T1}, {448*4096*2}")
    A("s_waitcnt lgkmcnt(0)")
    w1lo, w1hi, w2hi = (P_WUV, P_WUK, P_WQ) if LS else (P_WUK, P_WQ, P_WUV)
    A(J1L,
      f"s_cselect_b32 s{SRD_A}, s{P_CKV}, s{P_X}", f"s_cselect_b32 s{SRD_A+1}, s{P_CKV+1}, s{P_X+1}",
      f"s_cselect_b32 s{SRD_A+2}, {2048*1024*2}, s{S_T0}", f"s_mov_b32 s{SRD_A+3}, 0x20000",
      f"s_cselect_b32 s{SRD_W+2}, {1024*4096*2}, s{S_T1}", f"s_mov_b32 s{SRD_W+3}, 0x20000",
      LO, f"s_cselect_b32 s{SRD_W}, s{w1lo}, s{w1hi}", f"s_cselect_b32 s{SRD_W+1}, s{w1lo+1}, s{w1hi+1}")
    def a_group(slot, hf):
        A(f"s_add_u32 m0, s{S_W8192}, {slot*32768 + hf*4096}", "s_nop 0")
        for j in range(4): A(dma_a(j, hf))
        so = S_SOA1 if hf else S_SOA0
        A(f"s_add_u32 s{so}, s{so}, 128")
    def w_group(slot):
        A(f"s_add_u32 m0, s{S_WM0}, {slot*16384}", "s_nop 0")
        for j in range(4): A(dma_w(j))
        A(f"s_add_u32 s{S_SOW}, s{S_SOW}, s{S_WINC}")
    a_group(0, 0); a_group(0, 1); w_group(0); a_group(1, 0); w_group(1); a_group(1, 1); w_group(2)
    a_group(2, 0); w_group(3)
    npf = 0
    A(f"s_mov_b32 s{SRD_WS}, s{P_WS}", f"s_mov_b32 s{SRD_WS+1}, s{P_WS+1}", f"s_mov_b32 s{SRD_WS+2}, {WS_BYTES}",
      f"s_mov_b32 s{SRD_WS+3}, 0x20000")
    A(f"s_add_u32 s{S_DSLOT}, s{S_W8192}, {2*32768}", f"s_mov_b32 s{S_RSLOT}, 0")
    A(f"v_lshlrev_b32 v{V_T}, 2, v0", f"v_mov_b32 v{V_T+1}, 0",
      f"s_lshl_b32 s{S_T0}, s2, 8", f"s_add_u32 s{S_T0}, s{S_T0}, {FL_OFF}",
      f"buffer_store_dword v{V_T+1}, v{V_T}, {sr(SRD_WS,4)}, s{S_T0} offen sc0 sc1")
    npf += 1
    t0, t1, t2, t3 = V_T, V_T + 1, V_T + 2, V_T + 3
    A(f"v_lshrrev_b32 v{t0}, 4, v0",
      f"v_bfe_u32 v{t1}, v0, 2, 2",
      f"v_lshl_add_u32 v{t2}, v{t0}, 3, v{t1}",
      f"v_lshlrev_b32 v{t2}, 8, v{t2}",
      f"v_and_b32 v{t3}, 1, v0", f"v_lshl_add_u32 v{t2}, v{t3}, 3, v{t2}",
      f"v_add_u32 v{t2}, {WBASE}, v{t2}",
      f"v_and_b32 v{t0}, 1, v{t0}", f"v_lshl_add_u32 v{t1}, v{t0}, 2, v{t1}", f"v_lshlrev_b32 v{t1}, 1, v{t1}",
      f"v_bfe_u32 v{t3}, v0, 1, 1",
      f"s_lshl_b32 s{S_T0}, s{S_WM}, 3",
      f"v_add_u32 v{t3}, s{S_T0}, v{t3}")
    for cb in range(4):
        A(f"v_add_u32 v{t0}, {2*cb}, v{t3}", f"v_xor_b32 v{t0}, v{t0}, v{t1}",
          f"v_lshl_add_u32 v{V_RW+cb}, v{t0}, 4, v{t2}")
    A(f"v_and_b32 v{t0}, 15, v0", f"s_lshl_b32 s{S_T0}, s{S_WN}, 7", f"v_add_u32 v{t1}, s{S_T0}, v{t0}",
      f"v_lshlrev_b32 v{t1}, 7, v{t1}", f"v_lshrrev_b32 v{t0}, 1, v{t0}", f"v_lshrrev_b32 v{t2}, 4, v0")
    for ks in range(2):
        A(f"v_add_u32 v{t3}, {4*ks}, v{t2}", f"v_xor_b32 v{t3}, v{t3}, v{t0}",
          f"v_lshl_add_u32 v{V_RA+ks}, v{t3}, 4, v{t1}")
    A(f"s_mul_i32 s{S_T0}, s{S_XCD}, 14", f"s_add_u32 s{S_T0}, s{S_T0}, s{S_IDX}",
      f"s_lshr_b32 s{S_C2}, s{S_T0}, 3", f"s_and_b32 s{S_T0}, s{S_T0}, 7",
      LO,
      f"s_cselect_b32 s{S_RT2}, s{S_T0}, s{S_RT1}",
      f"s_mov_b32 s{S_STW2}, 8192", f"s_cselect_b32 s{S_STW2}, 3584, s{S_STW2}",
      f"s_mov_b32 s{S2_WSZ}, {(448 if LS else 1024)*4096*2}", f"s_cselect_b32 s{S2_WSZ}, {448*1792*2}, s{S2_WSZ}",
      J1L,
      f"s_mov_b32 s{S2_ASZ}, {2048*1024*2}", f"s_cselect_b32 s{S2_ASZ}, {2048*448*2}, s{S2_ASZ}",
      f"s_cselect_b32 s{S2_A0}, s{P_X}, s{P_CKV}", f"s_cselect_b32 s{S2_A1}, s{P_X+1}, s{P_CKV+1}")
    A(f"s_cmp_eq_u32 s{S_WN}, 1",
      f"s_cselect_b32 s{S_T2}, s{P_WU}, s{P_WG}", f"s_cselect_b32 s{S_T3}, s{P_WU+1}, s{P_WG+1}",
      f"s_lshl_b32 s{S_T1}, s{S_C2}, 8", f"s_mul_i32 s{S_T0}, s{S_WM}, {16*3584}", f"s_add_u32 s{S_T0}, s{S_T0}, s{S_T1}",
      LO,
      f"s_cselect_b32 s{S2_W0}, s{S_T2}, s{w2hi}", f"s_cselect_b32 s{S2_W1}, s{S_T3}, s{w2hi+1}",
      f"s_cselect_b32 s{S2_SOW}, s{S_T0}, s{S2_SOW}",
      f"s_lshl_b32 s{S2_WINC}, s{S_STW2}, 5")
    A(f"s_sub_u32 s{S_N}, 15, s{S_RT1}", f"s_cmp_eq_u32 s{S_WM}, 1", f"s_cselect_b32 s{S_T2}, s{S_RT1}, s{S_N}",
      f"s_lshl_b32 s{S_T2}, s{S_T2}, 7", f"s_lshl_b32 s{S_T1}, s{S_WN}, 6", f"s_add_u32 s{S_T2}, s{S_T2}, s{S_T1}")
    A(f"s_lshl_b32 s{S_T0}, s{S_RT2}, 8", f"s_lshl_b32 s{S_T1}, s{S_W}, 6", f"s_add_u32 s{S_T0}, s{S_T0}, s{S_T1}",
      LO, f"s_cselect_b32 s{S_T0}, s{S_T0}, s{S_T2}",
      f"s_mul_i32 s{S2_SOA0}, s{S_T0}, s{S_STA2}", f"s_lshl_b32 s{S_T1}, s{S_STA2}, 5", f"s_add_u32 s{S2_SOA1}, s{S2_SOA0}, s{S_T1}")
    A(f"s_and_b32 s{S_T0}, s{S_IDX}, 30", f"s_cmp_eq_u32 s{S_T0}, 14",
      f"s_cselect_b32 s{S2_ASZ}, 0, s{S2_ASZ}", f"s_cselect_b32 s{S2_WSZ}, 0, s{S2_WSZ}")
    voffs(A, V_A2, V_W2, f"s{S_STA2}", f"s{S_STW2}")
    for j in range(8): A(f"v_accvgpr_write_b32 a{A_J2+j}, v{V_A2+j}")
    A(f"s_lshl_b32 s{S_T0}, s{S_HEAD1}, 20", f"s_lshl_b32 s{S_T1}, s{S_RT1}, 17", f"s_add_u32 s{S_T0}, s{S_T0}, s{S_T1}",
      f"s_lshl_b32 s{S_T1}, s{S_WN}, 16", f"s_add_u32 s{S_T0}, s{S_T0}, s{S_T1}",
      f"s_lshl_b32 s{S_T1}, s{S_WM}, 11", f"s_add_u32 s{S_T2}, s{S_T0}, s{S_T1}",
      f"s_lshl_b32 s{S_T1}, s{S_WM}, 12", f"s_add_u32 s{S_T3}, s{S_T0}, s{S_T1}",
      )
    if LS:
        A(f"s_lshl_b32 s{S_DST2}, s{S_HEAD1}, 20", f"s_lshl_b32 s{S_T1}, s{S_N}, 16", f"s_add_u32 s{S_DST2}, s{S_DST2}, s{S_T1}",
          f"s_lshl_b32 s{S_T1}, s{S_WN}, 15", f"s_add_u32 s{S_DST2}, s{S_DST2}, s{S_T1}",
          f"s_lshl_b32 s{S_T1}, s{S_WM}, 11", f"s_add_u32 s{S_DST2}, s{S_DST2}, s{S_T1}", f"s_add_u32 s{S_DST2}, s{S_DST2}, {QF_OFF}")
        A(f"s_add_u32 s{S_T3}, s{S_T3}, {VF_OFF}", f"s_add_u32 s{S_T2}, s{S_T2}, {KF_OFF}",
          LO, f"s_cselect_b32 s{S_DST1}, s{S_T3}, s{S_T2}")
    else:
        A(f"s_add_u32 s{S_DST2}, s{S_T3}, {VF_OFF}", f"s_add_u32 s{S_T3}, s{S_T2}, {KF_OFF}", f"s_add_u32 s{S_T2}, s{S_T2}, {QF_OFF}",
          LO, f"s_cselect_b32 s{S_DST1}, s{S_T3}, s{S_T2}")
    A(f"s_lshl_b32 s{S_T0}, s{S_RT2}, 4", f"s_lshl_b32 s{S_T1}, s{S_WN}, 3", f"s_add_u32 s{S_T0}, s{S_T0}, s{S_T1}",
      f"s_mul_i32 s{S_T0}, s{S_T0}, {asmlib.AFS}", f"s_lshl_b32 s{S_T1}, s{S_C2}, 2", f"s_add_u32 s{S_T0}, s{S_T0}, s{S_T1}",
      f"s_lshl_b32 s{S_T1}, s{S_WM}, 1", f"s_add_u32 s{S_T0}, s{S_T0}, s{S_T1}", f"s_add_u32 s{S_T0}, s{S_T0}, 128",
      f"s_lshl_b32 s{S_T0}, s{S_T0}, 10", f"s_add_u32 s{S_T0}, s{S_T0}, {AF_OFF}",
      LO, f"s_cselect_b32 s{S_DST2}, s{S_T0}, s{S_DST2}")
    A(f"s_mov_b32 s{S_KIND}, s{P_WG}", f"s_mov_b32 s{S_STA2}, s{P_WG+1}")
    if CODE_BYTES:
        code_touch(A, CODE_BYTES); npf += 1
    if PREFETCH: prefetch_setup(A)
    A(f"v_mov_b32 v{V_RCUR}, v{V_RA}")
    A(f"s_waitcnt vmcnt({24+npf})", "s_barrier")
    A(reads_for(0, 0))
    A(f"s_waitcnt vmcnt({16+npf}) lgkmcnt(0)", "s_barrier")
    stamp(A, 1)
    A(LO, "s_cbranch_scc0 L_k1_hi")
    job(A, "k1L", "AW" if LS else "WA", 32, 0, True, pf=PREFETCH)
    stamp(A, 2)
    if "J1end" in hooks: hooks["J1end"](A)
    A(f"s_cmp_ge_u32 s{S_IDX}, 14", "s_cbranch_scc1 L_k1_side")
    early_dma(A, 0)
    aft = (epi_AW_stage if LS else epi_WA_stage)(A, S_DST1)
    stamp(A, 3)
    job(A, "k1G", "WA", 14, 0, False, after=aft, U=14, hook=hooks.get("J2", wl_hook), sig=hooks.get("sig"))
    stamp(A, 4)
    if "Gend" in hooks: hooks["Gend"](A)
    else:
        wl_finish(A); epi_GU(A, S_DST2); fin(A); A("s_endpgm")
    switch_code(A, "k1L")
    switch_code(A, "k1H")
    pf_blocks(A)
    A.label("L_k1_hi")
    job(A, "k1H", "WA", 32 if LS else 14, 0, True, pf=PREFETCH)
    stamp(A, 2)
    if "J1end" in hooks: hooks["J1end"](A)
    early_dma(A, 0 if LS else 2)
    aft = epi_WA_stage(A, S_DST1)
    stamp(A, 3)
    if LS: job(A, "k1Q", "WA", 14, 0, False, after=aft, U=14, hook=hooks.get("J2", wl_hook), sig=hooks.get("sig"))
    else: job(A, "k1V", "AW", 32, 2, False, after=aft, U=24 // TRICKLE, pf=PREFETCH, pf_roll=False)
    stamp(A, 4)
    assert LS
    if "Hend" in hooks: hooks["Hend"](A)
    else:
        wl_finish(A); (epi_WA if LS else epi_AW)(A, S_DST2); fin(A); A("s_endpgm")
    pf_blocks(A)
    A.label("L_k1_side")
    (epi_AW if LS else epi_WA)(A, S_DST1)
    stamp(A, 3)
    side_job(A, hooks["sig"][1] if "sig" in hooks else None)
    stamp(A, 4)
    if "Send" in hooks: hooks["Send"](A)
    else: fin(A)

def gen_k1(A, name="k1_kernel"):
    kernel_begin(A, name)
    A("s_cmp_ge_u32 s2, 256", "s_cbranch_scc1 L_k1_end")
    k1_body(A)
    A.label("L_k1_end")
    A("s_endpgm")

def desc_k1(A, name="k1_kernel"):
    kernel_desc(A, name, 512, 256)
```

```python
from asmlib import *
import asmlib

SRD_K, SRD_V, SRD_WS, SRD_DBG = 4, 8, 12, 60
S_W, S_W8192, S_CUR, S_NXT, S_KSO, S_VSO = 16, 17, 18, 19, 20, 21
S_T, S_T1N, S_EVA, S_MODE, S_QSO, S_C, S_THR = 22, 23, 24, 25, 26, 27, 28
S_T0, S_T1, S_T2, S_T3 = 29, 30, 31, 64
S_HEAD, S_PAIR, S_QB, S_EVB, S_WSSZ, S_PART, S_FLAG, S_KB0, S_VB0 = 65, 66, 67, 68, 69, 70, 71, 72, 73
S_POLLT, S_X = 82, 83
NT = 17
V_X8 = 24
V_SV = 20
SPLIT = 15
S_MASK = 74
V_L16, V_AK, V_AV, V_D0, V_D, V_MC, V_L, V_TS, V_T, V_X = 1, 2, 3, 4, 5, 6, 8, 10, 14, 16
S0, P0, O0 = 32, 96, 128
QA, FA, PA = 0, 64, 128
NSLOT = 5
PART_STRIDE = 4 * 17 * 1024
THR = 0x44800000

def S(par, kb, qb, r=0): return S0 + par * 32 + (kb * 2 + qb) * 4 + r
def P(par, ks, qb, d=0): return P0 + par * 16 + (ks * 2 + qb) * 4 + d
def O(db, qb, r=0): return O0 + (db * 2 + qb) * 4 + r
def Q(qb, ds): return QA + (qb * 8 + ds) * 4
def F(k): return FA + (k % 16) * 4
def TS(par, qb): return V_TS + par * 2 + qb

def rd(k, vaddr): return f"ds_read_b128 {ar(F(k),4)}, v{vaddr} offset:{(k % 32) * 1024}"

def qk_mfmas(par):
    m = []
    for kb in range(4):
        for ds in range(8):
            for qb in range(2):
                c = "0" if ds == 0 else vr(S(par, kb, qb), 4)
                m.append(f"v_mfma_f32_16x16x32_bf16 {vr(S(par,kb,qb),4)}, {ar(F(kb*8+ds),4)}, {ar(Q(qb,ds),4)}, {c}")
    return m
def pv_mfmas(par):
    m = []
    for ks in range(2):
        for db in range(16):
            for qb in range(2):
                m.append(f"v_mfma_f32_16x16x32_bf16 {vr(O(db,qb),4)}, {ar(F(ks*16+db),4)}, {vr(P(par,ks,qb),4)}, {vr(O(db,qb),4)}")
    return m

def sm_pair(par, h, p):
    kb, qb, rr = 2 * h + (p >> 2), (p >> 1) & 1, (p & 1) * 2
    xa, xb = V_X + (p & 1) * 2, V_X + (p & 1) * 2 + 1
    if h == 1 and p == 0: xa, xb = V_X8, V_X8 + 1
    ts = TS(par, qb)
    first = (h == 0 and (p >> 2) == 0 and (p & 1) == 0)
    return dict(
        fa=f"v_fma_f32 v{xa}, v{S(par,kb,qb,rr)}, s{S_C}, -v{V_MC+qb}",
        fb=f"v_fma_f32 v{xb}, v{S(par,kb,qb,rr+1)}, s{S_C}, -v{V_MC+qb}",
        ea=f"v_exp_f32 v{xa}, v{xa}", eb=f"v_exp_f32 v{xb}, v{xb}",
        aa=(f"v_mov_b32 v{ts}, v{xa}" if first else f"v_add_f32 v{ts}, v{ts}, v{xa}"),
        ab=f"v_add_f32 v{ts}, v{ts}, v{xb}",
        cv=f"v_cvt_pk_bf16_f32 v{P(par,h,qb,2*(kb&1)+(p&1))}, v{xa}, v{xb}")

def sm_plain(A, par, h, split=False):
    for p in range(0, 8, 2):
        a, b = sm_pair(par, h, p), sm_pair(par, h, p + 1)
        if split and h == 1 and p == 0:
            A(b["fa"], b["fb"], a["ab"], b["ea"], b["eb"], a["cv"], b["aa"], b["ab"], b["cv"])
        else:
            A(a["fa"], a["fb"], b["fa"], b["fb"], a["ea"], a["eb"], b["ea"], b["eb"],
              a["aa"], a["ab"], a["cv"], b["aa"], b["ab"], b["cv"])
    if split and h == 0:
        a = sm_pair(par, 1, 0)
        A(a["fa"], a["fb"], a["ea"], a["eb"], a["aa"])

def dma(srd, so, j): return f"buffer_load_dwordx4 v{V_L16}, {sr(srd,4)}, s{so} offen offset:{(j&3)*1024} lds"

def phase(A, kind, par, sm=True, dmas=True, look=True, extra=None):
    if kind == "A":
        m = qk_mfmas(1 - par); vcur, vnxt = V_AK, V_AV; srd, so = SRD_K, S_KSO
        nsrd, nso, nb0, ahead, ev = SRD_V, S_VSO, S_VB0, 2, S_EVA
        smp, smh = par, 1
    else:
        m = pv_mfmas(par); vcur, vnxt = V_AV, V_AK; srd, so = SRD_V, S_VSO
        nsrd, nso, nb0, ahead, ev = SRD_K, S_KSO, S_KB0, 4, S_EVB
        smp, smh = 1 - par, 0
    g = {}
    def put(k, *ins): g.setdefault(k, []).extend(ins)
    sc = {}
    if dmas:
        sc[3] = f"s_add_u32 s{S_NXT}, s{S_CUR}, 32768"
        sc[5] = f"s_cmp_eq_u32 s{S_NXT}, {NSLOT*32768}"
        sc[11] = f"s_cselect_b32 s{S_NXT}, 0, s{S_NXT}"
        sc[13] = f"s_add_u32 s{S_T0}, s{S_T}, {ahead}"
        sc[19] = f"s_cmp_lt_u32 s{S_T0}, {NT}"
        sc[21] = f"s_cselect_b32 s{nsrd+2}, s{S_WSSZ}, 0"
        sc[27] = "s_add_u32 m0, m0, 4096"
        sc[29] = f"s_add_u32 s{so}, s{so}, 4096"
        sc[35] = f"s_cmp_eq_u32 s{S_T0}, s{S_T1N}"
        sc[37] = f"s_cselect_b32 s{nso}, s{nb0}, s{nso}"
        if kind == "B": sc[43] = f"s_add_u32 s{S_T}, s{S_T}, 1"
        sc[45] = f"s_add_u32 s{S_T1}, s{S_CUR}, s{S_W8192}"
        sc[51] = f"s_mov_b32 s{S_CUR}, s{S_NXT}"
        sc[53] = f"s_add_u32 s{S_T2}, s{so}, 28672"
        sc[59] = f"s_bitcmp1_b32 s{ev}, s{S_T}"
        sc[61] = "s_barrier"
    for grp in range(8):
        b = grp * 8
        d = None
        if sm and kind == "B": d = sm_pair(smp, 0, grp)
        if sm and kind == "A" and grp < 7: d = sm_pair(smp, 1, grp + 1)
        for i in range(4):
            k = 4 * (grp + 2) + i
            if k < 32: put(b + 2 * i, rd(k, vcur))
            elif look: put(b + 2 * i, rd(k, vnxt))
        if dmas:
            put(b + 1, dma(srd, so, grp))
            if grp == 7: put(b + 1, "s_waitcnt vmcnt(16)")
        for k in (3, 5):
            if b + k in sc: put(b + k, sc[b + k])
        if grp < 7 or look:
            put(b + 7, "s_waitcnt lgkmcnt(4)" if (grp < 6 or look) else "s_waitcnt lgkmcnt(0)")
        if d:
            put(b + 0, d["fa"]); put(b + 2, d["fb"]); put(b + 3, d["ea"]); put(b + 5, d["eb"])
            put(b + 6, d["aa"]); put(b + 7, d["ab"], d["cv"])
    if look: put(5 * 8 + 4, f"v_add_u32 v{vnxt}, s{S_NXT}, v{V_L16}")
    if kind == "B":
        put(4, f"v_add_f32 v{V_L}, v{V_L}, v{TS(par,0)}")
        put(12, f"v_add_f32 v{V_L+1}, v{V_L+1}, v{TS(par,1)}")
    if sm:
        e = sm_pair(smp, 1, 0)
        if kind == "B":
            put(20, e["fa"]); put(28, e["fb"]); put(36, e["ea"]); put(52, e["eb"]); put(60, e["aa"])
        else:
            put(4, e["ab"]); put(12, e["cv"])
            put(56, f"v_add_f32 v{V_T}, v{TS(par,0)}, v{TS(par,1)}")
            put(58, f"v_cmp_nge_f32 vcc, s{S_THR}, v{V_T}")
    if dmas:
        if kind == "A": put(60, f"s_mov_b32 m0, s{S_T1}"); put(62, f"s_mov_b32 s{so}, s{S_T2}")
        else: put(57, f"s_mov_b32 m0, s{S_T1}")
    for k, v in (extra or {}).items(): g[k] = list(v) + g.get(k, [])
    interleave(A, m, g)
    if dmas and kind == "B": A(f"s_mov_b32 s{so}, s{S_T2}")

def check(A, par, tag):
    A(f"v_add_f32 v{V_T}, v{TS(par,0)}, v{TS(par,1)}",
      f"v_cmp_nge_f32 vcc, s{S_THR}, v{V_T}")

def xmax(A, v, t):
    A(f"v_mov_b32 v{t}, v{v}", "s_nop 1", f"v_permlane16_swap_b32 v{v}, v{t}", "s_nop 1", f"v_max_f32 v{v}, v{v}, v{t}",
      f"v_mov_b32 v{t}, v{v}", "s_nop 1", f"v_permlane32_swap_b32 v{v}, v{t}", "s_nop 1", f"v_max_f32 v{v}, v{v}, v{t}")
def xsum(A, v, t):
    A(f"v_mov_b32 v{t}, v{v}", "s_nop 1", f"v_permlane16_swap_b32 v{v}, v{t}", "s_nop 1", f"v_add_f32 v{v}, v{v}, v{t}",
      f"v_mov_b32 v{t}, v{v}", "s_nop 1", f"v_permlane32_swap_b32 v{v}, v{t}", "s_nop 1", f"v_add_f32 v{v}, v{v}, v{t}")

def rowmax(A, par, qb, dst, t):
    regs = [S(par, kb, qb, r) for kb in range(4) for r in range(4)]
    A(f"v_max3_f32 v{dst}, v{regs[0]}, v{regs[1]}, v{regs[2]}")
    for i in range(3, 15, 2):
        A(f"v_max3_f32 v{dst}, v{dst}, v{regs[i]}, v{regs[i+1]}")
    A(f"v_max_f32 v{dst}, v{dst}, v{regs[15]}")
    xmax(A, dst, t)
    A(f"v_mul_f32 v{dst}, s{S_C}, v{dst}")

def slow(A, par, lab, back):
    A.label(lab)
    for qb in range(2):
        rowmax(A, par, qb, V_T, V_T + 1)
        A(f"v_max_f32 v{V_T}, v{V_T}, v{V_MC+qb}",
          f"v_sub_f32 v{V_T+1}, v{V_MC+qb}, v{V_T}", f"v_exp_f32 v{V_T+1}, v{V_T+1}",
          f"v_mov_b32 v{V_MC+qb}, v{V_T}",
          f"v_mul_f32 v{V_L+qb}, v{V_L+qb}, v{V_T+1}")
        for db in range(16):
            for r in range(4): A(f"v_mul_f32 v{O(db,qb,r)}, v{O(db,qb,r)}, v{V_T+1}")
    sm_plain(A, par, 0); sm_plain(A, par, 1)
    A("s_nop 1", f"s_branch {back}")

def mask(A, par, toff):
    A(f"s_sub_u32 s{S_T0}, s{S_T}, {NT - 2 - toff}", f"s_lshl_b32 s{S_T0}, s{S_T0}, 6",
      f"s_lshl_b32 s{S_T1}, s{S_W}, 5", f"s_sub_u32 s{S_T0}, s{S_T1}, s{S_T0}",
      f"v_add_u32 v{V_D}, s{S_T0}, v{V_D0}", f"v_mov_b32 v{V_T}, 0xff800000", "s_nop 4")
    for kb in range(4):
        for qb in range(2):
            for r in range(4):
                A(f"v_cmp_le_i32 {sr(S_MASK+2*r,2)}, {16*kb + r - 16*qb}, v{V_D}")
            for r in range(4):
                A(f"v_cndmask_b32 v{S(par,kb,qb,r)}, v{V_T}, v{S(par,kb,qb,r)}, {sr(S_MASK+2*r,2)}")

def q_loads(A, base, srd):
    for qb in range(2):
        for ds in range(8):
            if ds % 4 == 0: A(f"s_add_u32 s{S_T0}, s{S_QSO}, {(qb*8+ds)*1024}")
            A(f"buffer_load_dwordx4 {ar(base + (qb*8+ds)*4,4)}, v{V_L16}, {sr(srd,4)}, s{S_T0} offen offset:{(ds%4)*1024}")

def item_load(A, slot, kind, t):
    srd, so, b0 = (SRD_K, S_KSO, S_KB0) if kind == "K" else (SRD_V, S_VSO, S_VB0)
    if t: A(f"s_cmp_eq_u32 s{S_T1N}, {t}", f"s_cselect_b32 s{so}, s{b0}, s{so}")
    for hf in range(2):
        A(f"s_add_u32 m0, s{S_W8192}, {slot*32768 + hf*4096}", "s_nop 0")
        for j in range(4): A(dma(srd, so, j))
        A(f"s_add_u32 s{so}, s{so}, {28672 if hf else 4096}")

def q_off(A, qblk):
    A(f"s_lshl_b32 s{S_T0}, s{S_HEAD}, 20", f"s_lshl_b32 s{S_T1}, s{qblk}, 16", f"s_add_u32 s{S_QSO}, s{S_T0}, s{S_T1}",
      f"s_lshl_b32 s{S_T1}, s{S_W}, 14", f"s_add_u32 s{S_QSO}, s{S_QSO}, s{S_T1}")
    if QF_OFF: A(f"s_add_u32 s{S_QSO}, s{S_QSO}, {QF_OFF}")

def pack_pair(A, x, y):
    A(f"v_cvt_pk_bf16_f32 v{x}, v{x}, v{x+1}", f"v_cvt_pk_bf16_f32 v{x+1}, v{x+2}, v{x+3}",
      f"v_cvt_pk_bf16_f32 v{x+2}, v{y}, v{y+1}", f"v_cvt_pk_bf16_f32 v{x+3}, v{y+2}, v{y+3}")

FINAL_SC = " sc0 sc1"
DIAG2 = False
_stamp0 = stamp
SMAP = {1: 3, 2: None, 3: 4}
def stamp(A, k):
    k = SMAP.get(k)
    if k is not None: _stamp0(A, k)

def final_store(A):
    A(f"s_lshl_b32 s{S_T0}, s{S_QB}, 3", f"s_lshl_b32 s{S_T1}, s{S_W}, 1", f"s_add_u32 s{S_T0}, s{S_T0}, s{S_T1}",
      f"s_mul_i32 s{S_T0}, s{S_T0}, {asmlib.AFS}", f"s_lshl_b32 s{S_T1}, s{S_HEAD}, 3", f"s_add_u32 s{S_T0}, s{S_T0}, s{S_T1}",
      f"s_lshl_b32 s{S_T0}, s{S_T0}, 10", f"s_add_u32 s{S_T0}, s{S_T0}, {AF_OFF}")

def poll_partner(A, idx):
    A(f"v_mov_b32 v{V_T+1}, 0")
    poll(A, [(f"buffer_load_dword v{V_T}, v{V_T+1}, {sr(SRD_WS,4)}, s{S_FLAG} offen offset:{4*idx} sc0 sc1", V_T, 1)], S_T1)

def poll_and_fetch(A, tag):
    poll_partner(A, F_PART)
    for i in range(16):
        if i % 4 == 0: A(f"s_add_u32 s{S_T0}, s{S_PART}, {i*1024}")
        A(f"buffer_load_dwordx4 {ar(PA+4*i,4)}, v{V_L16}, {sr(SRD_WS,4)}, s{S_T0} offen offset:{(i%4)*1024} sc0 sc1")
    A(f"s_add_u32 s{S_T0}, s{S_PART}, {16*1024}")
    A(f"buffer_load_dwordx4 {vr(V_SV,4)}, v{V_L16}, {sr(SRD_WS,4)}, s{S_T0} offen sc0 sc1")

def k2_setup1(A):
    A(f"v_lshlrev_b32 v{V_L16}, 4, v0")
    A(f"s_lshl_b32 s{S_W8192}, s{S_W}, 13",
      f"s_and_b32 s{S_T0}, s2, 7", f"s_lshr_b32 s{S_T1}, s2, 3",
      f"s_lshl_b32 s{S_HEAD}, s{S_T0}, 1", f"s_bfe_u32 s{S_T0}, s{S_T1}, 0x10003", f"s_add_u32 s{S_HEAD}, s{S_HEAD}, s{S_T0}",
      f"s_lshr_b32 s{S_MODE}, s{S_T1}, 4",
      f"s_and_b32 s{S_PAIR}, s{S_T1}, 7",
      f"s_sub_u32 s{S_QB}, 15, s{S_PAIR}",
      f"s_lshl_b32 s{S_T2}, s{S_PAIR}, 1", f"s_sub_u32 s{S_T2}, {SPLIT}, s{S_T2}")
    q_off(A, S_QB)
    A(f"s_add_u32 s{S_T0}, s{S_T0}, s{S_W8192}",
      f"s_add_u32 s{S_KB0}, s{S_T0}, {KF_OFF}", f"s_add_u32 s{S_VB0}, s{S_T0}, {VF_OFF}",
      f"s_lshl_b32 s{S_T1}, s{S_T2}, 15",
      f"s_cmp_eq_u32 s{S_MODE}, 0",
      f"s_cselect_b32 s{S_T1}, s{S_T1}, 0", f"s_cselect_b32 s{S_T1N}, 0x7fff, s{S_T2}",
      f"s_add_u32 s{S_KSO}, s{S_KB0}, s{S_T1}", f"s_add_u32 s{S_VSO}, s{S_VB0}, s{S_T1}",
      f"s_mov_b32 s{S_WSSZ}, {WS_BYTES}")
    for srd in (SRD_K, SRD_V):
        A(f"s_mov_b32 s{srd}, s{P_WS}", f"s_mov_b32 s{srd+1}, s{P_WS+1}", f"s_mov_b32 s{srd+2}, {WS_BYTES}",
          f"s_mov_b32 s{srd+3}, 0x20000")
    A(f"s_mov_b32 s{SRD_DBG}, s{P_DBG}", f"s_mov_b32 s{SRD_DBG+1}, s{P_DBG+1}", f"s_mov_b32 s{SRD_DBG+2}, 256",
      f"s_mov_b32 s{SRD_DBG+3}, 0x20000")
    A(f"s_or_b32 s{S_FLAG}, s2, 128", f"s_lshl_b32 s{S_FLAG}, s{S_FLAG}, 8", f"s_add_u32 s{S_FLAG}, s{S_FLAG}, {FL_OFF}")

V_KA, V_KF, S_KA = 21, 22, 36
def kv_addr():
    return [f"v_and_b32 v{V_KA}, 7, v0", f"v_lshlrev_b32 v{V_KA}, 11, v{V_KA}", f"v_bfe_u32 v{V_KF}, v0, 3, 1",
      f"v_lshl_add_u32 v{V_KA}, v{V_KF}, 15, v{V_KA}",
      f"s_and_b32 s{S_KA}, s2, 0x47", f"s_lshl_b32 s{S_KA}, s{S_KA}, 8", f"s_add_u32 s{S_KA}, s{S_KA}, {FL_OFF + 4*F_KV}"]
def kv_issue(): return f"buffer_load_dword v{V_KF}, v{V_KA}, {sr(SRD_WS,4)}, s{S_KA} offen sc0 sc1"
def kv_check(A, early=True):
    asmlib._lbl[0] += 1
    l = f"L_kv{asmlib._lbl[0]}"
    A(f"s_mov_b32 s{S_T2}, 256", f"v_cmp_ne_u32 vcc, s{S_T2}, v30", f"v_mov_b32 v{V_D}, 0", "s_nop 3", f"s_cbranch_vccnz {l}_s")
    if early: A(f"v_cmp_ne_u32 vcc, 1, v{V_KF}", "s_nop 4", f"s_cbranch_vccz {l}_ok")
    A(f"s_branch {l}_p", f"{l}_s:")
    poll(A, [(f"buffer_load_dword v{V_T}, v{V_D}, {sr(SRD_DBG,4)}, 0 offen sc0 sc1", V_T, f"s{S_T2}")], S_T1, sleep=32)
    A(f"{l}_p:")
    poll(A, [(kv_issue(), V_KF, 1)], S_T1)
    A(f"{l}_ok:")

def k2_setup2(A):
    A(f"v_and_b32 v{V_D0}, 15, v0", f"v_lshrrev_b32 v{V_T}, 4, v0", f"v_lshlrev_b32 v{V_T}, 2, v{V_T}",
      f"v_sub_u32 v{V_D0}, v{V_D0}, v{V_T}")
    A(f"s_mov_b32 s{S_C}, 0x3db8aa3b", f"s_mov_b32 s{S_THR}, {THR}")
    A(f"s_lshl_b32 s{S_T0}, s{S_HEAD}, 3", f"s_add_u32 s{S_T0}, s{S_T0}, s{S_PAIR}",
      f"s_mul_i32 s{S_PART}, s{S_T0}, {PART_STRIDE}", f"s_mul_i32 s{S_T1}, s{S_W}, {17*1024}",
      f"s_add_u32 s{S_PART}, s{S_PART}, s{S_T1}", f"s_add_u32 s{S_PART}, s{S_PART}, {PART_OFF}")
    A(f"s_sub_u32 s{S_X}, s{S_T1N}, 1", f"s_lshl_b32 s{S_T0}, 3, s{S_X}",
      f"s_cmp_eq_u32 s{S_MODE}, 0", f"s_cselect_b32 s{S_T0}, 0, s{S_T0}",
      f"s_or_b32 s{S_EVA}, s{S_T0}, {3 << (NT-3)}", f"s_or_b32 s{S_EVB}, s{S_T0}, {(3 << (NT-2)) | sum(1 << u for u in DEFER)}",
      f"s_mov_b32 s{S_POLLT}, {NT-2}",
      f"s_cmp_eq_u32 s{S_PAIR}, 0", f"s_cselect_b32 s{S_POLLT}, {NT-1}, s{S_POLLT}",
      f"s_cmp_eq_u32 s{S_MODE}, 1", f"s_cselect_b32 s{S_POLLT}, 0x7fff, s{S_POLLT}")
    A(f"v_mov_b32 v{V_L}, 0", f"v_mov_b32 v{V_L+1}, 0", f"s_mov_b32 s{S_T}, 0")
    A(f"v_add_u32 v{V_AV}, {slot_of(0)*32768}, v{V_L16}", f"v_add_u32 v{V_AK}, {slot_of(1)*32768}, v{V_L16}")

ITEMS = (("K", 0), ("K", 1), ("V", 0), ("K", 2), ("V", 1))
SLOT0 = 4
def slot_of(n): return (n + SLOT0) % NSLOT
def items(A, lo, hi):
    for n in range(lo, hi): item_load(A, slot_of(n), *ITEMS[n])
    if hi == 5: A(f"s_cmp_eq_u32 s{S_T1N}, 3", f"s_cselect_b32 s{S_KSO}, s{S_KB0}, s{S_KSO}")
def chunks(lines, per):
    out, cur, n = [], [], 0
    for l in lines:
        if l.startswith("buffer_") and n == per:
            out.append(cur); cur, n = [], 0
        cur.append(l)
        if l.startswith("buffer_"): n += 1
    out.append(cur)
    return out

def p0(A, extra=None):
    for k in range(8): A(rd(k, V_AV))
    m = qk_mfmas(0)
    g = {}
    for grp in range(6):
        for i in range(4):
            g.setdefault(grp * 8 + 2 * i, []).append(rd(4 * (grp + 2) + i, V_AV))
    for k, v in (extra or {}).items(): g.setdefault(k, []).extend(v)
    for grp in range(7): g.setdefault(grp * 8 + 7, []).append("s_waitcnt lgkmcnt(4)" if grp < 6 else "s_waitcnt lgkmcnt(0)")
    z = [f"v_pk_mul_f32 {vr(O0+2*i,2)}, 0, 0" if False else f"v_mov_b64 {vr(O0+2*i,2)}, 0" for i in range(64)]
    for k in range(64): g.setdefault(k, []).append(z[k])
    A("s_waitcnt lgkmcnt(4)")
    interleave(A, m, g)

TAILX = []
TAILCHK = None
DEFER = {}
def k2_main(A, done):
    A("s_nop 7")
    for qb in range(2): rowmax(A, 0, qb, V_MC + qb, V_T)
    A("s_waitcnt vmcnt(16)", "s_barrier")
    for k in range(8): A(rd(k, V_AK))
    sm_plain(A, 0, 0, split=True)
    A(f"s_mov_b32 s{S_CUR}, {slot_of(1)*32768}", f"s_add_u32 m0, s{S_W8192}, {slot_of(0)*32768}", "s_waitcnt lgkmcnt(4)")
    stamp(A, 2)
    A(f"s_bitcmp1_b32 s{S_EVB}, 0", "s_cbranch_scc1 L_k2_evb0")
    A(".p2align 6")
    for par in range(2):
        A.label(f"L_k2_a{par}")
        if DIAG2 and par == 0 and asmlib.STAMPS:
            for k, u in ((2, 2), (3, 6), (4, 14)):
                A(f"s_cmp_eq_u32 s{S_T}, {u}", f"s_cbranch_scc0 L_k2_ns{k}"); _stamp0(A, k); A.label(f"L_k2_ns{k}")
        phase(A, "A", par)
        A(f"s_cbranch_scc1 L_k2_eva{par}")
        A(f"s_cbranch_vccnz L_k2_slow{par}")
        A.label(f"L_k2_b{par}")
        phase(A, "B", par)
        if par == 0: A("s_cbranch_scc1 L_k2_evb1")
        else: A("s_cbranch_scc0 L_k2_a0")
    A.label("L_k2_evb0")
    A(f"s_cmp_eq_u32 s{S_T}, {NT-1}", "s_cbranch_scc1 L_k2_tail")
    for u, f in DEFER.items():
        A(f"s_cmp_eq_u32 s{S_T}, {u}", f"s_cbranch_scc0 L_k2_nd{u}")
        f(A)
        A.label(f"L_k2_nd{u}")
    A(f"s_cmp_eq_u32 s{S_T}, s{S_X}", "s_cbranch_scc0 L_k2_a0")
    for i in range(64): A(f"v_accvgpr_mov_b32 a{QA+i}, a{PA+i}")
    A("s_nop 1", "s_branch L_k2_a0")
    A.label("L_k2_evb1")
    A(f"s_cmp_eq_u32 s{S_T}, s{S_T1N}", "s_cbranch_scc1 L_k2_ostore")
    A(f"s_cmp_eq_u32 s{S_T}, s{S_POLLT}", "s_cbranch_scc0 L_k2_a1")
    poll_and_fetch(A, "L")
    A("s_branch L_k2_a1")
    A.label("L_k2_ostore")
    A("s_nop 4")
    for i in range(16):
        qb, dp = i >> 3, i & 7
        if i % 4 == 0: A(f"s_add_u32 s{S_T0}, s{S_PART}, {i*1024}")
        x, y = O(2 * dp, qb), O(2 * dp + 1, qb)
        pack_pair(A, x, y)
        A(f"buffer_store_dwordx4 {vr(x,4)}, v{V_L16}, {sr(SRD_WS,4)}, s{S_T0} offen offset:{(i%4)*1024} sc0 sc1")
        for r in range(4): A(f"v_mov_b32 v{y+r}, 0")
        for r in range(4): A(f"v_mov_b32 v{x+r}, 0")
    A(f"s_add_u32 s{S_T0}, s{S_PART}, {16*1024}")
    A(f"buffer_store_dwordx4 {vr(V_SV,4)}, v{V_L16}, {sr(SRD_WS,4)}, s{S_T0} offen sc0 sc1")
    A(f"s_mov_b32 s{S_QB}, s{S_PAIR}", "s_branch L_k2_a1")
    for par in range(2):
        A.label(f"L_k2_eva{par}")
        A(f"s_cbranch_vccnz L_k2_eslow{par}")
        A.label(f"L_k2_eslowback{par}")
        A(f"s_cmp_lt_u32 s{S_T}, {NT-3}", f"s_cbranch_scc1 L_k2_nomask{par}")
        mask(A, 1 - par, 1)
        A.label(f"L_k2_nomask{par}")
        if par == 0:
            A(f"s_cmp_eq_u32 s{S_T}, s{S_X}", "s_cbranch_scc0 L_k2_b0", "s_nop 4")
            for qb in range(2):
                A(f"v_mov_b32 v{V_SV+qb}, v{V_MC+qb}", f"v_add_f32 v{V_SV+2+qb}, v{V_L+qb}, v{TS(0,qb)}",
                  f"v_mov_b32 v{V_L+qb}, 0", f"v_mov_b32 v{TS(0,qb)}, 0")
                rowmax(A, 1, qb, V_MC + qb, V_T)
            A("s_branch L_k2_b0")
        else:
            A(f"s_cmp_eq_u32 s{S_T}, s{S_T1N}", "s_cbranch_scc0 L_k2_b1")
            A("s_waitcnt vmcnt(8)", "s_barrier")
            signal(A, SRD_WS, S_W, F_PART, V_T, S_T0)
            A("s_branch L_k2_b1")
    A.label("L_k2_tail")
    A(f"s_add_u32 s{S_NXT}, s{S_CUR}, 32768", f"s_cmp_eq_u32 s{S_NXT}, {NSLOT*32768}", f"s_cselect_b32 s{S_NXT}, 0, s{S_NXT}",
      f"v_add_u32 v{V_AV}, s{S_NXT}, v{V_L16}", "s_waitcnt lgkmcnt(0)")
    for k in range(8): A(rd(k, V_AV))
    sm_plain(A, 0, 1, split=True)
    A("s_waitcnt vmcnt(0)")
    TAILCHK(A)
    A("s_barrier")
    A(f"s_cmp_eq_u32 s{S_POLLT}, {NT-1}", "s_cbranch_scc0 L_k2_nopoll")
    poll_and_fetch(A, "T")
    A.label("L_k2_nopoll")
    check(A, 0, "")
    A("s_nop 1", "s_cbranch_vccnz L_k2_tslow")
    A.label("L_k2_tslowback")
    A("s_waitcnt lgkmcnt(4)")
    assert slot_of(2 * NT) == 3
    phase(A, "B", 0, sm=False, dmas=False, look=False, extra={2 * k + 1: c for k, c in enumerate(TAILX)})
    stamp(A, 3)
    final_store(A)
    def scale_store(scale):
        for qb in range(2):
            for dp in range(8):
                if dp % 4 == 0: A(f"s_add_u32 s{S_T1}, s{S_T0}, {qb*asmlib.AFS*1024 + dp*1024}")
                x, y = O(2 * dp, qb), O(2 * dp + 1, qb)
                scale(qb, dp)
                pack_pair(A, x, y)
                A(f"buffer_store_dwordx4 {vr(x,4)}, v{V_L16}, {sr(SRD_WS,4)}, s{S_T1} offen offset:{(dp%4)*1024}{FINAL_SC}")
    A(f"s_cmp_eq_u32 s{S_MODE}, 0", "s_cbranch_scc1 L_k2_epi_comb")
    for qb in range(2):
        xsum(A, V_L + qb, V_T)
        A(f"v_rcp_f32 v{V_L+qb}, v{V_L+qb}")
    A("s_nop 0")
    def sc_plain(qb, dp):
        for db in (2 * dp, 2 * dp + 1):
            for r in range(4): A(f"v_mul_f32 v{O(db,qb,r)}, v{O(db,qb,r)}, v{V_L+qb}")
    scale_store(sc_plain)
    done(A, "B")
    A.label("L_k2_epi_comb")
    A(f"s_waitcnt vmcnt({len(TAILX)})")
    WA_, WB_ = V_X, V_X + 2
    for qb in range(2):
        A(f"v_max_f32 v{V_T}, v{V_MC+qb}, v{V_SV+qb}",
          f"v_sub_f32 v{WA_+qb}, v{V_MC+qb}, v{V_T}", f"v_sub_f32 v{WB_+qb}, v{V_SV+qb}, v{V_T}",
          f"v_exp_f32 v{WA_+qb}, v{WA_+qb}", f"v_exp_f32 v{WB_+qb}, v{WB_+qb}", "s_nop 0",
          f"v_mul_f32 v{V_L+qb}, v{V_L+qb}, v{WA_+qb}", f"v_fma_f32 v{V_L+qb}, v{V_SV+2+qb}, v{WB_+qb}, v{V_L+qb}")
        xsum(A, V_L + qb, V_T)
        A(f"v_rcp_f32 v{V_L+qb}, v{V_L+qb}", "s_nop 0",
          f"v_mul_f32 v{WA_+qb}, v{WA_+qb}, v{V_L+qb}", f"v_mul_f32 v{WB_+qb}, v{WB_+qb}, v{V_L+qb}")
    A(f"s_mov_b32 s{S_T2}, 0xffff0000")
    def sc_comb(qb, dp):
        i = qb * 8 + dp
        t = S0 + (i & 1) * 8
        regs = [O(2 * dp, qb, r) for r in range(4)] + [O(2 * dp + 1, qb, r) for r in range(4)]
        for d in range(4): A(f"v_accvgpr_read_b32 v{t+2*d+1}, a{PA + 4*i + d}")
        for r in regs: A(f"v_mul_f32 v{r}, v{r}, v{WA_+qb}")
        for d in range(4):
            A(f"v_lshlrev_b32 v{t+2*d}, 16, v{t+2*d+1}", f"v_and_b32 v{t+2*d+1}, s{S_T2}, v{t+2*d+1}")
        for k, r in enumerate(regs): A(f"v_fma_f32 v{r}, v{t+k}, v{WB_+qb}, v{r}")
    scale_store(sc_comb)
    done(A, "A")
    for par in range(2):
        slow(A, par, f"L_k2_slow{par}", f"L_k2_b{par}")
        slow(A, par, f"L_k2_eslow{par}", f"L_k2_eslowback{par}")
    slow(A, 0, "L_k2_tslow", "L_k2_tslowback")
```

```python
from asmlib import *
import asmlib

SRD_WS, SRD_OUT = 12, 48
S_W = 16
S_QB, S_CT, S_J, S_AH, S_AC, S_WH, S_WC, S_WSO3, S_M0, S_T0, S_T1, S_T2, S_RED, S_FL = range(32, 46)
V_L16, V_AO, V_AUX, V_AUXA = 1, 26, 28, 29
V_T, V_G, V_RD = 4, 8, 10
D = 4
NH, NC = 7, 16
NS = NH + NC
PS = 6
VGAPS = [1, 4, 8, 11, 15, 18, 22, 25]
WGAP = 27
ACC_A, ACC_B = 32, 96
AF_R, WF_R = 0, 80
WF_CT = KSTEPS3 * 7 * 1024
def nslot(): return D + 1

_stamp0 = stamp
SMAP = {}
def stamp(A, k):
    k = SMAP.get(k)
    if k is not None: _stamp0(A, k)

def areg(s, k, rb): return AF_R + (s % (D + 1)) * 16 + (k * 2 + rb) * 4
def wreg(s, k, cb): return WF_R + (s & 1) * 56 + (k * 7 + cb) * 4
def acc(s, cb, rb): return (ACC_B if s < NH else ACC_A) + (rb * 7 + cb) * 4
def kbase(s): return 2 * s if s < NH else 2 * (s - NH)

def w_loads(s):
    pre = [f"s_add_u32 m0, s{S_M0}, {(s % nslot()) * 16384}",
           f"s_add_u32 s{S_T0}, s{S_WH if s < NH else S_WC}, {kbase(s) * 7168}",
           f"s_add_u32 s{S_T1}, s{S_T0}, s{S_WSO3}"]
    L = [f"buffer_load_dwordx4 v{V_L16}, {sr(SRD_WS,4)}, s{S_T0} offen offset:{j*1024} lds" for j in range(3)]
    L.append(f"buffer_load_dwordx4 v{V_L16}, {sr(SRD_WS,4)}, s{S_T1} offen offset:3072 lds")
    return pre, L
def a_loads(s):
    pre = [f"s_add_u32 s{S_T2}, s{S_AH if s < NH else S_AC}, {kbase(s) * 1024}"]
    L = [f"buffer_load_dwordx4 {ar(areg(s,k,rb),4)}, v{V_AO+rb}, {sr(SRD_WS,4)}, s{S_T2} offen offset:{k*1024}"
         for k in range(2) for rb in range(2)]
    return pre, L
def fpos(f):
    if f < 8: return f * 1024
    if f < 11: return 8192 + (f - 8) * 1024
    return 12288 + (f - 11) * 1024
def reads(s):
    o = (s % nslot()) * 16384
    v = V_RD + o // 49152
    o = o % 49152
    return [f"ds_read_b128 {ar(wreg(s,k,cb),4)}, v{v} offset:{o + fpos(k*7+cb)}" for k in range(2) for cb in range(7)]

def setup(A):
    A(f"s_and_b32 s{S_T0}, s2, 7", f"s_lshr_b32 s{S_J}, s{S_T0}, 1", f"s_and_b32 s{S_T0}, s{S_T0}, 1",
      f"s_lshl_b32 s{S_QB}, s{S_T0}, 3", f"s_lshr_b32 s{S_T1}, s2, 5", f"s_add_u32 s{S_QB}, s{S_QB}, s{S_T1}",
      f"s_lshr_b32 s{S_CT}, s2, 3", f"s_and_b32 s{S_CT}, s{S_CT}, 3")
    A(f"v_mov_b32 v{V_AO}, v{V_L16}", f"v_add_u32 v{V_AO+1}, {asmlib.AFS*1024}, v{V_L16}")
    A(f"s_lshl_b32 s{S_T0}, s{S_QB}, 2", f"s_add_u32 s{S_T0}, s{S_T0}, s{S_W}", f"s_mul_i32 s{S_T0}, s{S_T0}, {2*asmlib.AFS*1024}",
      f"s_add_u32 s{S_T0}, s{S_T0}, {AF_OFF}",
      f"s_mul_i32 s{S_T1}, s{S_J}, {14*1024}", f"s_add_u32 s{S_AH}, s{S_T0}, s{S_T1}", f"s_add_u32 s{S_AH}, s{S_AH}, {128*1024}",
      f"s_lshl_b32 s{S_T1}, s{S_J}, 15", f"s_add_u32 s{S_AC}, s{S_T0}, s{S_T1}")
    A(f"s_mul_i32 s{S_T0}, s{S_CT}, {WF_CT}", f"s_lshl_b32 s{S_T1}, s{S_W}, 12", f"s_add_u32 s{S_T0}, s{S_T0}, s{S_T1}",
      f"s_cmp_eq_u32 s{S_W}, 3", f"s_cselect_b32 s{S_T1}, 1024, 0", f"s_sub_u32 s{S_T0}, s{S_T0}, s{S_T1}",
      f"s_add_u32 s{S_T0}, s{S_T0}, {WF_OFF}",
      f"s_mul_i32 s{S_T1}, s{S_J}, {14*7168}", f"s_add_u32 s{S_WH}, s{S_T0}, s{S_T1}", f"s_add_u32 s{S_WH}, s{S_WH}, {128*7168}",
      f"s_mul_i32 s{S_T1}, s{S_J}, {32*7168}", f"s_add_u32 s{S_WC}, s{S_T0}, s{S_T1}",
      f"s_cmp_ge_u32 s{S_W}, 2", f"s_cselect_b32 s{S_WSO3}, 0x40000000, 0",
      f"s_lshl_b32 s{S_M0}, s{S_W}, 12")
    A(f"s_lshl_b32 s{S_T0}, s{S_J}, 5", f"s_mul_i32 s{S_T1}, s{S_J}, 14", f"s_add_u32 s{S_T2}, s{S_T1}, 96",
      f"v_min_u32 v{V_AUX}, 45, v0", f"v_add_u32 v{V_AUXA}, s{S_T0}, v{V_AUX}", f"v_add_u32 v{V_AUX}, s{S_T2}, v{V_AUX}",
      f"v_cmp_gt_u32 vcc, 32, v0", "s_nop 1", f"v_cndmask_b32 v{V_AUXA}, v{V_AUX}, v{V_AUXA}, vcc")
    A(f"s_lshr_b32 s{S_T1}, s{S_T1}, 2")
    for k in range(5):
        A(f"s_add_u32 s{S_T0}, s{S_T1}, {k}", f"s_min_u32 s{S_T0}, s{S_T0}, 13", f"s_lshl_b32 s{S_T0}, s{S_T0}, 3",
          f"s_lshr_b32 s{S_T2}, s{S_QB}, 1", f"s_add_u32 s{S_T0}, s{S_T0}, s{S_T2}",
          f"s_mul_i32 s{S_T2}, s{S_T0}, 4682", f"s_lshr_b32 s{S_T2}, s{S_T2}, 16",
          f"s_lshl_b32 s{S_T0}, s{S_T0}, 3", f"s_mul_i32 s{S_T2}, s{S_T2}, 111", f"s_sub_u32 s{S_T0}, s{S_T0}, s{S_T2}",
          f"v_writelane_b32 v{V_AUXA}, s{S_T0}, {46 + k}")
    A(f"s_add_u32 s{S_T0}, s{S_QB}, 112", f"v_writelane_b32 v{V_AUXA}, s{S_T0}, 51",
      f"v_lshlrev_b32 v{V_AUXA}, 8, v{V_AUXA}", f"s_mov_b32 s{S_FL}, {FL_OFF + 4*F_AUX}")
    asmlib._lbl[0] += 1
    l = f"L_aux{asmlib._lbl[0]}"
    A(f"v_mov_b32 v{V_AUX}, 1", f"s_cmp_eq_u32 s{S_W}, 0", f"s_cbranch_scc0 {l}", aux_issue(), f"{l}:")
def aux_issue(): return f"buffer_load_dword v{V_AUX}, v{V_AUXA}, {sr(SRD_WS,4)}, s{S_FL} offen sc0 sc1"
def aux_check(A):
    asmlib._lbl[0] += 1
    l = f"L_auxc{asmlib._lbl[0]}"
    A(f"v_cmp_ne_u32 vcc, 1, v{V_AUX}", "s_nop 4", f"s_cbranch_vccz {l}")
    poll(A, [(aux_issue(), V_AUX, 1)], S_T1)
    A(f"{l}:")

def prefetch_chunks():
    out = []
    for s in range(D):
        for f in (w_loads, a_loads):
            pre, L = f(s)
            if out: out[-1].extend(pre)
            else: L[0] = L[0]; out.append(list(pre))
            for x in L: out.append([x])
    first = out.pop(0)
    out[0] = first + out[0]
    return out

def body(A, nstores):
    order = []
    for s in range(D): order += [("w", s)] * 4 + [("a", s)] * 4
    order += ["st"] * nstores
    A(f"v_mov_b32 v{V_RD}, v{V_L16}", f"v_add_u32 v{V_RD+1}, 49152, v{V_L16}")
    A(f"v_and_b32 v{V_T}, 15, v0", f"v_lshlrev_b32 v{V_T}, 2, v{V_T}",
      f"s_lshl_b32 s{S_T0}, s{S_QB}, 2", f"s_add_u32 s{S_T0}, s{S_T0}, s{S_W}", f"s_lshl_b32 s{S_T0}, s{S_T0}, 7",
      f"s_add_u32 s{S_T0}, s{S_T0}, {G_OFF}")
    for rb in range(2):
        A(f"buffer_load_dword v{V_G+rb}, v{V_T}, {sr(SRD_WS,4)}, s{S_T0} offen offset:{rb*64}"); order.append("g")
    A(f"s_sub_u32 s{S_T0}, 15, s{S_QB}", f"s_add_u32 s{S_T1}, s{S_QB}, 16", f"s_cmp_ge_u32 s{S_QB}, 8",
      f"s_cselect_b32 s{S_T0}, s{S_T0}, s{S_T1}", f"s_lshl_b32 s{S_T0}, s{S_T0}, 3", f"s_lshl_b32 s{S_T1}, s{S_J}, 1",
      f"s_add_u32 s{S_T0}, s{S_T0}, s{S_T1}", f"s_lshl_b32 s{S_FL}, s{S_T0}, 8", f"s_add_u32 s{S_FL}, s{S_FL}, {FL_OFF + 4*F_CTX}",
      f"v_and_b32 v{V_AUXA}, 1, v0", f"v_lshlrev_b32 v{V_AUXA}, 14, v{V_AUXA}", f"v_bfe_u32 v{V_AUX}, v0, 1, 1",
      f"v_lshl_add_u32 v{V_AUXA}, v{V_AUX}, 8, v{V_AUXA}")
    def after(tags):
        idx = [i for i, o in enumerate(order) if o in tags]
        return min(63, len(order) - 1 - max(idx)) if idx else 63
    A(f"s_waitcnt vmcnt({after([('w', 0), ('w', 1), ('a', 0), ('a', 1)])})", "s_barrier")
    stamp(A, 1)
    A(reads(0))
    anext = D
    signalled = False
    for s in range(NS):
        g = {}
        def put(k, *ins): g.setdefault(k, []).extend(ins)
        if s == PS:
            assert signalled
            stamp(A, 2)
            poll(A, [(aux_issue(), V_AUX, 1)], S_T1)
            stamp(A, 3)
            order.clear()
            while anext < s + D:
                pa, La = a_loads(anext); A(pa, La); order += [("a", anext)] * 4; anext += 1
        A(f"s_waitcnt vmcnt({after([('a', s)])}) lgkmcnt(0)")
        vg = VGAPS
        if s + 1 < NS:
            rg = [k for k in range(28) if k not in vg][:14]
            for k, r in zip(rg, reads(s + 1)): put(k, r)
        L = []; tags = []
        if anext == s + D and anext < NS and (anext < NH or s >= PS):
            pa, La = a_loads(anext); A(pa); L += La; tags += [("a", anext)] * 4; anext += 1
        if s + D < NS:
            pw, Lw = w_loads(s + D); A(pw); L += Lw; tags += [("w", s + D)] * 4
        for k, x in zip(vg, L): put(k, x)
        order += tags
        if s + 2 < NS:
            need = [("w", s + 2)]
            sig = (not signalled) and s == SIG_S
            if sig: need.append("st")
            put(WGAP, f"s_waitcnt vmcnt({after(need)})", "s_barrier")
            if sig:
                B = Asm(); signal(B, SRD_WS, S_W, F_CTX, V_T, S_T0); put(WGAP, *B.lines); signalled = True
        m = []
        for k in range(2):
            for cb in range(7):
                for rb in range(2):
                    c = "0" if (s in (0, NH) and k == 0) else vr(acc(s, cb, rb), 4)
                    m.append(f"v_mfma_f32_16x16x32_bf16 {vr(acc(s,cb,rb),4)}, {ar(wreg(s,k,cb),4)}, {ar(areg(s,k,rb),4)}, {c}")
        interleave(A, m, g)
    stamp(A, 4)
    A(f"s_lshl_b32 s{S_T0}, s{S_QB}, 2", f"s_add_u32 s{S_T0}, s{S_T0}, s{S_CT}",
      f"s_and_b32 s{S_FL}, s2, 0xf9", f"s_lshl_b32 s{S_FL}, s{S_FL}, 8", f"s_add_u32 s{S_FL}, s{S_FL}, {FL_OFF + 4*F_RED}",
      f"s_lshl_b32 s{S_T0}, s{S_T0}, 4", f"s_add_u32 s{S_T0}, s{S_T0}, s{S_W}", f"s_mul_i32 s{S_RED}, s{S_T0}, 14336",
      f"s_add_u32 s{S_RED}, s{S_RED}, {RED_OFF}",
      f"s_mul_i32 s{S_T0}, s{S_J}, {4*14336}", f"s_add_u32 s{S_T0}, s{S_T0}, s{S_RED}")
    for b in range(14):
        rb = b // 7
        a, bb = ACC_A + 4 * b, ACC_B + 4 * b
        if b % 4 == 0 and b: A(f"s_add_u32 s{S_T0}, s{S_T0}, 4096")
        for r in range(4): A(f"v_sub_f32 v{a+r}, v{a+r}, v{bb+r}")
        for r in range(4): A(f"v_fma_f32 v{a+r}, v{a+r}, v{V_G+rb}, v{bb+r}")
        A(f"buffer_store_dwordx4 {vr(a,4)}, v{V_L16}, {sr(SRD_WS,4)}, s{S_T0} offen offset:{(b%4)*1024} sc0 sc1")
    A("s_waitcnt vmcnt(0)", "s_barrier")
    stamp(A, 5)
    signal(A, SRD_WS, S_W, F_RED, V_T, S_T0)
    A(f"s_mov_b32 s{SRD_OUT}, s{P_OUT}", f"s_mov_b32 s{SRD_OUT+1}, s{P_OUT+1}", f"s_mov_b32 s{SRD_OUT+2}, {2048*448*2}",
      f"s_mov_b32 s{SRD_OUT+3}, 0x20000")
    A(f"v_and_b32 v{V_T+2}, 15, v0", f"v_mul_u32_u24 v{V_T+2}, 896, v{V_T+2}", f"v_lshrrev_b32 v{V_T+3}, 4, v0",
      f"v_lshl_add_u32 v{V_T+2}, v{V_T+3}, 3, v{V_T+2}",
      f"s_lshl_b32 s{S_T0}, s{S_QB}, 2", f"s_add_u32 s{S_T0}, s{S_T0}, s{S_W}", f"s_mul_i32 s{S_AH}, s{S_T0}, {32*896}",
      f"s_mul_i32 s{S_T0}, s{S_CT}, 224", f"s_add_u32 s{S_AH}, s{S_AH}, s{S_T0}",
      f"s_lshl_b32 s{S_T0}, s{S_J}, 10", f"s_add_u32 s{S_RED}, s{S_RED}, s{S_T0}",
      f"v_and_b32 v{V_T+1}, 3, v0", f"v_lshlrev_b32 v{V_T+1}, 9, v{V_T+1}")
    poll(A, [(f"buffer_load_dword v{V_T}, v{V_T+1}, {sr(SRD_WS,4)}, s{S_FL} offen sc0 sc1", V_T, 1)], S_T1)
    stamp(A, 6)
    R0 = ACC_A
    for i in range(4):
        for jj in range(4):
            A(f"s_add_u32 s{S_T0}, s{S_RED}, {jj*4*14336 + i*4096}",
              f"buffer_load_dwordx4 {vr(R0 + (i*4+jj)*4, 4)}, v{V_L16}, {sr(SRD_WS,4)}, s{S_T0} offen sc0 sc1")
    for i in range(4):
        b = R0 + i * 16
        A(f"s_add_u32 s{S_T0}, s{S_J}, {4*i}", f"s_lshl_b32 s{S_T1}, s{S_T0}, 5",
          f"s_cmp_ge_u32 s{S_T0}, 7", f"s_cselect_b32 s{S_T2}, {16*896 - 7*32}, 0", f"s_add_u32 s{S_T1}, s{S_T1}, s{S_T2}",
          f"s_cmp_ge_u32 s{S_T0}, 14", f"s_cselect_b32 s{S_T2}, 0x40000000, 0", f"s_add_u32 s{S_T1}, s{S_T1}, s{S_T2}",
          f"s_add_u32 s{S_T1}, s{S_T1}, s{S_AH}")
        A(f"s_waitcnt vmcnt({12 - 4*i + i})")
        for r in range(4): A(f"v_add_f32 v{b+r}, v{b+r}, v{b+4+r}")
        for r in range(4): A(f"v_add_f32 v{b+8+r}, v{b+8+r}, v{b+12+r}")
        for r in range(4): A(f"v_add_f32 v{b+r}, v{b+r}, v{b+8+r}")
        A(f"v_cvt_pk_bf16_f32 v{b}, v{b}, v{b+1}", f"v_cvt_pk_bf16_f32 v{b+1}, v{b+2}, v{b+3}",
          f"buffer_store_dwordx2 {vr(b,2)}, v{V_T+2}, {sr(SRD_OUT,4)}, s{S_T1} offen")
SIG_S = 1
```

```python
class Asm:
    def __init__(self):
        self.lines = []
    def __call__(self, *ss):
        for s in ss:
            if isinstance(s, (list, tuple)):
                self(*s)
            else:
                self.lines.append(s)
    def label(self, n): self.lines.append(f"{n}:")
    def text(self): return "\n".join(self.lines) + "\n"

def vr(b, n=1, f="v"):
    return f"{f}{b}" if n == 1 else f"{f}[{b}:{b+n-1}]"
def ar(b, n=1): return vr(b, n, "a")
def sr(b, n=1): return vr(b, n, "s")

def kernel_begin(A, name):
    A(".text", f".globl {name}", ".p2align 8", f".type {name},@function", f"{name}:")

def kernel_desc(A, name, vgpr, accum, sgpr=102):
    A('.section .rodata,"a"', ".p2align 6", f".amdhsa_kernel {name}",
      f"  .amdhsa_next_free_vgpr {vgpr}", f"  .amdhsa_next_free_sgpr {sgpr}",
      f"  .amdhsa_accum_offset {accum}", "  .amdhsa_group_segment_fixed_size 0",
      "  .amdhsa_kernarg_size 112", "  .amdhsa_user_sgpr_count 2",
      "  .amdhsa_user_sgpr_kernarg_segment_ptr 1", "  .amdhsa_system_sgpr_workgroup_id_x 1",
      ".end_amdhsa_kernel")

MB = 1 << 20
QF_OFF = 0
KF_OFF = 16 * MB
VF_OFF = 32 * MB
AF_OFF = 48 * MB
WF_OFF = 72 * MB
PART_OFF = 80 * MB
RED_OFF = 90 * MB
G_OFF = 79 * MB
FL_OFF = 79 * MB + 65536
MISC_OFF = 108 * MB
WS_BYTES = 268435456
KSTEPS3 = 184
AFS = 184

P_X, P_CKV, P_WQ, P_WUK, P_WUV, P_WO, P_BX, P_WG = 32, 34, 36, 38, 40, 42, 44, 46
P_WU, P_WD, P_GW, P_OUT = 48, 50, 52, 54
P_DBG, P_WS = 56, 58
def load_kernargs(A):
    A("s_load_dwordx16 s[32:47], s[0:1], 0",
      "s_load_dwordx8 s[48:55], s[0:1], 64",
      "s_load_dwordx4 s[56:59], s[0:1], 96")

def interleave(A, mfmas, gaps):
    for i, m in enumerate(mfmas):
        A(m)
        for x in gaps.get(i, []):
            A(x)

STAMPS = False
STAMP_S = 84
def stamp(A, k):
    if _st(): A(f"s_memtime s[{STAMP_S+2*k}:{STAMP_S+2*k+1}]")
def stamp_rt(A, k):
    if _st(): A(f"s_memrealtime s[{STAMP_S+2*k}:{STAMP_S+2*k+1}]")
def stamp_flush(A, srd_ws, s_wave, region, n=9, vt=32):
    if not _st(): return
    A("s_waitcnt lgkmcnt(0) vmcnt(0)")
    A(f"s_lshl_b32 s2, s2, 3", f"s_add_u32 s2, s2, s{s_wave}", "s_lshl_b32 s2, s2, 6",
      f"s_add_u32 s2, s2, {MISC_OFF + region*262144}")
    A(f"v_mov_b32 v{vt+1}, 0")
    for k in range(n):
        A(f"v_mov_b32 v{vt}, s{STAMP_S+2*k}", f"buffer_store_dword v{vt}, v{vt+1}, {sr(srd_ws,4)}, s2 offen offset:{4*k}", "s_nop 0")
def _st():
    import asmlib
    return asmlib.STAMPS

F_KV, F_J2, F_PART, F_CTX, F_RED = 0, 1, 2, 3, 4
SPIN_MAX = 0x40000
ACQ = False
_lbl = [0]
def signal(A, srd_ws, s_wave, idx, vt, st):
    _lbl[0] += 1
    l = f"L_sig{_lbl[0]}"
    A(f"s_cmp_eq_u32 s{s_wave}, 0", f"s_cbranch_scc0 {l}",
      f"s_lshl_b32 s{st}, s2, 8", f"s_add_u32 s{st}, s{st}, {FL_OFF + 4*idx}",
      f"v_mov_b32 v{vt}, 1", f"v_mov_b32 v{vt+1}, 0", "s_mov_b64 exec, 1",
      f"buffer_store_dword v{vt}, v{vt+1}, {sr(srd_ws,4)}, s{st} offen sc0 sc1", "s_mov_b64 exec, -1", f"{l}:")
def poll(A, loads, st, sleep=4, wave0=None, pre=None):
    _lbl[0] += 1
    l = f"L_poll{_lbl[0]}"
    if wave0 is not None: A(f"s_cmp_eq_u32 s{wave0}, 0", f"s_cbranch_scc0 {l}_ok")
    if pre: pre(A)
    A(f"s_mov_b32 s{st}, 0", f"{l}:")
    for ins, v, want in loads: A(ins)
    A("s_waitcnt vmcnt(0)")
    for k, (ins, v, want) in enumerate(loads):
        A(f"v_cmp_ne_u32 vcc, {want}, v{v}", "s_nop 4", f"s_cbranch_vccnz {l}_r")
    A(f"s_branch {l}_ok", f"{l}_r:", f"s_add_u32 s{st}, s{st}, 1", f"s_cmp_lt_u32 s{st}, {SPIN_MAX}", f"s_sleep {sleep}",
      f"s_cbranch_scc1 {l}", f"{l}_ok:")
    if wave0 is not None: A("s_barrier")
    import asmlib
    if asmlib.ACQ: A("buffer_inv sc1")
```

```python
from asmlib import *
import asmlib

WBASE = 98304
SRD_A, SRD_W, SRD_WS = 4, 8, 12
S_W, S_WM, S_WN = 16, 17, 18
S_SOA0, S_SOA1, S_SOW, S_WINC = 19, 20, 21, 22
S_RSLOT, S_DSLOT, S_WM0, S_N = 23, 24, 25, 26
S_W8192 = 27
S_DST1, S_DST2, S_T0, S_T1 = 28, 29, 30, 31
S2_A0, S2_A1, S2_ASZ, S2_SOA0, S2_SOA1 = 60, 61, 62, 63, 64
S2_W0, S2_W1, S2_WSZ, S2_SOW, S2_WINC = 65, 66, 67, 68, 69
S_IDX, S_XCD, S_RT1, S_HEAD1, S_RT2, S_C2, S_T2, S_T3, S_KIND = 70, 71, 72, 73, 74, 75, 76, 77, 78
S_STA2, S_STW2, S_LOG2E = 79, 80, 80
S_PF, S_PFO = 44, 82
V_PFD = 31
V_A, V_W, V_RW, V_RA, V_RCUR, V_L16, V_T = 1, 5, 9, 13, 15, 16, 17
V_A2, V_W2 = 32, 36
A_J2 = 160
V_PAD = 22
ACC_V, NACC_V = 32, 56
FR = 0

_stamp0 = stamp
SMAP = None
def stamp(A, k):
    if SMAP is not None: k = SMAP.get(k)
    if k is not None: _stamp0(A, k)

def acc(i, j):
    b = i * 8 + j
    return ("v", ACC_V + 4 * b) if b < NACC_V else ("a", 128 + 4 * (b - NACC_V))
def accs(i, j):
    f, b = acc(i, j)
    return vr(b, 4, f)
def wfrag(p, i): return FR + 64 * p + 4 * i
def afrag(p, j): return FR + 64 * p + 32 + 4 * j

def reads_for(p, wslot):
    R = []
    for i in range(8):
        st, cb = i >> 2, i & 3
        for h in range(2):
            R.append(f"ds_read_b64_tr_b16 {ar(wfrag(p,i)+2*h,2)}, v{V_RW+cb} offset:{wslot*16384+st*8192+h*1024}")
    for j in range(8):
        R.append(f"ds_read_b128 {ar(afrag(p,j),4)}, v{V_RCUR} offset:{j*2048}")
    return R

def dma_w(j): return f"buffer_load_dwordx4 v{V_W+j}, {sr(SRD_W,4)}, s{S_SOW} offen offset:{j*1024} lds"
def dma_a(j, hf): return f"buffer_load_dwordx4 v{V_A+j}, {sr(SRD_A,4)}, s{S_SOA1 if hf else S_SOA0} offen offset:{j*1024} lds"

def step(A, phase, orient, first=False, extra=None, tail=None, nodma=False, vm=16, pf=False, dw=True, da=True, rd=True):
    p = phase & 1
    m = []
    for i in range(8):
        for j in range(8):
            c = "0" if first else accs(i, j)
            w, a = ar(wfrag(p, i), 4), ar(afrag(p, j), 4)
            x, y = (w, a) if orient == "WA" else (a, w)
            m.append(f"v_mfma_f32_16x16x32_bf16 {accs(i,j)}, {x}, {y}, {c}")
    g = {}
    def put(k, *ins): g.setdefault(k, []).extend(ins)
    if phase & 1 and rd:
        put(0, f"s_add_u32 s{S_DSLOT}, s{S_RSLOT}, s{S_W8192}", f"s_add_u32 s{S_RSLOT}, s{S_RSLOT}, 32768",
               f"s_cmp_eq_u32 s{S_RSLOT}, 98304")
        put(2, f"s_cselect_b32 s{S_RSLOT}, 0, s{S_RSLOT}")
    if rd: put(6, f"v_add_u32 v{V_RCUR}, s{S_RSLOT}, v{V_RA + ((phase + 1) & 1)}")
    R = reads_for(1 - p, (phase + 1) & 3)
    for k, r in enumerate(R):
        if rd: put(1 + 2 * k, r)
    if not nodma and dw:
        put(2, f"s_add_u32 m0, s{S_WM0}, {phase*16384}")
        for j in range(4):
            put(4 + 6 * j, dma_w(j))
        put(24, f"s_add_u32 s{S_SOW}, s{S_SOW}, s{S_WINC}")
    if not nodma and da:
        hf = 0 if (phase & 1) else 1
        put(26, f"s_add_u32 m0, s{S_DSLOT}, {hf*4096}")
        for j in range(4):
            put(28 + 6 * j, dma_a(j, hf))
        so = S_SOA1 if hf else S_SOA0
        put(48, f"s_add_u32 s{so}, s{so}, 128")
    if pf:
        lab = f"L_pf{len(A.lines)}"
        _pf_sites.append(lab)
        put(50, f"s_bitcmp1_b32 s{S_PFM}, s{S_PFC}", f"s_cbranch_scc1 {lab}_do", f"{lab}_back:")
        put(51, f"s_add_u32 s{S_PFC}, s{S_PFC}, 1")
    if extra:
        for k, v in extra.items():
            put(k, *v)
    put(62, f"s_waitcnt vmcnt({vm}) lgkmcnt(0)")
    put(63, "s_barrier")
    if tail: put(63, *tail)
    interleave(A, m, g)

def early_dma(A, phase):
    assert phase % 2 == 0
    A(f"s_add_u32 m0, s{S_WM0}, {phase*16384}", "s_nop 0")
    for j in range(4): A(dma_w(j))
    A(f"s_add_u32 s{S_SOW}, s{S_SOW}, s{S_WINC}", f"s_add_u32 m0, s{S_DSLOT}, 4096", "s_nop 0")
    for j in range(4): A(dma_a(j, 1))
    A(f"s_add_u32 s{S_SOA1}, s{S_SOA1}, 128")

STAGE = 160
TRICKLE = 2
def job(A, tag, orient, nsteps, start, nxt, after=None, pf=False, U=1, hook=None, pf_roll=True, sig=None):
    gw, ga, ge = nsteps - 4, nsteps - 5, nsteps - 1
    ph = lambda g: (start + g) & 3
    nn = lambda g: (start + g) >> 2
    npeel = U
    order = [-2] * 8 + [-1] * 8
    pend = list(after or [])
    if after is not None: order += [0] * 8 + ["s"] * 8
    assert not (nxt and U > ga)
    for g in range(npeel):
        t = [f"s_branch L_{tag}_p{ph(npeel)}"] if (g == npeel - 1 and npeel < nsteps) else None
        ex = {}
        if g == npeel - 1 and npeel < nsteps: ex[60] = [f"s_mov_b32 s{S_N}, {nn(npeel)}"]
        nod = (g == 0 and after is not None)
        dw, da = g < gw, g < ga
        if not nod: order += [g] * (4 * dw + 4 * da)
        for k in range(TRICKLE):
            if pend:
                sd, c, imm, a = pend.pop(0)
                gp = 52 + k * (8 // TRICKLE)
                ex[gp] = [f"s_add_u32 s{S_T0}, s{sd}, {c}"]
                ex[gp + 1] = [f"buffer_store_dwordx4 {ar(a,4)}, v{V_L16}, {sr(SRD_WS,4)}, s{S_T0} offen offset:{imm}{STORE_SC}"]
                order.append("s")
        if hook: hook(g, ex, order)
        if (g - 2) in order:
            last = max(i for i, o in enumerate(order) if o == g - 2)
            vm = min(63, len(order) - 1 - last)
        else: vm = 63
        if "vm" in ex: vm = min(vm, ex.pop("vm"))
        if sig is not None and g == sig[0]:
            assert not pend
            last = max(i for i, o in enumerate(order) if o == "s")
            vm = min(vm, len(order) - 1 - last)
            B = Asm(); sig[1](B); t = B.lines
        step(A, ph(g), orient, first=(g == 0), nodma=nod, vm=vm, pf=pf, tail=t, extra=ex,
             dw=dw, da=da, rd=(nxt or g < nsteps - 1))
    assert not pend
    if npeel == nsteps: return
    A(".p2align 6")
    for p in range(4):
        A.label(f"L_{tag}_p{p}")
        ex = {}
        if p == ph(gw):
            assert p % 2 == 0
            if nxt: ex[0] = [f"s_cmp_eq_u32 s{S_N}, {nn(gw)}", f"s_cbranch_scc1 L_{tag}_swW", f"L_{tag}_backW:"]
            else: ex[0] = [f"s_cmp_ge_u32 s{S_N}, {nn(gw)}", f"s_cselect_b32 s{SRD_W+2}, 0, s{SRD_W+2}"]
        if p == ph(ga):
            if nxt: ex[20] = [f"s_cmp_eq_u32 s{S_N}, {nn(ga)}", f"s_cbranch_scc1 L_{tag}_swA", f"L_{tag}_backA:"]
            else: ex[20] = [f"s_cmp_ge_u32 s{S_N}, {nn(ga)}", f"s_cselect_b32 s{SRD_A+2}, 0, s{SRD_A+2}"]
        tail = []
        if p == 3: ex[52] = [f"s_add_u32 s{S_N}, s{S_N}, 1"]
        if p == ph(ge):
            if p == 3:
                ex[54] = [f"s_cmp_le_u32 s{S_N}, {nn(ge)}"]; tail = [f"s_cbranch_scc1 L_{tag}_p0"]
            else:
                ex[54] = [f"s_cmp_eq_u32 s{S_N}, {nn(ge)}"]; tail = [f"s_cbranch_scc1 L_{tag}_done"]
        elif p == 3:
            tail = [f"s_branch L_{tag}_p0"]
        step(A, p, orient, extra=ex, tail=tail, pf=pf and pf_roll)
    A.label(f"L_{tag}_done")

def switch_code(A, tag):
    A.label(f"L_{tag}_swW")
    A(f"s_mov_b32 s{SRD_W}, s{S2_W0}", f"s_mov_b32 s{SRD_W+1}, s{S2_W1}", f"s_mov_b32 s{SRD_W+2}, s{S2_WSZ}",
      f"s_mov_b32 s{S_SOW}, s{S2_SOW}", f"s_mov_b32 s{S_WINC}, s{S2_WINC}")
    for j in range(4): A(f"v_accvgpr_read_b32 v{V_W+j}, a{A_J2+4+j}")
    A(f"s_branch L_{tag}_backW")
    A.label(f"L_{tag}_swA")
    A(f"s_mov_b32 s{SRD_A}, s{S2_A0}", f"s_mov_b32 s{SRD_A+1}, s{S2_A1}", f"s_mov_b32 s{SRD_A+2}, s{S2_ASZ}",
      f"s_mov_b32 s{S_SOA0}, s{S2_SOA0}", f"s_mov_b32 s{S_SOA1}, s{S2_SOA1}")
    for j in range(4): A(f"v_accvgpr_read_b32 v{V_A+j}, a{A_J2+j}")
    A(f"s_branch L_{tag}_backA")

def get4(A, blk, tmp):
    f, b = blk
    if f == "v": return b
    for r in range(4): A(f"v_accvgpr_read_b32 v{tmp+r}, a{b+r}")
    return tmp

def pack_store(A, x, y, soff, imm):
    A(f"v_cvt_pk_bf16_f32 v{x}, v{x}, v{x+1}", f"v_cvt_pk_bf16_f32 v{x+1}, v{x+2}, v{x+3}",
      f"v_cvt_pk_bf16_f32 v{x+2}, v{y}, v{y+1}", f"v_cvt_pk_bf16_f32 v{x+3}, v{y+2}, v{y+3}",
      f"buffer_store_dwordx4 {vr(x,4)}, v{V_L16}, {sr(SRD_WS,4)}, s{soff} offen offset:{imm}{STORE_SC}")

def epi_WA(A, sdst):
    A("s_nop 7")
    for j in range(8):
        for st in range(2):
            A(f"s_add_u32 s{S_T0}, s{sdst}, {j*8192 + st*4096}")
            for pr in range(2):
                i = 4 * st + 2 * pr
                x = get4(A, acc(i, j), None)
                y = get4(A, acc(i + 1, j), acc(1, j)[1])
                pack_store(A, x, y, S_T0, pr * 1024)
    A("s_nop 1")

def epi_AW(A, sdst):
    A("s_nop 7")
    for jp in range(4):
        for st in range(2):
            A(f"s_add_u32 s{S_T0}, s{sdst}, {jp*16384 + st*8192}")
            for cb in range(4):
                i = 4 * st + cb
                x = get4(A, acc(i, 2 * jp), acc(0, 2 * jp + 1)[1])
                y = get4(A, acc(i, 2 * jp + 1), acc(1, 2 * jp + 1)[1])
                pack_store(A, x, y, S_T0, cb * 1024)
    A("s_nop 1")

def epi_WA_stage(A, sdst):
    A("s_nop 7", ".p2align 3")
    out = []
    c = 0
    for j in range(8):
        for st in range(2):
            if c < 8: A(f"s_add_u32 s{S_T0}, s{sdst}, {j*8192 + st*4096 + 0x10000000 * 0}" if j or st else f"s_add_u32 s{S_T0}, s{sdst}, 0", *(["s_nop 0"] if not (j or st) else []))
            for pr in range(2):
                i = 4 * st + 2 * pr
                x = get4(A, acc(i, j), None)
                y = get4(A, acc(i + 1, j), acc(1, j)[1])
                if c < 8:
                    pack_store(A, x, y, S_T0, pr * 1024)
                else:
                    a = STAGE + 4 * (c - 8)
                    A(f"v_cvt_pk_bf16_f32 v{x}, v{x}, v{x+1}", f"v_cvt_pk_bf16_f32 v{x+1}, v{x+2}, v{x+3}",
                      f"v_cvt_pk_bf16_f32 v{x+2}, v{y}, v{y+1}", f"v_cvt_pk_bf16_f32 v{x+3}, v{y+2}, v{y+3}")
                    for r in range(4): A(f"v_accvgpr_write_b32 a{a+r}, v{x+r}")
                    out.append((sdst, j * 8192 + st * 4096, pr * 1024, a))
                c += 1
    A("s_nop 1")
    return out

def epi_AW_stage(A, sdst):
    A("s_nop 7", ".p2align 3")
    out = []
    c = 0
    for jp in range(4):
        for st in range(2):
            if c < 8: A(f"s_add_u32 s{S_T0}, s{sdst}, {jp*16384 + st*8192}", *(["s_nop 0"] if not (jp or st) else []))
            for cb in range(4):
                i = 4 * st + cb
                x = get4(A, acc(i, 2 * jp), acc(0, 2 * jp + 1)[1])
                y = get4(A, acc(i, 2 * jp + 1), acc(1, 2 * jp + 1)[1])
                if c < 8:
                    pack_store(A, x, y, S_T0, cb * 1024)
                else:
                    a = STAGE + 4 * (c - 8)
                    A(f"v_cvt_pk_bf16_f32 v{x}, v{x}, v{x+1}", f"v_cvt_pk_bf16_f32 v{x+1}, v{x+2}, v{x+3}",
                      f"v_cvt_pk_bf16_f32 v{x+2}, v{y}, v{y+1}", f"v_cvt_pk_bf16_f32 v{x+3}, v{y+2}, v{y+3}")
                    for r in range(4): A(f"v_accvgpr_write_b32 a{a+r}, v{x+r}")
                    out.append((sdst, jp * 16384 + st * 8192, cb * 1024, a))
                c += 1
    A("s_nop 1")
    return out

HST = 160
def epi_GU(A, sdst, stage=False, fill=None, mid=None):
    fill = list(fill or [])
    A("s_nop 7")
    A(f"s_mov_b32 s{S_LOG2E}, 0xbfb8aa3b")
    for j in range(8):
        if not stage: A(f"s_add_u32 s{S_T0}, s{sdst}, {j*asmlib.AFS*1024}")
        if mid and j == mid[0]: mid[1](A)
        for i in range(4):
            gq = acc(i, j)[1]
            uq = get4(A, acc(i + 4, j), acc(4, j)[1])
            for r in range(4): A(f"v_mul_f32 v{gq+r}, s{S_LOG2E}, v{gq+r}")
            for r in range(4): A(f"v_exp_f32 v{gq+r}, v{gq+r}")
            if fill: A(fill.pop(0))
            for r in range(4): A(f"v_add_f32 v{gq+r}, 1.0, v{gq+r}")
            for r in range(4): A(f"v_rcp_f32 v{gq+r}, v{gq+r}")
            if fill: A(fill.pop(0))
            for r in range(4): A(f"v_mul_f32 v{gq+r}, v{uq+r}, v{gq+r}")
            if i & 1:
                x, y = acc(i - 1, j)[1], gq
                if not stage: pack_store(A, x, y, S_T0, (i >> 1) * 1024)
                else:
                    a = HST + 4 * (j * 2 + (i >> 1))
                    A(f"v_cvt_pk_bf16_f32 v{x}, v{x}, v{x+1}", f"v_cvt_pk_bf16_f32 v{x+1}, v{x+2}, v{x+3}",
                      f"v_cvt_pk_bf16_f32 v{x+2}, v{y}, v{y+1}", f"v_cvt_pk_bf16_f32 v{x+3}, v{y+2}, v{y+3}")
                    for r in range(4): A(f"v_accvgpr_write_b32 a{a+r}, v{x+r}")
    assert not fill
def h_stores(A, vl16, sdst, st, j0, j1):
    for j in range(j0, j1):
        A(f"s_add_u32 s{st}, s{sdst}, {j*asmlib.AFS*1024}")
        for p in range(2):
            A(f"buffer_store_dwordx4 {ar(HST+4*(j*2+p),4)}, v{vl16}, {sr(SRD_WS,4)}, s{st} offen offset:{p*1024}{STORE_SC}")

def epi_Q_x(A, sdst, vlds):
    A("s_nop 7")
    for j0 in range(4):
        for st in range(2):
            A(f"s_add_u32 s{S_T0}, s{sdst}, {j0*8192 + st*4096}")
            for pr in range(2):
                for j in (j0, j0 + 4):
                    i = 4 * st + 2 * pr
                    x = get4(A, acc(i, j), None)
                    y = get4(A, acc(i + 1, j), acc(1, j)[1])
                    w = f"ds_write_b128 v{vlds + (j >> 2)}, {vr(x,4)} offset:{(j & 3)*8192 + st*4096 + pr*1024}"
                    if j < 4: pack_store(A, x, y, S_T0, pr * 1024)
                    else:
                        A(f"v_cvt_pk_bf16_f32 v{x}, v{x}, v{x+1}", f"v_cvt_pk_bf16_f32 v{x+1}, v{x+2}, v{x+3}",
                          f"v_cvt_pk_bf16_f32 v{x+2}, v{y}, v{y+1}", f"v_cvt_pk_bf16_f32 v{x+3}, v{y+2}, v{y+3}")
                    A(w)

def voffs(A, dstA, dstW, strideA, strideW):
    t0, t1, t2 = V_T, V_T + 1, V_T + 2
    for j in range(4):
        A(f"v_lshrrev_b32 v{t0}, 3, v0", f"v_add_u32 v{t0}, {8*j}, v{t0}", f"v_mul_lo_u32 v{t0}, v{t0}, {strideA}",
          f"v_lshrrev_b32 v{t1}, 4, v0", f"v_add_u32 v{t1}, {4*(j&1)}, v{t1}", f"v_and_b32 v{t2}, 7, v0",
          f"v_xor_b32 v{t1}, v{t1}, v{t2}", f"v_lshlrev_b32 v{t1}, 4, v{t1}", f"v_add_u32 v{t0}, v{t0}, v{t1}",
          f"v_subrev_u32 v{dstA+j}, {1024*j}, v{t0}")
        A(f"v_lshrrev_b32 v{t1}, 4, v0", f"v_add_u32 v{t0}, {4*j}, v{t1}", f"v_mul_lo_u32 v{t0}, v{t0}, {strideW}",
          f"v_lshlrev_b32 v{t1}, 1, v{t1}", f"v_add_u32 v{t1}, {8*(j>>1)}, v{t1}", f"v_and_b32 v{t2}, 15, v0",
          f"v_xor_b32 v{t1}, v{t1}, v{t2}", f"v_lshlrev_b32 v{t1}, 4, v{t1}", f"v_add_u32 v{t0}, v{t0}, v{t1}",
          f"v_subrev_u32 v{dstW+j}, {1024*j}, v{t0}")

def fin(A):
    if not asmlib.STAMPS: return
    stamp(A, 5)
    A("s_waitcnt vmcnt(0)")
    stamp(A, 6); stamp_rt(A, 8)
    stamp_flush(A, SRD_WS, S_W, 0)

WL_LDS = 131072
def wl_setup():
    t0, t1 = V_T, V_T + 1
    return [f"s_cmp_ge_u32 s2, 128",
      f"s_cselect_b32 s{SRD_A}, s{P_WD}, s{P_WO}", f"s_cselect_b32 s{SRD_A+1}, s{P_WD+1}, s{P_WO+1}",
      f"s_mov_b32 s{SRD_A+2}, {4096*448*2}", f"s_cselect_b32 s{SRD_A+2}, {1792*448*2}, s{SRD_A+2}",
      f"s_and_b32 s{S_SOA0}, s2, 127", f"s_mul_i32 s{S_SOA0}, s{S_SOA0}, 28672", f"s_mul_i32 s{S_WINC}, s{S_W}, 7168",
      f"s_add_u32 s{S_SOA0}, s{S_SOA0}, s{S_WINC}", f"s_add_u32 s{S_WINC}, s{S_WINC}, {WL_LDS}",
      f"s_mul_i32 s{S_SOA1}, s2, 7168", f"s_mul_i32 s{S_SOW}, s{S_W}, {KSTEPS3*7168}", f"s_add_u32 s{S_SOA1}, s{S_SOA1}, s{S_SOW}",
      f"s_add_u32 s{S_SOA1}, s{S_SOA1}, {WF_OFF}", f"s_cmp_ge_u32 s2, {KSTEPS3}", f"s_cselect_b32 s{S_SOA1}, 0x40000000, s{S_SOA1}",
      f"s_mul_i32 s{S_SOW}, s{S_W}, 224", f"s_add_u32 s{S_SOW}, s{S_SOW}, {WL_LDS}",
      f"v_lshrrev_b32 v{t0}, 2, v0", f"v_mul_u32_u24 v{t0}, 896, v{t0}", f"v_and_b32 v{t1}, 3, v0",
      f"v_lshl_add_u32 v{t0}, v{t1}, 3, v{t0}", f"v_add_u32 v{V_T+2}, s{S_SOW}, v{t0}"]
def wl_dma():
    L = [[f"s_mov_b32 m0, s{S_WINC}"]]
    for j in range(7):
        if j == 4: L.append([f"s_add_u32 m0, m0, 4096", f"s_add_u32 s{S_SOA0}, s{S_SOA0}, 4096"])
        L.append([f"buffer_load_dwordx4 v{V_L16}, {sr(SRD_A,4)}, s{S_SOA0} offen offset:{(j%4)*1024} lds"])
    return L
WLR = 224
def wl_reads():
    return [f"ds_read_b64_tr_b16 {ar(WLR+4*c+2*h,2)}, v{V_T+2} offset:{h*16*896 + c*32}" for c in range(7) for h in range(2)]
def wl_stores(A, vl16, sdst):
    for c in range(7):
        if c == 4: A(f"s_add_u32 s{sdst}, s{sdst}, 4096")
        A(f"buffer_store_dwordx4 {ar(WLR+4*c,4)}, v{vl16}, {sr(SRD_WS,4)}, s{sdst} offen offset:{(c%4)*1024}{STORE_SC}")
def wl_finish(A):
    A(wl_reads(), "s_waitcnt lgkmcnt(0)")
    wl_stores(A, V_L16, S_SOA1)
def wl_hook(g, ex, order):
    if g == 10:
        st = wl_setup()
        for k in range(0, len(st), 2):
            ex.setdefault(8 + 2 * k if 8 + 2 * k < 50 else 50, []).extend(st[k:k + 2])
    if g == 11:
        for k, c in enumerate(wl_dma()): ex.setdefault(8 + 4 * k, []).extend(c)
        n = sum(1 for o in reversed(order[-TRICKLE:]) if o == "s")
        order[len(order) - n:len(order) - n] = [11] * 7

def side_job(A, kvsig=None):
    S_U = S_RT2
    t0, t1, t2 = V_T, V_T + 1, V_T + 2
    A(f"s_sub_u32 s{S_U}, s{S_IDX}, 14", f"s_lshl_b32 s{S_U}, s{S_U}, 3", f"s_add_u32 s{S_U}, s{S_U}, s{S_XCD}",
      f"s_lshl_b32 s{S_U}, s{S_U}, 2", f"s_add_u32 s{S_U}, s{S_U}, s{S_W}")
    A(f"s_mov_b32 s{SRD_A}, s{P_X}", f"s_mov_b32 s{SRD_A+1}, s{P_X+1}", f"s_mov_b32 s{SRD_A+2}, {2048*448*2}",
      f"s_mov_b32 s{SRD_W}, s{P_GW}", f"s_mov_b32 s{SRD_W+1}, s{P_GW+1}", f"s_mov_b32 s{SRD_W+2}, 896")
    A(f"v_and_b32 v{t0}, 15, v0", f"v_mul_u32_u24 v{t0}, 896, v{t0}", f"v_lshrrev_b32 v{t1}, 4, v0",
      f"v_lshlrev_b32 v{t1}, 4, v{t1}", f"v_add_u32 v{t0}, v{t0}, v{t1}",
      f"s_mul_i32 s{S_T0}, s{S_U}, {32*896}", f"s_add_u32 s{S_T1}, s{S_T0}, {16*896}")
    GA = 0
    for k in range(14):
        A(f"buffer_load_dwordx4 {ar(GA+4*k,4)}, v{t1}, {sr(SRD_W,4)}, 0 offen offset:{k*64}")
        A(f"buffer_load_dwordx4 {ar(GA+56+4*k,4)}, v{t0}, {sr(SRD_A,4)}, s{S_T0} offen offset:{k*64}")
        A(f"buffer_load_dwordx4 {ar(GA+112+4*k,4)}, v{t0}, {sr(SRD_A,4)}, s{S_T1} offen offset:{k*64}")
    A("s_waitcnt vmcnt(42)", "s_barrier")
    if kvsig: kvsig(A)
    A(wl_setup())
    for c in wl_dma(): A(c, "s_nop 0")
    A("s_waitcnt vmcnt(7)")
    G = 144
    for k in range(14):
        A(f"v_mfma_f32_16x16x32_bf16 {vr(G,4)}, {ar(GA+4*k,4)}, {ar(GA+56+4*k,4)}, {'0' if k == 0 else vr(G,4)}")
        A(f"v_mfma_f32_16x16x32_bf16 {vr(G+4,4)}, {ar(GA+4*k,4)}, {ar(GA+112+4*k,4)}, {'0' if k == 0 else vr(G+4,4)}")
    A(f"s_mov_b32 s{S_LOG2E}, 0xbfb8aa3b", f"v_and_b32 v{t0}, 15, v0", f"v_lshlrev_b32 v{t0}, 2, v{t0}",
      f"s_lshl_b32 s{S_T0}, s{S_U}, 7", f"s_add_u32 s{S_T0}, s{S_T0}, {G_OFF}", "s_waitcnt vmcnt(0)", "s_barrier", "s_nop 2")
    for rb in range(2):
        v = G + 4 * rb
        A(f"v_mul_f32 v{v}, s{S_LOG2E}, v{v}", f"v_exp_f32 v{v}, v{v}", "s_nop 0", f"v_add_f32 v{v}, 1.0, v{v}",
          f"v_rcp_f32 v{v}, v{v}", "s_nop 0",
          f"buffer_store_dword v{v}, v{t0}, {sr(SRD_WS,4)}, s{S_T0} offen offset:{rb*64}{STORE_SC}")
    if kvsig: A(wl_reads(), "s_waitcnt lgkmcnt(0)", "s_barrier")
    else: wl_finish(A)

STORE_SC = " sc0 sc1"
ORDER = "LS"
PREFETCH = True

S_PFM, S_PFC = 83, 3
V_PQ = 22
PF_T0 = 3
_pf_sites = []
def prefetch_setup(A):
    late = [(P_X, 224), (P_WQ, 448), (S_KIND, 196), (P_WU, 196), (P_WO, 448), (P_WD, 196)]
    n1 = 160 * (16 - PF_T0)
    sv, st, sr_, sb0, sb1, so, sstr = S_T0, S_T1, S_T2, S_PF, S_PF + 1, S_PF + 2, S_PF + 3
    for k in range(4):
        A(f"s_lshl_b32 s{sv}, s2, 2", f"s_add_u32 s{sv}, s{sv}, s{S_W}", f"s_add_u32 s{sv}, s{sv}, {1024*k}")
        lo, hi = 1024 * k, 1024 * k + 1023
        if lo < n1:
            A(f"s_mul_i32 s{st}, s{sv}, 52429", f"s_lshr_b32 s{st}, s{st}, 23", f"s_mul_i32 s{sr_}, s{st}, 160",
              f"s_sub_u32 s{sr_}, s{sv}, s{sr_}", f"s_add_u32 s{st}, s{st}, {PF_T0}")
            A(f"s_mov_b32 s{sb0}, s{P_CKV}", f"s_mov_b32 s{sb1}, s{P_CKV+1}", f"s_lshl_b32 s{so}, s{sr_}, 17",
              f"s_lshl_b32 s{S_T3}, s{st}, 7", f"s_add_u32 s{so}, s{so}, s{S_T3}", f"s_mov_b32 s{sstr}, 2048")
            A(f"s_lshl_b32 s{st}, s{st}, 19", f"s_add_u32 s{S_T3}, s{sr_}, 32", f"s_and_b32 s{S_T3}, s{S_T3}, 63",
              f"s_lshl_b32 s{S_T3}, s{S_T3}, 13", f"s_add_u32 s{st}, s{st}, s{S_T3}")
            A(f"s_cmp_ge_u32 s{sr_}, 32", f"s_cselect_b32 s{sb0}, s{P_WUK}, s{sb0}", f"s_cselect_b32 s{sb1}, s{P_WUK+1}, s{sb1}",
              f"s_cselect_b32 s{so}, s{st}, s{so}", f"s_cselect_b32 s{sstr}, 128, s{sstr}",
              f"s_cmp_ge_u32 s{sr_}, 96", f"s_cselect_b32 s{sb0}, s{P_WUV}, s{sb0}", f"s_cselect_b32 s{sb1}, s{P_WUV+1}, s{sb1}")
        base = n1
        for p, n in late + [(P_X, 1 << 20)]:
            if base + n > lo and base <= hi:
                last = n == 1 << 20
                A(f"s_sub_u32 s{st}, s{sv}, {base}", f"s_lshl_b32 s{st}, s{st}, 13")
                if last: A(f"s_mov_b32 s{st}, 0")
                A(f"s_cmp_ge_u32 s{sv}, {base}", f"s_cselect_b32 s{sb0}, s{p}, s{sb0}", f"s_cselect_b32 s{sb1}, s{p+1}, s{sb1}",
                  f"s_cselect_b32 s{so}, s{st}, s{so}", f"s_cselect_b32 s{sstr}, 128, s{sstr}")
            base += n
        A(f"s_add_u32 s{sb0}, s{sb0}, s{so}", f"s_addc_u32 s{sb1}, s{sb1}, 0",
          f"v_mul_lo_u32 v{V_T}, v0, s{sstr}", f"v_mov_b32 v{V_T+1}, s{sb1}",
          f"v_add_co_u32 v{V_PQ+2*k}, vcc, s{sb0}, v{V_T}", "s_nop 1",
          f"v_addc_co_u32 v{V_PQ+2*k+1}, vcc, 0, v{V_T+1}, vcc")
    A(f"s_lshr_b32 s{S_T0}, s2, 5", f"s_lshl_b32 s{S_PFM}, 0x01010101, s{S_T0}", f"s_mov_b32 s{S_PFC}, 0")
V_CNT = 30
def pf_blocks(A):
    for lab in _pf_sites:
        A.label(f"{lab}_do")
        A(f"global_load_dword v{V_PFD}, {vr(V_PQ,2)}, off")
        for i in range(6): A(f"v_mov_b32 v{V_PQ+i}, v{V_PQ+2+i}")
        A(f"s_lshr_b32 s{S_T1}, s{S_PFC}, 3", f"s_lshl_b32 s{S_T0}, s{S_W}, 2", f"s_add_u32 s{S_T1}, s{S_T1}, s{S_T0}",
          f"s_cmp_eq_u32 s{S_T1}, 1", f"s_cbranch_scc0 {lab}_n1",
          f"v_mov_b32 v{V_T}, 1", f"v_mov_b32 v{V_T+1}, 0", "s_mov_b64 exec, 1",
          f"global_atomic_add v{V_T+1}, v{V_T}, {sr(P_DBG,2)} sc1", "s_mov_b64 exec, -1", f"{lab}_n1:",
          f"s_and_b32 s{S_T1}, s{S_T1}, 3", f"s_cmp_eq_u32 s{S_T1}, 3", f"s_cbranch_scc0 {lab}_back", f"v_mov_b32 v{V_T+1}, 0",
          f"global_load_dword v{V_CNT}, v{V_T+1}, {sr(P_DBG,2)} sc0 sc1")
        A(f"s_branch {lab}_back")
    _pf_sites.clear()

S_PC = 0
def code_touch(A, nbytes):
    A(f"s_getpc_b64 {sr(S_PC,2)}")
    A(code_touch_ops(S_PF, S_T0, V_T, V_PFD))
def code_touch_ops(srd, st, vt, vd):
    return [f"s_mov_b32 s{srd}, s{S_PC}", f"s_mov_b32 s{srd+1}, s{S_PC+1}", f"s_mov_b32 s{srd+2}, {CODE_BYTES}", f"s_mov_b32 s{srd+3}, 0x20000",
      f"s_lshr_b32 s{st}, s2, 3", f"s_lshl_b32 s{st}, s{st}, 2", f"s_add_u32 s{st}, s{st}, s{S_W}", f"s_lshl_b32 s{st}, s{st}, 10",
      f"v_and_b32 v{vt}, 7, v0", f"v_lshlrev_b32 v{vt}, 7, v{vt}",
      f"buffer_load_dword v{vd}, v{vt}, {sr(srd,4)}, s{st} offen"]

CODE_BYTES = 73728
def k1_body(A, fused=False, hooks=None):
    hooks = hooks or {}
    load_kernargs(A)
    stamp_rt(A, 7); stamp(A, 0)
    A(f"v_lshrrev_b32 v{V_T}, 6, v0", "v_and_b32 v0, 63, v0", f"v_readfirstlane_b32 s{S_W}, v{V_T}",
      f"v_lshlrev_b32 v{V_L16}, 4, v0")
    A(f"s_and_b32 s{S_XCD}, s2, 7", f"s_lshr_b32 s{S_IDX}, s2, 3",
      f"s_and_b32 s{S_WM}, s{S_W}, 1", f"s_lshr_b32 s{S_WN}, s{S_W}, 1",
      f"s_lshl_b32 s{S_W8192}, s{S_W}, 13",
      f"s_and_b32 s{S_RT1}, s{S_IDX}, 7",
      f"s_lshr_b32 s{S_T0}, s{S_IDX}, 3", f"s_and_b32 s{S_T0}, s{S_T0}, 1",
      f"s_lshl_b32 s{S_HEAD1}, s{S_XCD}, 1", f"s_add_u32 s{S_HEAD1}, s{S_HEAD1}, s{S_T0}")
    LO = f"s_cmp_lt_u32 s{S_IDX}, 16"
    LS = ORDER == "LS"
    J1L = f"s_cmp_lt_u32 s{S_IDX}, {32 if LS else 16}"
    A(f"s_mov_b32 s{S_T2}, 896", J1L, f"s_cselect_b32 s{S_T2}, 2048, s{S_T2}",
      f"s_mov_b32 s{S_STA2}, 2048", f"s_cselect_b32 s{S_STA2}, 896, s{S_STA2}", f"s_mov_b32 s{S_T3}, 8192")
    A(f"s_lshl_b32 s{S_T0}, s{S_RT1}, 8", f"s_lshl_b32 s{S_T1}, s{S_W}, 6", f"s_add_u32 s{S_T0}, s{S_T0}, s{S_T1}",
      f"s_mul_i32 s{S_SOA0}, s{S_T0}, s{S_T2}", f"s_lshl_b32 s{S_T1}, s{S_T2}, 5", f"s_add_u32 s{S_SOA1}, s{S_SOA0}, s{S_T1}")
    A(f"s_lshl_b32 s{S_T0}, s{S_WM}, 17", f"s_lshl_b32 s{S_T1}, s{S_HEAD1}, 9", f"s_add_u32 s{S_SOW}, s{S_T0}, s{S_T1}",
      f"s_lshl_b32 s{S_T1}, s{S_WN}, 8", f"s_add_u32 s{S_SOW}, s{S_SOW}, s{S_T1}",
      f"s_mov_b32 s{S2_SOW}, s{S_SOW}",
      f"s_mov_b32 s{S_WINC}, {32*8192}")
    A(f"s_lshl_b32 s{S_WM0}, s{S_W}, 12", f"s_add_u32 s{S_WM0}, s{S_WM0}, {WBASE}")
    voffs(A, V_A, V_W, f"s{S_T2}", f"s{S_T3}")
    A(f"s_mov_b32 s{S_T0}, {2048*448*2}", f"s_mov_b32 s{S_T1}, {448*4096*2}")
    A("s_waitcnt lgkmcnt(0)")
    w1lo, w1hi, w2hi = (P_WUV, P_WUK, P_WQ) if LS else (P_WUK, P_WQ, P_WUV)
    A(J1L,
      f"s_cselect_b32 s{SRD_A}, s{P_CKV}, s{P_X}", f"s_cselect_b32 s{SRD_A+1}, s{P_CKV+1}, s{P_X+1}",
      f"s_cselect_b32 s{SRD_A+2}, {2048*1024*2}, s{S_T0}", f"s_mov_b32 s{SRD_A+3}, 0x20000",
      f"s_cselect_b32 s{SRD_W+2}, {1024*4096*2}, s{S_T1}", f"s_mov_b32 s{SRD_W+3}, 0x20000",
      LO, f"s_cselect_b32 s{SRD_W}, s{w1lo}, s{w1hi}", f"s_cselect_b32 s{SRD_W+1}, s{w1lo+1}, s{w1hi+1}")
    def a_group(slot, hf):
        A(f"s_add_u32 m0, s{S_W8192}, {slot*32768 + hf*4096}", "s_nop 0")
        for j in range(4): A(dma_a(j, hf))
        so = S_SOA1 if hf else S_SOA0
        A(f"s_add_u32 s{so}, s{so}, 128")
    def w_group(slot):
        A(f"s_add_u32 m0, s{S_WM0}, {slot*16384}", "s_nop 0")
        for j in range(4): A(dma_w(j))
        A(f"s_add_u32 s{S_SOW}, s{S_SOW}, s{S_WINC}")
    a_group(0, 0); a_group(0, 1); w_group(0); a_group(1, 0); w_group(1); a_group(1, 1); w_group(2)
    a_group(2, 0); w_group(3)
    npf = 0
    A(f"s_mov_b32 s{SRD_WS}, s{P_WS}", f"s_mov_b32 s{SRD_WS+1}, s{P_WS+1}", f"s_mov_b32 s{SRD_WS+2}, {WS_BYTES}",
      f"s_mov_b32 s{SRD_WS+3}, 0x20000")
    A(f"s_add_u32 s{S_DSLOT}, s{S_W8192}, {2*32768}", f"s_mov_b32 s{S_RSLOT}, 0")
    A(f"v_lshlrev_b32 v{V_T}, 2, v0", f"v_mov_b32 v{V_T+1}, 0",
      f"s_lshl_b32 s{S_T0}, s2, 8", f"s_add_u32 s{S_T0}, s{S_T0}, {FL_OFF}",
      f"buffer_store_dword v{V_T+1}, v{V_T}, {sr(SRD_WS,4)}, s{S_T0} offen sc0 sc1")
    npf += 1
    t0, t1, t2, t3 = V_T, V_T + 1, V_T + 2, V_T + 3
    A(f"v_lshrrev_b32 v{t0}, 4, v0",
      f"v_bfe_u32 v{t1}, v0, 2, 2",
      f"v_lshl_add_u32 v{t2}, v{t0}, 3, v{t1}",
      f"v_lshlrev_b32 v{t2}, 8, v{t2}",
      f"v_and_b32 v{t3}, 1, v0", f"v_lshl_add_u32 v{t2}, v{t3}, 3, v{t2}",
      f"v_add_u32 v{t2}, {WBASE}, v{t2}",
      f"v_and_b32 v{t0}, 1, v{t0}", f"v_lshl_add_u32 v{t1}, v{t0}, 2, v{t1}", f"v_lshlrev_b32 v{t1}, 1, v{t1}",
      f"v_bfe_u32 v{t3}, v0, 1, 1",
      f"s_lshl_b32 s{S_T0}, s{S_WM}, 3",
      f"v_add_u32 v{t3}, s{S_T0}, v{t3}")
    for cb in range(4):
        A(f"v_add_u32 v{t0}, {2*cb}, v{t3}", f"v_xor_b32 v{t0}, v{t0}, v{t1}",
          f"v_lshl_add_u32 v{V_RW+cb}, v{t0}, 4, v{t2}")
    A(f"v_and_b32 v{t0}, 15, v0", f"s_lshl_b32 s{S_T0}, s{S_WN}, 7", f"v_add_u32 v{t1}, s{S_T0}, v{t0}",
      f"v_lshlrev_b32 v{t1}, 7, v{t1}", f"v_lshrrev_b32 v{t0}, 1, v{t0}", f"v_lshrrev_b32 v{t2}, 4, v0")
    for ks in range(2):
        A(f"v_add_u32 v{t3}, {4*ks}, v{t2}", f"v_xor_b32 v{t3}, v{t3}, v{t0}",
          f"v_lshl_add_u32 v{V_RA+ks}, v{t3}, 4, v{t1}")
    A(f"s_mul_i32 s{S_T0}, s{S_XCD}, 14", f"s_add_u32 s{S_T0}, s{S_T0}, s{S_IDX}",
      f"s_lshr_b32 s{S_C2}, s{S_T0}, 3", f"s_and_b32 s{S_T0}, s{S_T0}, 7",
      LO,
      f"s_cselect_b32 s{S_RT2}, s{S_T0}, s{S_RT1}",
      f"s_mov_b32 s{S_STW2}, 8192", f"s_cselect_b32 s{S_STW2}, 3584, s{S_STW2}",
      f"s_mov_b32 s{S2_WSZ}, {(448 if LS else 1024)*4096*2}", f"s_cselect_b32 s{S2_WSZ}, {448*1792*2}, s{S2_WSZ}",
      J1L,
      f"s_mov_b32 s{S2_ASZ}, {2048*1024*2}", f"s_cselect_b32 s{S2_ASZ}, {2048*448*2}, s{S2_ASZ}",
      f"s_cselect_b32 s{S2_A0}, s{P_X}, s{P_CKV}", f"s_cselect_b32 s{S2_A1}, s{P_X+1}, s{P_CKV+1}")
    A(f"s_cmp_eq_u32 s{S_WN}, 1",
      f"s_cselect_b32 s{S_T2}, s{P_WU}, s{P_WG}", f"s_cselect_b32 s{S_T3}, s{P_WU+1}, s{P_WG+1}",
      f"s_lshl_b32 s{S_T1}, s{S_C2}, 8", f"s_mul_i32 s{S_T0}, s{S_WM}, {16*3584}", f"s_add_u32 s{S_T0}, s{S_T0}, s{S_T1}",
      LO,
      f"s_cselect_b32 s{S2_W0}, s{S_T2}, s{w2hi}", f"s_cselect_b32 s{S2_W1}, s{S_T3}, s{w2hi+1}",
      f"s_cselect_b32 s{S2_SOW}, s{S_T0}, s{S2_SOW}",
      f"s_lshl_b32 s{S2_WINC}, s{S_STW2}, 5")
    A(f"s_sub_u32 s{S_N}, 15, s{S_RT1}", f"s_cmp_eq_u32 s{S_WM}, 1", f"s_cselect_b32 s{S_T2}, s{S_RT1}, s{S_N}",
      f"s_lshl_b32 s{S_T2}, s{S_T2}, 7", f"s_lshl_b32 s{S_T1}, s{S_WN}, 6", f"s_add_u32 s{S_T2}, s{S_T2}, s{S_T1}")
    A(f"s_lshl_b32 s{S_T0}, s{S_RT2}, 8", f"s_lshl_b32 s{S_T1}, s{S_W}, 6", f"s_add_u32 s{S_T0}, s{S_T0}, s{S_T1}",
      LO, f"s_cselect_b32 s{S_T0}, s{S_T0}, s{S_T2}",
      f"s_mul_i32 s{S2_SOA0}, s{S_T0}, s{S_STA2}", f"s_lshl_b32 s{S_T1}, s{S_STA2}, 5", f"s_add_u32 s{S2_SOA1}, s{S2_SOA0}, s{S_T1}")
    A(f"s_and_b32 s{S_T0}, s{S_IDX}, 30", f"s_cmp_eq_u32 s{S_T0}, 14",
      f"s_cselect_b32 s{S2_ASZ}, 0, s{S2_ASZ}", f"s_cselect_b32 s{S2_WSZ}, 0, s{S2_WSZ}")
    voffs(A, V_A2, V_W2, f"s{S_STA2}", f"s{S_STW2}")
    for j in range(8): A(f"v_accvgpr_write_b32 a{A_J2+j}, v{V_A2+j}")
    A(f"s_lshl_b32 s{S_T0}, s{S_HEAD1}, 20", f"s_lshl_b32 s{S_T1}, s{S_RT1}, 17", f"s_add_u32 s{S_T0}, s{S_T0}, s{S_T1}",
      f"s_lshl_b32 s{S_T1}, s{S_WN}, 16", f"s_add_u32 s{S_T0}, s{S_T0}, s{S_T1}",
      f"s_lshl_b32 s{S_T1}, s{S_WM}, 11", f"s_add_u32 s{S_T2}, s{S_T0}, s{S_T1}",
      f"s_lshl_b32 s{S_T1}, s{S_WM}, 12", f"s_add_u32 s{S_T3}, s{S_T0}, s{S_T1}",
      )
    if LS:
        A(f"s_lshl_b32 s{S_DST2}, s{S_HEAD1}, 20", f"s_lshl_b32 s{S_T1}, s{S_N}, 16", f"s_add_u32 s{S_DST2}, s{S_DST2}, s{S_T1}",
          f"s_lshl_b32 s{S_T1}, s{S_WN}, 15", f"s_add_u32 s{S_DST2}, s{S_DST2}, s{S_T1}",
          f"s_lshl_b32 s{S_T1}, s{S_WM}, 11", f"s_add_u32 s{S_DST2}, s{S_DST2}, s{S_T1}", f"s_add_u32 s{S_DST2}, s{S_DST2}, {QF_OFF}")
        A(f"s_add_u32 s{S_T3}, s{S_T3}, {VF_OFF}", f"s_add_u32 s{S_T2}, s{S_T2}, {KF_OFF}",
          LO, f"s_cselect_b32 s{S_DST1}, s{S_T3}, s{S_T2}")
    else:
        A(f"s_add_u32 s{S_DST2}, s{S_T3}, {VF_OFF}", f"s_add_u32 s{S_T3}, s{S_T2}, {KF_OFF}", f"s_add_u32 s{S_T2}, s{S_T2}, {QF_OFF}",
          LO, f"s_cselect_b32 s{S_DST1}, s{S_T3}, s{S_T2}")
    A(f"s_lshl_b32 s{S_T0}, s{S_RT2}, 4", f"s_lshl_b32 s{S_T1}, s{S_WN}, 3", f"s_add_u32 s{S_T0}, s{S_T0}, s{S_T1}",
      f"s_mul_i32 s{S_T0}, s{S_T0}, {asmlib.AFS}", f"s_lshl_b32 s{S_T1}, s{S_C2}, 2", f"s_add_u32 s{S_T0}, s{S_T0}, s{S_T1}",
      f"s_lshl_b32 s{S_T1}, s{S_WM}, 1", f"s_add_u32 s{S_T0}, s{S_T0}, s{S_T1}", f"s_add_u32 s{S_T0}, s{S_T0}, 128",
      f"s_lshl_b32 s{S_T0}, s{S_T0}, 10", f"s_add_u32 s{S_T0}, s{S_T0}, {AF_OFF}",
      LO, f"s_cselect_b32 s{S_DST2}, s{S_T0}, s{S_DST2}")
    A(f"s_mov_b32 s{S_KIND}, s{P_WG}", f"s_mov_b32 s{S_STA2}, s{P_WG+1}")
    if CODE_BYTES:
        code_touch(A, CODE_BYTES); npf += 1
    if PREFETCH: prefetch_setup(A)
    A(f"v_mov_b32 v{V_RCUR}, v{V_RA}")
    A(f"s_waitcnt vmcnt({24+npf})", "s_barrier")
    A(reads_for(0, 0))
    A(f"s_waitcnt vmcnt({16+npf}) lgkmcnt(0)", "s_barrier")
    stamp(A, 1)
    A(LO, "s_cbranch_scc0 L_k1_hi")
    job(A, "k1L", "AW" if LS else "WA", 32, 0, True, pf=PREFETCH)
    stamp(A, 2)
    if "J1end" in hooks: hooks["J1end"](A)
    A(f"s_cmp_ge_u32 s{S_IDX}, 14", "s_cbranch_scc1 L_k1_side")
    early_dma(A, 0)
    aft = (epi_AW_stage if LS else epi_WA_stage)(A, S_DST1)
    stamp(A, 3)
    job(A, "k1G", "WA", 14, 0, False, after=aft, U=14, hook=hooks.get("J2", wl_hook), sig=hooks.get("sig"))
    stamp(A, 4)
    if "Gend" in hooks: hooks["Gend"](A)
    else:
        wl_finish(A); epi_GU(A, S_DST2); fin(A); A("s_endpgm")
    switch_code(A, "k1L")
    switch_code(A, "k1H")
    pf_blocks(A)
    A.label("L_k1_hi")
    job(A, "k1H", "WA", 32 if LS else 14, 0, True, pf=PREFETCH)
    stamp(A, 2)
    if "J1end" in hooks: hooks["J1end"](A)
    early_dma(A, 0 if LS else 2)
    aft = epi_WA_stage(A, S_DST1)
    stamp(A, 3)
    if LS: job(A, "k1Q", "WA", 14, 0, False, after=aft, U=14, hook=hooks.get("J2", wl_hook), sig=hooks.get("sig"))
    else: job(A, "k1V", "AW", 32, 2, False, after=aft, U=24 // TRICKLE, pf=PREFETCH, pf_roll=False)
    stamp(A, 4)
    assert LS
    if "Hend" in hooks: hooks["Hend"](A)
    else:
        wl_finish(A); (epi_WA if LS else epi_AW)(A, S_DST2); fin(A); A("s_endpgm")
    pf_blocks(A)
    A.label("L_k1_side")
    (epi_AW if LS else epi_WA)(A, S_DST1)
    stamp(A, 3)
    side_job(A, hooks["sig"][1] if "sig" in hooks else None)
    stamp(A, 4)
    if "Send" in hooks: hooks["Send"](A)
    else: fin(A)

def gen_k1(A, name="k1_kernel"):
    kernel_begin(A, name)
    A("s_cmp_ge_u32 s2, 256", "s_cbranch_scc1 L_k1_end")
    k1_body(A)
    A.label("L_k1_end")
    A("s_endpgm")

def desc_k1(A, name="k1_kernel"):
    kernel_desc(A, name, 512, 256)
```

```python
from asmlib import *
import asmlib

SRD_K, SRD_V, SRD_WS, SRD_DBG = 4, 8, 12, 60
S_W, S_W8192, S_CUR, S_NXT, S_KSO, S_VSO = 16, 17, 18, 19, 20, 21
S_T, S_T1N, S_EVA, S_MODE, S_QSO, S_C, S_THR = 22, 23, 24, 25, 26, 27, 28
S_T0, S_T1, S_T2, S_T3 = 29, 30, 31, 64
S_HEAD, S_PAIR, S_QB, S_EVB, S_WSSZ, S_PART, S_FLAG, S_KB0, S_VB0 = 65, 66, 67, 68, 69, 70, 71, 72, 73
S_POLLT, S_X = 82, 83
NT = 17
V_X8 = 24
V_SV = 20
SPLIT = 15
S_MASK = 74
V_L16, V_AK, V_AV, V_D0, V_D, V_MC, V_L, V_TS, V_T, V_X = 1, 2, 3, 4, 5, 6, 8, 10, 14, 16
S0, P0, O0 = 32, 96, 128
QA, FA, PA = 0, 64, 128
NSLOT = 5
PART_STRIDE = 4 * 17 * 1024
THR = 0x44800000

def S(par, kb, qb, r=0): return S0 + par * 32 + (kb * 2 + qb) * 4 + r
def P(par, ks, qb, d=0): return P0 + par * 16 + (ks * 2 + qb) * 4 + d
def O(db, qb, r=0): return O0 + (db * 2 + qb) * 4 + r
def Q(qb, ds): return QA + (qb * 8 + ds) * 4
def F(k): return FA + (k % 16) * 4
def TS(par, qb): return V_TS + par * 2 + qb

def rd(k, vaddr): return f"ds_read_b128 {ar(F(k),4)}, v{vaddr} offset:{(k % 32) * 1024}"

def qk_mfmas(par):
    m = []
    for kb in range(4):
        for ds in range(8):
            for qb in range(2):
                c = "0" if ds == 0 else vr(S(par, kb, qb), 4)
                m.append(f"v_mfma_f32_16x16x32_bf16 {vr(S(par,kb,qb),4)}, {ar(F(kb*8+ds),4)}, {ar(Q(qb,ds),4)}, {c}")
    return m
def pv_mfmas(par):
    m = []
    for ks in range(2):
        for db in range(16):
            for qb in range(2):
                m.append(f"v_mfma_f32_16x16x32_bf16 {vr(O(db,qb),4)}, {ar(F(ks*16+db),4)}, {vr(P(par,ks,qb),4)}, {vr(O(db,qb),4)}")
    return m

def sm_pair(par, h, p):
    kb, qb, rr = 2 * h + (p >> 2), (p >> 1) & 1, (p & 1) * 2
    xa, xb = V_X + (p & 1) * 2, V_X + (p & 1) * 2 + 1
    if h == 1 and p == 0: xa, xb = V_X8, V_X8 + 1
    ts = TS(par, qb)
    first = (h == 0 and (p >> 2) == 0 and (p & 1) == 0)
    return dict(
        fa=f"v_fma_f32 v{xa}, v{S(par,kb,qb,rr)}, s{S_C}, -v{V_MC+qb}",
        fb=f"v_fma_f32 v{xb}, v{S(par,kb,qb,rr+1)}, s{S_C}, -v{V_MC+qb}",
        ea=f"v_exp_f32 v{xa}, v{xa}", eb=f"v_exp_f32 v{xb}, v{xb}",
        aa=(f"v_mov_b32 v{ts}, v{xa}" if first else f"v_add_f32 v{ts}, v{ts}, v{xa}"),
        ab=f"v_add_f32 v{ts}, v{ts}, v{xb}",
        cv=f"v_cvt_pk_bf16_f32 v{P(par,h,qb,2*(kb&1)+(p&1))}, v{xa}, v{xb}")

def sm_plain(A, par, h, split=False):
    for p in range(0, 8, 2):
        a, b = sm_pair(par, h, p), sm_pair(par, h, p + 1)
        if split and h == 1 and p == 0:
            A(b["fa"], b["fb"], a["ab"], b["ea"], b["eb"], a["cv"], b["aa"], b["ab"], b["cv"])
        else:
            A(a["fa"], a["fb"], b["fa"], b["fb"], a["ea"], a["eb"], b["ea"], b["eb"],
              a["aa"], a["ab"], a["cv"], b["aa"], b["ab"], b["cv"])
    if split and h == 0:
        a = sm_pair(par, 1, 0)
        A(a["fa"], a["fb"], a["ea"], a["eb"], a["aa"])

def dma(srd, so, j): return f"buffer_load_dwordx4 v{V_L16}, {sr(srd,4)}, s{so} offen offset:{(j&3)*1024} lds"

def phase(A, kind, par, sm=True, dmas=True, look=True):
    if kind == "A":
        m = qk_mfmas(1 - par); vcur, vnxt = V_AK, V_AV; srd, so = SRD_K, S_KSO
        nsrd, nso, nb0, ahead, ev = SRD_V, S_VSO, S_VB0, 2, S_EVA
        smp, smh = par, 1
    else:
        m = pv_mfmas(par); vcur, vnxt = V_AV, V_AK; srd, so = SRD_V, S_VSO
        nsrd, nso, nb0, ahead, ev = SRD_K, S_KSO, S_KB0, 4, S_EVB
        smp, smh = 1 - par, 0
    g = {}
    def put(k, *ins): g.setdefault(k, []).extend(ins)
    sc = {}
    if dmas:
        sc[3] = f"s_add_u32 s{S_NXT}, s{S_CUR}, 32768"
        sc[5] = f"s_cmp_eq_u32 s{S_NXT}, {NSLOT*32768}"
        sc[11] = f"s_cselect_b32 s{S_NXT}, 0, s{S_NXT}"
        sc[13] = f"s_add_u32 s{S_T0}, s{S_T}, {ahead}"
        sc[19] = f"s_cmp_lt_u32 s{S_T0}, {NT}"
        sc[21] = f"s_cselect_b32 s{nsrd+2}, s{S_WSSZ}, 0"
        sc[27] = "s_add_u32 m0, m0, 4096"
        sc[29] = f"s_add_u32 s{so}, s{so}, 4096"
        sc[35] = f"s_cmp_eq_u32 s{S_T0}, s{S_T1N}"
        sc[37] = f"s_cselect_b32 s{nso}, s{nb0}, s{nso}"
        if kind == "B": sc[43] = f"s_add_u32 s{S_T}, s{S_T}, 1"
        sc[45] = f"s_add_u32 s{S_T1}, s{S_CUR}, s{S_W8192}"
        sc[51] = f"s_mov_b32 s{S_CUR}, s{S_NXT}"
        sc[53] = f"s_add_u32 s{S_T2}, s{so}, 28672"
        sc[59] = f"s_bitcmp1_b32 s{ev}, s{S_T}"
        sc[61] = "s_barrier"
    for grp in range(8):
        b = grp * 8
        d = None
        if sm and kind == "B": d = sm_pair(smp, 0, grp)
        if sm and kind == "A" and grp < 7: d = sm_pair(smp, 1, grp + 1)
        for i in range(4):
            k = 4 * (grp + 2) + i
            if k < 32: put(b + 2 * i, rd(k, vcur))
            elif look: put(b + 2 * i, rd(k, vnxt))
        if dmas:
            put(b + 1, dma(srd, so, grp))
            if grp == 7: put(b + 1, "s_waitcnt vmcnt(16)")
        for k in (3, 5):
            if b + k in sc: put(b + k, sc[b + k])
        if grp < 7 or look:
            put(b + 7, "s_waitcnt lgkmcnt(4)" if (grp < 6 or look) else "s_waitcnt lgkmcnt(0)")
        if d:
            put(b + 0, d["fa"]); put(b + 2, d["fb"]); put(b + 3, d["ea"]); put(b + 5, d["eb"])
            put(b + 6, d["aa"]); put(b + 7, d["ab"], d["cv"])
    if look: put(5 * 8 + 4, f"v_add_u32 v{vnxt}, s{S_NXT}, v{V_L16}")
    if kind == "B":
        put(4, f"v_add_f32 v{V_L}, v{V_L}, v{TS(par,0)}")
        put(12, f"v_add_f32 v{V_L+1}, v{V_L+1}, v{TS(par,1)}")
    if sm:
        e = sm_pair(smp, 1, 0)
        if kind == "B":
            put(20, e["fa"]); put(28, e["fb"]); put(36, e["ea"]); put(52, e["eb"]); put(60, e["aa"])
        else:
            put(4, e["ab"]); put(12, e["cv"])
            put(56, f"v_add_f32 v{V_T}, v{TS(par,0)}, v{TS(par,1)}")
            put(58, f"v_cmp_nge_f32 vcc, s{S_THR}, v{V_T}")
    if dmas:
        if kind == "A": put(60, f"s_mov_b32 m0, s{S_T1}"); put(62, f"s_mov_b32 s{so}, s{S_T2}")
        else: put(57, f"s_mov_b32 m0, s{S_T1}")
    interleave(A, m, g)
    if dmas and kind == "B": A(f"s_mov_b32 s{so}, s{S_T2}")

def check(A, par, tag):
    A(f"v_add_f32 v{V_T}, v{TS(par,0)}, v{TS(par,1)}",
      f"v_cmp_nge_f32 vcc, s{S_THR}, v{V_T}")

def xmax(A, v, t):
    A(f"v_mov_b32 v{t}, v{v}", "s_nop 1", f"v_permlane16_swap_b32 v{v}, v{t}", "s_nop 1", f"v_max_f32 v{v}, v{v}, v{t}",
      f"v_mov_b32 v{t}, v{v}", "s_nop 1", f"v_permlane32_swap_b32 v{v}, v{t}", "s_nop 1", f"v_max_f32 v{v}, v{v}, v{t}")
def xsum(A, v, t):
    A(f"v_mov_b32 v{t}, v{v}", "s_nop 1", f"v_permlane16_swap_b32 v{v}, v{t}", "s_nop 1", f"v_add_f32 v{v}, v{v}, v{t}",
      f"v_mov_b32 v{t}, v{v}", "s_nop 1", f"v_permlane32_swap_b32 v{v}, v{t}", "s_nop 1", f"v_add_f32 v{v}, v{v}, v{t}")

def rowmax(A, par, qb, dst, t):
    regs = [S(par, kb, qb, r) for kb in range(4) for r in range(4)]
    A(f"v_max3_f32 v{dst}, v{regs[0]}, v{regs[1]}, v{regs[2]}")
    for i in range(3, 15, 2):
        A(f"v_max3_f32 v{dst}, v{dst}, v{regs[i]}, v{regs[i+1]}")
    A(f"v_max_f32 v{dst}, v{dst}, v{regs[15]}")
    xmax(A, dst, t)
    A(f"v_mul_f32 v{dst}, s{S_C}, v{dst}")

def slow(A, par, lab, back):
    A.label(lab)
    for qb in range(2):
        rowmax(A, par, qb, V_T, V_T + 1)
        A(f"v_max_f32 v{V_T}, v{V_T}, v{V_MC+qb}",
          f"v_sub_f32 v{V_T+1}, v{V_MC+qb}, v{V_T}", f"v_exp_f32 v{V_T+1}, v{V_T+1}",
          f"v_mov_b32 v{V_MC+qb}, v{V_T}",
          f"v_mul_f32 v{V_L+qb}, v{V_L+qb}, v{V_T+1}")
        for db in range(16):
            for r in range(4): A(f"v_mul_f32 v{O(db,qb,r)}, v{O(db,qb,r)}, v{V_T+1}")
    sm_plain(A, par, 0); sm_plain(A, par, 1)
    A("s_nop 1", f"s_branch {back}")

def mask(A, par, toff):
    A(f"s_sub_u32 s{S_T0}, s{S_T}, {NT - 2 - toff}", f"s_lshl_b32 s{S_T0}, s{S_T0}, 6",
      f"s_lshl_b32 s{S_T1}, s{S_W}, 5", f"s_sub_u32 s{S_T0}, s{S_T1}, s{S_T0}",
      f"v_add_u32 v{V_D}, s{S_T0}, v{V_D0}", f"v_mov_b32 v{V_T}, 0xff800000", "s_nop 4")
    for kb in range(4):
        for qb in range(2):
            for r in range(4):
                A(f"v_cmp_le_i32 {sr(S_MASK+2*r,2)}, {16*kb + r - 16*qb}, v{V_D}")
            for r in range(4):
                A(f"v_cndmask_b32 v{S(par,kb,qb,r)}, v{V_T}, v{S(par,kb,qb,r)}, {sr(S_MASK+2*r,2)}")

def q_loads(A, base, srd):
    for qb in range(2):
        for ds in range(8):
            if ds % 4 == 0: A(f"s_add_u32 s{S_T0}, s{S_QSO}, {(qb*8+ds)*1024}")
            A(f"buffer_load_dwordx4 {ar(base + (qb*8+ds)*4,4)}, v{V_L16}, {sr(srd,4)}, s{S_T0} offen offset:{(ds%4)*1024}")

def item_load(A, slot, kind, t):
    srd, so, b0 = (SRD_K, S_KSO, S_KB0) if kind == "K" else (SRD_V, S_VSO, S_VB0)
    if t: A(f"s_cmp_eq_u32 s{S_T1N}, {t}", f"s_cselect_b32 s{so}, s{b0}, s{so}")
    for hf in range(2):
        A(f"s_add_u32 m0, s{S_W8192}, {slot*32768 + hf*4096}", "s_nop 0")
        for j in range(4): A(dma(srd, so, j))
        A(f"s_add_u32 s{so}, s{so}, {28672 if hf else 4096}")

def q_off(A, qblk):
    A(f"s_lshl_b32 s{S_T0}, s{S_HEAD}, 20", f"s_lshl_b32 s{S_T1}, s{qblk}, 16", f"s_add_u32 s{S_QSO}, s{S_T0}, s{S_T1}",
      f"s_lshl_b32 s{S_T1}, s{S_W}, 14", f"s_add_u32 s{S_QSO}, s{S_QSO}, s{S_T1}")
    if QF_OFF: A(f"s_add_u32 s{S_QSO}, s{S_QSO}, {QF_OFF}")

def pack_pair(A, x, y):
    A(f"v_cvt_pk_bf16_f32 v{x}, v{x}, v{x+1}", f"v_cvt_pk_bf16_f32 v{x+1}, v{x+2}, v{x+3}",
      f"v_cvt_pk_bf16_f32 v{x+2}, v{y}, v{y+1}", f"v_cvt_pk_bf16_f32 v{x+3}, v{y+2}, v{y+3}")

FINAL_SC = " sc0 sc1"
DIAG2 = False
_stamp0 = stamp
SMAP = {1: 3, 2: None, 3: 4}
def stamp(A, k):
    k = SMAP.get(k)
    if k is not None: _stamp0(A, k)

def final_store(A):
    A(f"s_lshl_b32 s{S_T0}, s{S_QB}, 3", f"s_lshl_b32 s{S_T1}, s{S_W}, 1", f"s_add_u32 s{S_T0}, s{S_T0}, s{S_T1}",
      f"s_mul_i32 s{S_T0}, s{S_T0}, {asmlib.AFS}", f"s_lshl_b32 s{S_T1}, s{S_HEAD}, 3", f"s_add_u32 s{S_T0}, s{S_T0}, s{S_T1}",
      f"s_lshl_b32 s{S_T0}, s{S_T0}, 10", f"s_add_u32 s{S_T0}, s{S_T0}, {AF_OFF}")

def poll_partner(A, idx):
    A(f"v_mov_b32 v{V_T+1}, 0")
    poll(A, [(f"buffer_load_dword v{V_T}, v{V_T+1}, {sr(SRD_WS,4)}, s{S_FLAG} offen offset:{4*idx} sc0 sc1", V_T, 1)], S_T1)

def poll_and_fetch(A, tag):
    poll_partner(A, F_PART)
    for i in range(16):
        if i % 4 == 0: A(f"s_add_u32 s{S_T0}, s{S_PART}, {i*1024}")
        A(f"buffer_load_dwordx4 {ar(PA+4*i,4)}, v{V_L16}, {sr(SRD_WS,4)}, s{S_T0} offen offset:{(i%4)*1024} sc0 sc1")
    A(f"s_add_u32 s{S_T0}, s{S_PART}, {16*1024}")
    A(f"buffer_load_dwordx4 {vr(V_SV,4)}, v{V_L16}, {sr(SRD_WS,4)}, s{S_T0} offen sc0 sc1")

def k2_setup1(A):
    A(f"v_lshlrev_b32 v{V_L16}, 4, v0")
    A(f"s_lshl_b32 s{S_W8192}, s{S_W}, 13",
      f"s_and_b32 s{S_T0}, s2, 7", f"s_lshr_b32 s{S_T1}, s2, 3",
      f"s_lshl_b32 s{S_HEAD}, s{S_T0}, 1", f"s_bfe_u32 s{S_T0}, s{S_T1}, 0x10003", f"s_add_u32 s{S_HEAD}, s{S_HEAD}, s{S_T0}",
      f"s_lshr_b32 s{S_MODE}, s{S_T1}, 4",
      f"s_and_b32 s{S_PAIR}, s{S_T1}, 7",
      f"s_sub_u32 s{S_QB}, 15, s{S_PAIR}",
      f"s_lshl_b32 s{S_T2}, s{S_PAIR}, 1", f"s_sub_u32 s{S_T2}, {SPLIT}, s{S_T2}")
    q_off(A, S_QB)
    A(f"s_add_u32 s{S_T0}, s{S_T0}, s{S_W8192}",
      f"s_add_u32 s{S_KB0}, s{S_T0}, {KF_OFF}", f"s_add_u32 s{S_VB0}, s{S_T0}, {VF_OFF}",
      f"s_lshl_b32 s{S_T1}, s{S_T2}, 15",
      f"s_cmp_eq_u32 s{S_MODE}, 0",
      f"s_cselect_b32 s{S_T1}, s{S_T1}, 0", f"s_cselect_b32 s{S_T1N}, 0x7fff, s{S_T2}",
      f"s_add_u32 s{S_KSO}, s{S_KB0}, s{S_T1}", f"s_add_u32 s{S_VSO}, s{S_VB0}, s{S_T1}",
      f"s_mov_b32 s{S_WSSZ}, {WS_BYTES}")
    for srd in (SRD_K, SRD_V):
        A(f"s_mov_b32 s{srd}, s{P_WS}", f"s_mov_b32 s{srd+1}, s{P_WS+1}", f"s_mov_b32 s{srd+2}, {WS_BYTES}",
          f"s_mov_b32 s{srd+3}, 0x20000")
    A(f"s_mov_b32 s{SRD_DBG}, s{P_DBG}", f"s_mov_b32 s{SRD_DBG+1}, s{P_DBG+1}", f"s_mov_b32 s{SRD_DBG+2}, 256",
      f"s_mov_b32 s{SRD_DBG+3}, 0x20000")
    A(f"s_or_b32 s{S_FLAG}, s2, 128", f"s_lshl_b32 s{S_FLAG}, s{S_FLAG}, 8", f"s_add_u32 s{S_FLAG}, s{S_FLAG}, {FL_OFF}")

V_KA, V_KF, S_KA = 21, 22, 36
def kv_addr():
    return [f"v_and_b32 v{V_KA}, 7, v0", f"v_lshlrev_b32 v{V_KA}, 11, v{V_KA}", f"v_bfe_u32 v{V_KF}, v0, 3, 1",
      f"v_lshl_add_u32 v{V_KA}, v{V_KF}, 15, v{V_KA}",
      f"s_and_b32 s{S_KA}, s2, 0x47", f"s_lshl_b32 s{S_KA}, s{S_KA}, 8", f"s_add_u32 s{S_KA}, s{S_KA}, {FL_OFF + 4*F_KV}"]
def kv_issue(): return f"buffer_load_dword v{V_KF}, v{V_KA}, {sr(SRD_WS,4)}, s{S_KA} offen sc0 sc1"
def kv_check(A, early=True):
    asmlib._lbl[0] += 1
    l = f"L_kv{asmlib._lbl[0]}"
    A(f"s_mov_b32 s{S_T2}, 256", f"v_cmp_ne_u32 vcc, s{S_T2}, v30", f"v_mov_b32 v{V_D}, 0", "s_nop 3", f"s_cbranch_vccnz {l}_s")
    if early: A(f"v_cmp_ne_u32 vcc, 1, v{V_KF}", "s_nop 4", f"s_cbranch_vccz {l}_ok")
    A(f"s_branch {l}_p", f"{l}_s:")
    poll(A, [(f"buffer_load_dword v{V_T}, v{V_D}, {sr(SRD_DBG,4)}, 0 offen sc0 sc1", V_T, f"s{S_T2}")], S_T1, sleep=32)
    A(f"{l}_p:")
    poll(A, [(kv_issue(), V_KF, 1)], S_T1)
    A(f"{l}_ok:")

def k2_setup2(A):
    A(f"v_and_b32 v{V_D0}, 15, v0", f"v_lshrrev_b32 v{V_T}, 4, v0", f"v_lshlrev_b32 v{V_T}, 2, v{V_T}",
      f"v_sub_u32 v{V_D0}, v{V_D0}, v{V_T}")
    A(f"s_mov_b32 s{S_C}, 0x3db8aa3b", f"s_mov_b32 s{S_THR}, {THR}")
    A(f"s_lshl_b32 s{S_T0}, s{S_HEAD}, 3", f"s_add_u32 s{S_T0}, s{S_T0}, s{S_PAIR}",
      f"s_mul_i32 s{S_PART}, s{S_T0}, {PART_STRIDE}", f"s_mul_i32 s{S_T1}, s{S_W}, {17*1024}",
      f"s_add_u32 s{S_PART}, s{S_PART}, s{S_T1}", f"s_add_u32 s{S_PART}, s{S_PART}, {PART_OFF}")
    A(f"s_sub_u32 s{S_X}, s{S_T1N}, 1", f"s_lshl_b32 s{S_T0}, 3, s{S_X}",
      f"s_cmp_eq_u32 s{S_MODE}, 0", f"s_cselect_b32 s{S_T0}, 0, s{S_T0}",
      f"s_or_b32 s{S_EVA}, s{S_T0}, {3 << (NT-3)}", f"s_or_b32 s{S_EVB}, s{S_T0}, {(3 << (NT-2)) | sum(1 << u for u in DEFER)}",
      f"s_mov_b32 s{S_POLLT}, {NT-2}",
      f"s_cmp_eq_u32 s{S_PAIR}, 0", f"s_cselect_b32 s{S_POLLT}, {NT-1}, s{S_POLLT}",
      f"s_cmp_eq_u32 s{S_MODE}, 1", f"s_cselect_b32 s{S_POLLT}, 0x7fff, s{S_POLLT}")
    A(f"v_mov_b32 v{V_L}, 0", f"v_mov_b32 v{V_L+1}, 0", f"s_mov_b32 s{S_T}, 0")
    A(f"v_add_u32 v{V_AV}, {slot_of(0)*32768}, v{V_L16}", f"v_add_u32 v{V_AK}, {slot_of(1)*32768}, v{V_L16}")

ITEMS = (("K", 0), ("K", 1), ("V", 0), ("K", 2), ("V", 1))
SLOT0 = 4
def slot_of(n): return (n + SLOT0) % NSLOT
def items(A, lo, hi):
    for n in range(lo, hi): item_load(A, slot_of(n), *ITEMS[n])
    if hi == 5: A(f"s_cmp_eq_u32 s{S_T1N}, 3", f"s_cselect_b32 s{S_KSO}, s{S_KB0}, s{S_KSO}")
def chunks(lines, per):
    out, cur, n = [], [], 0
    for l in lines:
        if l.startswith("buffer_") and n == per:
            out.append(cur); cur, n = [], 0
        cur.append(l)
        if l.startswith("buffer_"): n += 1
    out.append(cur)
    return out

def p0(A, extra=None):
    for k in range(8): A(rd(k, V_AV))
    m = qk_mfmas(0)
    g = {}
    for grp in range(6):
        for i in range(4):
            g.setdefault(grp * 8 + 2 * i, []).append(rd(4 * (grp + 2) + i, V_AV))
    for k, v in (extra or {}).items(): g.setdefault(k, []).extend(v)
    for grp in range(7): g.setdefault(grp * 8 + 7, []).append("s_waitcnt lgkmcnt(4)" if grp < 6 else "s_waitcnt lgkmcnt(0)")
    z = [f"v_pk_mul_f32 {vr(O0+2*i,2)}, 0, 0" if False else f"v_mov_b64 {vr(O0+2*i,2)}, 0" for i in range(64)]
    for k in range(64): g.setdefault(k, []).append(z[k])
    A("s_waitcnt lgkmcnt(4)")
    interleave(A, m, g)

DEFER = {}
def k2_main(A, done):
    A("s_nop 7")
    for qb in range(2): rowmax(A, 0, qb, V_MC + qb, V_T)
    A("s_waitcnt vmcnt(16)", "s_barrier")
    for k in range(8): A(rd(k, V_AK))
    sm_plain(A, 0, 0, split=True)
    A(f"s_mov_b32 s{S_CUR}, {slot_of(1)*32768}", f"s_add_u32 m0, s{S_W8192}, {slot_of(0)*32768}", "s_waitcnt lgkmcnt(4)")
    stamp(A, 2)
    A(f"s_bitcmp1_b32 s{S_EVB}, 0", "s_cbranch_scc1 L_k2_evb0")
    A(".p2align 6")
    for par in range(2):
        A.label(f"L_k2_a{par}")
        if DIAG2 and par == 0 and asmlib.STAMPS:
            for k, u in ((2, 2), (3, 6), (4, 14)):
                A(f"s_cmp_eq_u32 s{S_T}, {u}", f"s_cbranch_scc0 L_k2_ns{k}"); _stamp0(A, k); A.label(f"L_k2_ns{k}")
        phase(A, "A", par)
        A(f"s_cbranch_scc1 L_k2_eva{par}")
        A(f"s_cbranch_vccnz L_k2_slow{par}")
        A.label(f"L_k2_b{par}")
        phase(A, "B", par)
        if par == 0: A("s_cbranch_scc1 L_k2_evb1")
        else: A("s_cbranch_scc0 L_k2_a0")
    A.label("L_k2_evb0")
    A(f"s_cmp_eq_u32 s{S_T}, {NT-1}", "s_cbranch_scc1 L_k2_tail")
    for u, f in DEFER.items():
        A(f"s_cmp_eq_u32 s{S_T}, {u}", f"s_cbranch_scc0 L_k2_nd{u}")
        f(A)
        A.label(f"L_k2_nd{u}")
    A(f"s_cmp_eq_u32 s{S_T}, s{S_X}", "s_cbranch_scc0 L_k2_a0")
    for i in range(64): A(f"v_accvgpr_mov_b32 a{QA+i}, a{PA+i}")
    A("s_nop 1", "s_branch L_k2_a0")
    A.label("L_k2_evb1")
    A(f"s_cmp_eq_u32 s{S_T}, s{S_T1N}", "s_cbranch_scc1 L_k2_ostore")
    A(f"s_cmp_eq_u32 s{S_T}, s{S_POLLT}", "s_cbranch_scc0 L_k2_a1")
    poll_and_fetch(A, "L")
    A("s_branch L_k2_a1")
    A.label("L_k2_ostore")
    A("s_nop 4")
    for i in range(16):
        qb, dp = i >> 3, i & 7
        if i % 4 == 0: A(f"s_add_u32 s{S_T0}, s{S_PART}, {i*1024}")
        x, y = O(2 * dp, qb), O(2 * dp + 1, qb)
        pack_pair(A, x, y)
        A(f"buffer_store_dwordx4 {vr(x,4)}, v{V_L16}, {sr(SRD_WS,4)}, s{S_T0} offen offset:{(i%4)*1024} sc0 sc1")
        for r in range(4): A(f"v_mov_b32 v{y+r}, 0")
        for r in range(4): A(f"v_mov_b32 v{x+r}, 0")
    A(f"s_add_u32 s{S_T0}, s{S_PART}, {16*1024}")
    A(f"buffer_store_dwordx4 {vr(V_SV,4)}, v{V_L16}, {sr(SRD_WS,4)}, s{S_T0} offen sc0 sc1")
    A(f"s_mov_b32 s{S_QB}, s{S_PAIR}", "s_branch L_k2_a1")
    for par in range(2):
        A.label(f"L_k2_eva{par}")
        A(f"s_cbranch_vccnz L_k2_eslow{par}")
        A.label(f"L_k2_eslowback{par}")
        A(f"s_cmp_lt_u32 s{S_T}, {NT-3}", f"s_cbranch_scc1 L_k2_nomask{par}")
        mask(A, 1 - par, 1)
        A.label(f"L_k2_nomask{par}")
        if par == 0:
            A(f"s_cmp_eq_u32 s{S_T}, s{S_X}", "s_cbranch_scc0 L_k2_b0", "s_nop 4")
            for qb in range(2):
                A(f"v_mov_b32 v{V_SV+qb}, v{V_MC+qb}", f"v_add_f32 v{V_SV+2+qb}, v{V_L+qb}, v{TS(0,qb)}",
                  f"v_mov_b32 v{V_L+qb}, 0", f"v_mov_b32 v{TS(0,qb)}, 0")
                rowmax(A, 1, qb, V_MC + qb, V_T)
            A("s_branch L_k2_b0")
        else:
            A(f"s_cmp_eq_u32 s{S_T}, s{S_T1N}", "s_cbranch_scc0 L_k2_b1")
            A("s_waitcnt vmcnt(8)", "s_barrier")
            signal(A, SRD_WS, S_W, F_PART, V_T, S_T0)
            A("s_branch L_k2_b1")
    A.label("L_k2_tail")
    A(f"s_add_u32 s{S_NXT}, s{S_CUR}, 32768", f"s_cmp_eq_u32 s{S_NXT}, {NSLOT*32768}", f"s_cselect_b32 s{S_NXT}, 0, s{S_NXT}",
      f"v_add_u32 v{V_AV}, s{S_NXT}, v{V_L16}", "s_waitcnt lgkmcnt(0)")
    for k in range(8): A(rd(k, V_AV))
    sm_plain(A, 0, 1, split=True)
    A(f"s_cmp_eq_u32 s{S_POLLT}, {NT-1}", "s_cbranch_scc0 L_k2_nopoll")
    poll_and_fetch(A, "T")
    A.label("L_k2_nopoll")
    check(A, 0, "")
    A("s_nop 1", "s_cbranch_vccnz L_k2_tslow")
    A.label("L_k2_tslowback")
    A("s_waitcnt lgkmcnt(4)")
    phase(A, "B", 0, sm=False, dmas=False, look=False)
    stamp(A, 3)
    final_store(A)
    def scale_store(scale):
        for qb in range(2):
            for dp in range(8):
                if dp % 4 == 0: A(f"s_add_u32 s{S_T1}, s{S_T0}, {qb*asmlib.AFS*1024 + dp*1024}")
                x, y = O(2 * dp, qb), O(2 * dp + 1, qb)
                scale(qb, dp)
                pack_pair(A, x, y)
                A(f"buffer_store_dwordx4 {vr(x,4)}, v{V_L16}, {sr(SRD_WS,4)}, s{S_T1} offen offset:{(dp%4)*1024}{FINAL_SC}")
    A(f"s_cmp_eq_u32 s{S_MODE}, 0", "s_cbranch_scc1 L_k2_epi_comb")
    for qb in range(2):
        xsum(A, V_L + qb, V_T)
        A(f"v_rcp_f32 v{V_L+qb}, v{V_L+qb}")
    A("s_nop 0")
    def sc_plain(qb, dp):
        for db in (2 * dp, 2 * dp + 1):
            for r in range(4): A(f"v_mul_f32 v{O(db,qb,r)}, v{O(db,qb,r)}, v{V_L+qb}")
    scale_store(sc_plain)
    done(A, "B")
    A.label("L_k2_epi_comb")
    A("s_waitcnt vmcnt(0)")
    WA_, WB_ = V_X, V_X + 2
    for qb in range(2):
        A(f"v_max_f32 v{V_T}, v{V_MC+qb}, v{V_SV+qb}",
          f"v_sub_f32 v{WA_+qb}, v{V_MC+qb}, v{V_T}", f"v_sub_f32 v{WB_+qb}, v{V_SV+qb}, v{V_T}",
          f"v_exp_f32 v{WA_+qb}, v{WA_+qb}", f"v_exp_f32 v{WB_+qb}, v{WB_+qb}", "s_nop 0",
          f"v_mul_f32 v{V_L+qb}, v{V_L+qb}, v{WA_+qb}", f"v_fma_f32 v{V_L+qb}, v{V_SV+2+qb}, v{WB_+qb}, v{V_L+qb}")
        xsum(A, V_L + qb, V_T)
        A(f"v_rcp_f32 v{V_L+qb}, v{V_L+qb}", "s_nop 0",
          f"v_mul_f32 v{WA_+qb}, v{WA_+qb}, v{V_L+qb}", f"v_mul_f32 v{WB_+qb}, v{WB_+qb}, v{V_L+qb}")
    A(f"s_mov_b32 s{S_T2}, 0xffff0000")
    def sc_comb(qb, dp):
        i = qb * 8 + dp
        t = S0 + (i & 1) * 8
        regs = [O(2 * dp, qb, r) for r in range(4)] + [O(2 * dp + 1, qb, r) for r in range(4)]
        for d in range(4): A(f"v_accvgpr_read_b32 v{t+2*d+1}, a{PA + 4*i + d}")
        for r in regs: A(f"v_mul_f32 v{r}, v{r}, v{WA_+qb}")
        for d in range(4):
            A(f"v_lshlrev_b32 v{t+2*d}, 16, v{t+2*d+1}", f"v_and_b32 v{t+2*d+1}, s{S_T2}, v{t+2*d+1}")
        for k, r in enumerate(regs): A(f"v_fma_f32 v{r}, v{t+k}, v{WB_+qb}, v{r}")
    scale_store(sc_comb)
    done(A, "A")
    for par in range(2):
        slow(A, par, f"L_k2_slow{par}", f"L_k2_b{par}")
        slow(A, par, f"L_k2_eslow{par}", f"L_k2_eslowback{par}")
    slow(A, 0, "L_k2_tslow", "L_k2_tslowback")
```

```python
from asmlib import *
import asmlib

SRD_WS, SRD_OUT = 12, 24
S_W, S_QB, S_CT, S_J, S_ASO, S_WSO, S_WSO3, S_M0, S_T0, S_T1, S_RED, S_FL, S_T2 = 16, 61, 62, 63, 64, 65, 66, 67, 68, 69, 70, 71, 72
V_L16, V_AO, V_T, V_G, V_RD = 1, 2, 4, 8, 10
V_PH, V_PC, V_PI, V_PD = 13, 14, 15, 16
VGAPS = [1, 4, 8, 11, 15, 18, 22, 25]
WGAP = 27
PF = 0
D = 4
NH, NC = 7, 16
NS = NH + NC
ACC_A, ACC_B = 32, 96
WF_R, AF_R = 0, 112
def nslot(): return D + 1
WF_CT = KSTEPS3 * 7 * 1024

def areg(s, k, rb): return AF_R + (s % (D + 1)) * 16 + (k * 2 + rb) * 4
def wreg(s, k, cb): return WF_R + (s & 1) * 56 + (k * 7 + cb) * 4
def acc(s, cb, rb): return (ACC_B if s < NH else ACC_A) + (rb * 7 + cb) * 4
def kbase(s):
    return 2 * s if s < NH else 2 * (s - NH)

def switch_ctx():
    return [f"s_mul_i32 s{S_T0}, s{S_J}, 18", f"s_sub_u32 s{S_T0}, 128, s{S_T0}"]

def w_loads(s):
    kb = kbase(s)
    pre = [f"s_add_u32 m0, s{S_M0}, {(s % nslot()) * 16384}",
           f"s_add_u32 s{S_T0}, s{S_WSO + (0 if s < NH else 10)}, {kb * 7168}",
           f"s_add_u32 s{S_T1}, s{S_T0}, s{S_WSO3}"]
    L = [f"buffer_load_dwordx4 v{V_L16}, {sr(SRD_WS,4)}, s{S_T0} offen offset:{j*1024} lds" for j in range(3)]
    L.append(f"buffer_load_dwordx4 v{V_L16}, {sr(SRD_WS,4)}, s{S_T1} offen offset:3072 lds")
    return pre, L
def a_loads(s):
    kb = kbase(s)
    pre = [f"s_add_u32 s{S_T2}, s{S_ASO + (0 if s < NH else 10)}, {kb * 1024}"]
    L = [f"buffer_load_dwordx4 {ar(areg(s,k,rb),4)}, v{V_AO+rb}, {sr(SRD_WS,4)}, s{S_T2} offen offset:{k*1024}"
         for k in range(2) for rb in range(2)]
    return pre, L
def fpos(f):
    if f < 8: return f * 1024
    if f < 11: return 8192 + (f - 8) * 1024
    return 12288 + (f - 11) * 1024
def reads(s):
    o = (s % nslot()) * 16384
    v = V_RD + o // 49152
    o = o % 49152
    return [f"ds_read_b128 {ar(wreg(s,k,cb),4)}, v{v} offset:{o + fpos(k*7+cb)}" for k in range(2) for cb in range(7)]

def setup(A):
    A(f"s_and_b32 s{S_T0}, s2, 7", f"s_lshr_b32 s{S_J}, s{S_T0}, 1", f"s_and_b32 s{S_T0}, s{S_T0}, 1",
      f"s_lshl_b32 s{S_QB}, s{S_T0}, 3", f"s_lshr_b32 s{S_T1}, s2, 5", f"s_add_u32 s{S_QB}, s{S_QB}, s{S_T1}",
      f"s_lshr_b32 s{S_CT}, s2, 3", f"s_and_b32 s{S_CT}, s{S_CT}, 3")
    A(f"v_mov_b32 v{V_AO}, v{V_L16}", f"v_add_u32 v{V_AO+1}, {asmlib.AFS*1024}, v{V_L16}",
      f"v_mov_b32 v{V_RD}, v{V_L16}", f"v_add_u32 v{V_RD+1}, 49152, v{V_L16}", f"v_add_u32 v{V_RD+2}, 98304, v{V_L16}")
    A(f"s_lshl_b32 s{S_T0}, s{S_QB}, 2", f"s_add_u32 s{S_T0}, s{S_T0}, s{S_W}", f"s_mul_i32 s{S_T0}, s{S_T0}, {2*asmlib.AFS*1024}",
      f"s_add_u32 s{S_T0}, s{S_T0}, {AF_OFF}",
      f"s_mul_i32 s{S_T1}, s{S_J}, {14*1024}", f"s_add_u32 s{S_ASO}, s{S_T0}, s{S_T1}", f"s_add_u32 s{S_ASO}, s{S_ASO}, {128*1024}",
      f"s_lshl_b32 s{S_T1}, s{S_J}, 15", f"s_add_u32 s{S_ASO+10}, s{S_T0}, s{S_T1}")
    A(f"s_mul_i32 s{S_T0}, s{S_CT}, {WF_CT}", f"s_lshl_b32 s{S_T1}, s{S_W}, 12", f"s_add_u32 s{S_T0}, s{S_T0}, s{S_T1}",
      f"s_cmp_eq_u32 s{S_W}, 3", f"s_cselect_b32 s{S_T1}, 1024, 0", f"s_sub_u32 s{S_T0}, s{S_T0}, s{S_T1}",
      f"s_add_u32 s{S_T0}, s{S_T0}, {WF_OFF}",
      f"s_mul_i32 s{S_T1}, s{S_J}, {14*7168}", f"s_add_u32 s{S_WSO}, s{S_T0}, s{S_T1}", f"s_add_u32 s{S_WSO}, s{S_WSO}, {128*7168}",
      f"s_mul_i32 s{S_T1}, s{S_J}, {32*7168}", f"s_add_u32 s{S_WSO+10}, s{S_T0}, s{S_T1}",
      f"s_cmp_ge_u32 s{S_W}, 2", f"s_cselect_b32 s{S_WSO3}, 0x40000000, 0",
      f"s_lshl_b32 s{S_M0}, s{S_W}, 12")

def touch_setup(A):
    t0, t1 = V_T, V_T + 1
    A(f"s_lshr_b32 s{S_T0}, s{S_CT}, 1", f"s_mul_i32 s{S_T0}, s{S_T0}, {asmlib.AFS*1024}", f"s_and_b32 s{S_T1}, s{S_CT}, 1",
      f"s_lshl_b32 s{S_T1}, s{S_T1}, 10", f"s_add_u32 s{S_T0}, s{S_T0}, s{S_T1}",
      f"v_lshlrev_b32 v{t0}, 7, v0", f"v_add_u32 v{t0}, s{S_T0}, v{t0}",
      f"v_add_u32 v{V_PH}, s{S_ASO}, v{t0}", f"v_add_u32 v{V_PC}, s{S_ASO+10}, v{t0}")
    A(f"s_and_b32 s{S_T0}, s{S_QB}, 7", f"s_lshl_b32 s{S_T0}, s{S_T0}, 9", f"s_sub_u32 s{S_T0}, s{S_T0}, 1024",
      f"v_lshlrev_b32 v{t0}, 7, v0", f"v_add_u32 v{t0}, s{S_T0}, v{t0}",
      f"v_add_u32 v{t1}, s{S_WSO}, v{t0}", f"v_cmp_gt_u32 vcc, 8, v0", f"v_add_u32 v{t0}, s{S_WSO+10}, v{t0}",
      f"v_mov_b32 v{V_PI}, 2048", f"v_mov_b32 v{V_PD}, 14336",
      f"v_cndmask_b32 v{V_PH}, v{t1}, v{V_PH}, vcc", f"v_cndmask_b32 v{V_PC}, v{t0}, v{V_PC}, vcc",
      f"v_cndmask_b32 v{V_PI}, v{V_PD}, v{V_PI}, vcc",
      f"v_cmp_gt_u32 vcc, 12, v0", f"v_mov_b32 v{t0}, 0x80000000", "s_nop 0",
      f"v_cndmask_b32 v{V_PH}, v{t0}, v{V_PH}, vcc", f"v_cndmask_b32 v{V_PC}, v{t0}, v{V_PC}, vcc")
    for _ in range(D): A(f"v_add_u32 v{V_PH}, v{V_PI}, v{V_PH}")
def touch(s):
    v = V_PH if s < NH else V_PC
    return [f"buffer_load_dword v{V_PD}, v{v}, {sr(SRD_WS,4)}, 0 offen", f"v_add_u32 v{v}, v{V_PI}, v{v}"]

def body(A):
    order = []
    for s in range(D):
        for f in (w_loads, a_loads):
            pre, L = f(s); A(pre, L); order += [s] * 4
    if PF:
        touch_setup(A)
        for s in range(D, D + PF): A(touch(s)); order.append(-1)
    A(f"v_and_b32 v{V_T}, 15, v0", f"v_lshlrev_b32 v{V_T}, 2, v{V_T}",
      f"s_lshl_b32 s{S_T0}, s{S_QB}, 2", f"s_add_u32 s{S_T0}, s{S_T0}, s{S_W}", f"s_lshl_b32 s{S_T0}, s{S_T0}, 7",
      f"s_add_u32 s{S_T0}, s{S_T0}, {G_OFF}")
    for rb in range(2):
        A(f"buffer_load_dword v{V_G+rb}, v{V_T}, {sr(SRD_WS,4)}, s{S_T0} offen offset:{rb*64}"); order.append(-1)
    def wait_for(s):
        last = max(i for i, o in enumerate(order) if o == s)
        return len(order) - 1 - last
    A(f"s_waitcnt vmcnt({wait_for(0)})", "s_barrier")
    stamp(A, 1)
    A(reads(0))
    A(f"s_waitcnt vmcnt({wait_for(1)})", "s_barrier")
    for s in range(NS):
        g = {}
        def put(k, *ins): g.setdefault(k, []).extend(ins)
        A("s_waitcnt lgkmcnt(0)")
        vg = VGAPS
        if s + 1 < NS:
            rg = [k for k in range(28) if k not in vg][:14]
            for k, r in zip(rg, reads(s + 1)): put(k, r)
        wpos = WGAP
        nbefore = 0
        if s + D < NS:
            pw, Lw = w_loads(s + D); pa, La = a_loads(s + D)
            A(pa, pw)
            for k, x in zip(vg, La + Lw): put(k, x)
            nbefore = sum(1 for k in vg if k > wpos)
            order += [s + D] * 8
        if PF and s + D + PF < NS:
            t = touch(s + D + PF); put(27, t[0], t[1]); order.append(-1); nbefore += 1
        if s + 2 < NS:
            put(wpos, f"s_waitcnt vmcnt({wait_for(s + 2) - nbefore})"); put(wpos, "s_barrier")
        m = []
        for k in range(2):
            for cb in range(7):
                for rb in range(2):
                    c = "0" if (s in (0, NH) and k == 0) else vr(acc(s, cb, rb), 4)
                    m.append(f"v_mfma_f32_16x16x32_bf16 {vr(acc(s,cb,rb),4)}, {ar(wreg(s,k,cb),4)}, {ar(areg(s,k,rb),4)}, {c}")
        interleave(A, m, g)
    stamp(A, 2)
    A(f"s_lshl_b32 s{S_T0}, s{S_QB}, 2", f"s_add_u32 s{S_T0}, s{S_T0}, s{S_CT}",
      f"s_and_b32 s{S_FL}, s2, 0xf9", f"s_lshl_b32 s{S_FL}, s{S_FL}, 8", f"s_add_u32 s{S_FL}, s{S_FL}, {FL_OFF + 4*F_RED}",
      f"s_lshl_b32 s{S_T0}, s{S_T0}, 4", f"s_add_u32 s{S_T0}, s{S_T0}, s{S_W}", f"s_mul_i32 s{S_RED}, s{S_T0}, 14336",
      f"s_add_u32 s{S_RED}, s{S_RED}, {RED_OFF}",
      f"s_mul_i32 s{S_T0}, s{S_J}, {4*14336}", f"s_add_u32 s{S_T0}, s{S_T0}, s{S_RED}")
    for b in range(14):
        rb = b // 7
        a, bb = ACC_A + 4 * b, ACC_B + 4 * b
        if b % 4 == 0 and b: A(f"s_add_u32 s{S_T0}, s{S_T0}, 4096")
        for r in range(4): A(f"v_sub_f32 v{a+r}, v{a+r}, v{bb+r}")
        for r in range(4): A(f"v_fma_f32 v{a+r}, v{a+r}, v{V_G+rb}, v{bb+r}")
        A(f"buffer_store_dwordx4 {vr(a,4)}, v{V_L16}, {sr(SRD_WS,4)}, s{S_T0} offen offset:{(b%4)*1024} sc0 sc1")
    A("s_waitcnt vmcnt(0)", "s_barrier")
    stamp(A, 3)
    signal(A, SRD_WS, S_W, F_RED, V_T, S_T0)
    A(f"v_and_b32 v{V_T+2}, 15, v0", f"v_mul_u32_u24 v{V_T+2}, 896, v{V_T+2}", f"v_lshrrev_b32 v{V_T+3}, 4, v0",
      f"v_lshl_add_u32 v{V_T+2}, v{V_T+3}, 3, v{V_T+2}",
      f"s_lshl_b32 s{S_T0}, s{S_QB}, 2", f"s_add_u32 s{S_T0}, s{S_T0}, s{S_W}", f"s_mul_i32 s{S_ASO}, s{S_T0}, {32*896}",
      f"s_mul_i32 s{S_T0}, s{S_CT}, 224", f"s_add_u32 s{S_ASO}, s{S_ASO}, s{S_T0}",
      f"s_lshl_b32 s{S_T0}, s{S_J}, 10", f"s_add_u32 s{S_RED}, s{S_RED}, s{S_T0}",
      f"v_and_b32 v{V_T+1}, 3, v0", f"v_lshlrev_b32 v{V_T+1}, 9, v{V_T+1}")
    poll(A, [(f"buffer_load_dword v{V_T}, v{V_T+1}, {sr(SRD_WS,4)}, s{S_FL} offen sc0 sc1", V_T, 1)], S_T1, wave0=S_W)
    stamp(A, 4)
    R0 = ACC_A
    for i in range(4):
        for jj in range(4):
            A(f"s_add_u32 s{S_T0}, s{S_RED}, {jj*4*14336 + i*4096}",
              f"buffer_load_dwordx4 {vr(R0 + (i*4+jj)*4, 4)}, v{V_L16}, {sr(SRD_WS,4)}, s{S_T0} offen sc0 sc1")
    for i in range(4):
        b = R0 + i * 16
        A(f"s_add_u32 s{S_T0}, s{S_J}, {4*i}", f"s_lshl_b32 s{S_T1}, s{S_T0}, 5",
          f"s_cmp_ge_u32 s{S_T0}, 7", f"s_cselect_b32 s{S_T2}, {16*896 - 7*32}, 0", f"s_add_u32 s{S_T1}, s{S_T1}, s{S_T2}",
          f"s_cmp_ge_u32 s{S_T0}, 14", f"s_cselect_b32 s{S_T2}, 0x40000000, 0", f"s_add_u32 s{S_T1}, s{S_T1}, s{S_T2}",
          f"s_add_u32 s{S_T1}, s{S_T1}, s{S_ASO}")
        A(f"s_waitcnt vmcnt({12 - 4*i + i})")
        for r in range(4): A(f"v_add_f32 v{b+r}, v{b+r}, v{b+4+r}")
        for r in range(4): A(f"v_add_f32 v{b+8+r}, v{b+8+r}, v{b+12+r}")
        for r in range(4): A(f"v_add_f32 v{b+r}, v{b+r}, v{b+8+r}")
        A(f"v_cvt_pk_bf16_f32 v{b}, v{b}, v{b+1}", f"v_cvt_pk_bf16_f32 v{b+1}, v{b+2}, v{b+3}",
          f"buffer_store_dwordx2 {vr(b,2)}, v{V_T+2}, {sr(SRD_OUT,4)}, s{S_T1} offen")

def gen_k3(A, name="k3_kernel"):
    kernel_begin(A, name)
    A("s_cmp_ge_u32 s2, 256", "s_cbranch_scc1 L_k3_end")
    A("s_load_dwordx2 s[54:55], s[0:1], 88", "s_load_dwordx2 s[58:59], s[0:1], 104")
    stamp_rt(A, 7); stamp(A, 0)
    A(f"v_lshrrev_b32 v{V_T}, 6, v0", "v_and_b32 v0, 63, v0", f"v_readfirstlane_b32 s{S_W}, v{V_T}",
      f"v_lshlrev_b32 v{V_L16}, 4, v0")
    setup(A)
    A("s_waitcnt lgkmcnt(0)")
    for srd, p, sz in ((SRD_WS, P_WS, WS_BYTES), (SRD_OUT, P_OUT, 2048*448*2)):
        A(f"s_mov_b32 s{srd}, s{p}", f"s_mov_b32 s{srd+1}, s{p+1}", f"s_mov_b32 s{srd+2}, {sz}", f"s_mov_b32 s{srd+3}, 0x20000")
    body(A)
    if asmlib.STAMPS:
        stamp(A, 5)
        A("s_waitcnt vmcnt(0)")
        stamp(A, 6); stamp_rt(A, 8)
        stamp_flush(A, SRD_WS, S_W, 1)
    A.label("L_k3_end")
    A("s_endpgm")

LDS_K3 = 131072
GRID_K3 = 256
def desc_k3(A, name="k3_kernel"):
    kernel_desc(A, name, 256 + 112 + 16 * (D + 1), 256)
```

```python
import sys
sys.path.insert(0, "dev")
from asmlib import *
import asmlib, k1, k2, k3, fused
HDR = open("gated_mix__compressed_kv_cla__glu_gated_glu__prompt.s.ref").read().split("; Override launch")[0]
def build(which):
    A = Asm()
    A(HDR.rstrip())
    name = "f_kernel"
    if "final" in which:
        name = "gated_mix__compressed_kv_cla__glu_gated_glu__prompt_kernel"
        A("; @launch grid=(256,1,1) block=(256,1,1) lds=163840")
    else:
        A("; @launch kernel=f_kernel grid=(256,1,1) block=(256,1,1) lds=163840")
    A('.amdgcn_target "amdgcn-amd-amdhsa--gfx950"')
    fused.gen_f12(A, name)
    fused.desc_f(A, name)
    return A.text()
if __name__ == "__main__":
    out = sys.argv[1]
    args = sys.argv[2:]
    if "stamps" in args: asmlib.STAMPS = True
    for a in args:
        if "=" in a:
            k, v = a.split("=")
            mod, var = k.split(".")
            setattr(sys.modules[mod], var, eval(v))
    open(out, "w").write(build(tuple(args)))
```

```python
class Asm:
    def __init__(self):
        self.lines = []
    def __call__(self, *ss):
        for s in ss:
            if isinstance(s, (list, tuple)):
                self(*s)
            else:
                self.lines.append(s)
    def label(self, n): self.lines.append(f"{n}:")
    def text(self): return "\n".join(self.lines) + "\n"

def vr(b, n=1, f="v"):
    return f"{f}{b}" if n == 1 else f"{f}[{b}:{b+n-1}]"
def ar(b, n=1): return vr(b, n, "a")
def sr(b, n=1): return vr(b, n, "s")

def kernel_begin(A, name):
    A(".text", f".globl {name}", ".p2align 8", f".type {name},@function", f"{name}:")

def kernel_desc(A, name, vgpr, accum, sgpr=102):
    A('.section .rodata,"a"', ".p2align 6", f".amdhsa_kernel {name}",
      f"  .amdhsa_next_free_vgpr {vgpr}", f"  .amdhsa_next_free_sgpr {sgpr}",
      f"  .amdhsa_accum_offset {accum}", "  .amdhsa_group_segment_fixed_size 0",
      "  .amdhsa_kernarg_size 112", "  .amdhsa_user_sgpr_count 2",
      "  .amdhsa_user_sgpr_kernarg_segment_ptr 1", "  .amdhsa_system_sgpr_workgroup_id_x 1",
      ".end_amdhsa_kernel")

MB = 1 << 20
QF_OFF = 0
KF_OFF = 16 * MB
VF_OFF = 32 * MB
AF_OFF = 48 * MB
WF_OFF = 72 * MB
PART_OFF = 80 * MB
RED_OFF = 90 * MB
G_OFF = 79 * MB
FL_OFF = 79 * MB + 65536
MISC_OFF = 108 * MB
WS_BYTES = 268435456
KSTEPS3 = 184
AFS = 184

P_X, P_CKV, P_WQ, P_WUK, P_WUV, P_WO, P_BX, P_WG = 32, 34, 36, 38, 40, 42, 44, 46
P_WU, P_WD, P_GW, P_OUT = 48, 50, 52, 54
P_DBG, P_WS = 56, 58
def load_kernargs(A):
    A("s_load_dwordx16 s[32:47], s[0:1], 0",
      "s_load_dwordx8 s[48:55], s[0:1], 64",
      "s_load_dwordx4 s[56:59], s[0:1], 96")

def interleave(A, mfmas, gaps):
    for i, m in enumerate(mfmas):
        A(m)
        for x in gaps.get(i, []):
            A(x)

STAMPS = False
RT = False
STAMP_S = 84
def stamp(A, k):
    import asmlib
    if _st(): A(f"{'s_memrealtime' if asmlib.RT else 's_memtime'} s[{STAMP_S+2*k}:{STAMP_S+2*k+1}]")
def stamp_rt(A, k):
    if _st(): A(f"s_memrealtime s[{STAMP_S+2*k}:{STAMP_S+2*k+1}]")
def stamp_flush(A, srd_ws, s_wave, region, n=9, vt=32):
    if not _st(): return
    A("s_waitcnt lgkmcnt(0) vmcnt(0)")
    A(f"s_lshl_b32 s2, s2, 3", f"s_add_u32 s2, s2, s{s_wave}", "s_lshl_b32 s2, s2, 6",
      f"s_add_u32 s2, s2, {MISC_OFF + region*262144}")
    A(f"v_mov_b32 v{vt+1}, 0")
    for k in range(n):
        A(f"v_mov_b32 v{vt}, s{STAMP_S+2*k}", f"buffer_store_dword v{vt}, v{vt+1}, {sr(srd_ws,4)}, s2 offen offset:{4*k}", "s_nop 0")
def _st():
    import asmlib
    return asmlib.STAMPS

F_KV, F_J2, F_PART, F_CTX, F_AUX, F_RED = 0, 1, 2, 3, 4, 32
SPIN_MAX = 0x8000
ACQ = False
_lbl = [0]
def signal(A, srd_ws, s_wave, idx, vt, st):
    _lbl[0] += 1
    l = f"L_sig{_lbl[0]}"
    A(f"s_cmp_eq_u32 s{s_wave}, 0", f"s_cbranch_scc0 {l}",
      f"s_lshl_b32 s{st}, s2, 8", f"s_add_u32 s{st}, s{st}, {FL_OFF + 4*idx}",
      f"v_mov_b32 v{vt}, 1", f"v_mov_b32 v{vt+1}, 0", "s_mov_b64 exec, 1",
      f"buffer_store_dword v{vt}, v{vt+1}, {sr(srd_ws,4)}, s{st} offen sc0 sc1", "s_mov_b64 exec, -1", f"{l}:")
def poll(A, loads, st, sleep=4, wave0=None, pre=None, cmp="ne"):
    _lbl[0] += 1
    l = f"L_poll{_lbl[0]}"
    if wave0 is not None: A(f"s_cmp_eq_u32 s{wave0}, 0", f"s_cbranch_scc0 {l}_ok")
    if pre: pre(A)
    A(f"s_mov_b32 s{st}, 0", f"{l}:")
    for ins, v, want in loads: A(ins)
    A("s_waitcnt vmcnt(0)")
    for k, (ins, v, want) in enumerate(loads):
        A(f"v_cmp_{cmp}_u32 vcc, {want}, v{v}", "s_nop 4", f"s_cbranch_vccnz {l}_r")
    A(f"s_branch {l}_ok", f"{l}_r:", f"s_add_u32 s{st}, s{st}, 1", f"s_cmp_lt_u32 s{st}, {SPIN_MAX}", f"s_sleep {sleep}",
      f"s_cbranch_scc1 {l}", f"{l}_ok:")
    if wave0 is not None: A("s_barrier")
    import asmlib
    if asmlib.ACQ: A("buffer_inv sc1")
```

```python
from asmlib import *
import asmlib, k1, k2, k3

SIG_STEP = 10
DIAG = 0
S_HD, S_WLD, S_E0, S_E1, S_WN2, S_WM2 = 4, 5, 6, 7, 8, 9
def dstamp(A, k):
    if DIAG == 1: stamp(A, k)
def gen_f12(A, name="f_kernel"):
    k1.SMAP = {0: 0, 2: 1, 4: 2}
    if DIAG == 1: k1.SMAP = {0: 0, 4: 1}; k2.SMAP = {2: 5}
    elif DIAG == 2: k1.SMAP = {}; k2.SMAP = {}; k3.SMAP = {2: 1, 3: 2, 4: 3, 5: 4, 6: 5}
    elif DIAG == 4: k1.SMAP = {0: 0, 10: 1, 11: 2, 12: 3, 1: 4, 21: 5}; k2.SMAP = {}
    elif DIAG == 5: k1.SMAP = {1: 0, 21: 1, 22: 2, 24: 3, 26: 4, 2: 5}; k2.SMAP = {}
    elif DIAG == 3: k1.SMAP = {}; k2.SMAP = {2: 0, 3: 6}; k2.DIAG2 = True
    else: k2.SMAP = {2: 3, 3: 4}
    kernel_begin(A, name)
    A("s_cmp_ge_u32 s2, 256", "s_cbranch_scc1 L_f_end")
    def kvsig(A): signal(A, k1.SRD_WS, k1.S_W, F_KV, 23, k1.S_T1)
    def wb(A):
        asmlib._lbl[0] += 1
        l = f"L_wb{asmlib._lbl[0]}"
        A(f"s_cmp_eq_u32 s{k1.S_W}, 0", f"s_cbranch_scc0 {l}", "buffer_wbl2 sc1", f"{l}:")
    reloc = [f"s_mov_b32 s{S_HD}, s{k1.S_DST2}", f"s_mov_b32 s{S_WLD}, s{k1.S_SOA1}", f"s_mov_b32 s{S_WN2}, s{k1.S_WN}", f"s_mov_b32 s{S_WM2}, s{k1.S_WM}"]
    def j2hook(g, ex, order):
        k1.wl_hook(g, ex, order)
        if g == CT_STEP:
            L = k1.code_touch_ops(k1.S_PF, k1.S_T1, k1.V_T, k1.V_PFD)
            for k, gp in enumerate((8, 12, 14, 18, 20)): ex.setdefault(gp, []).extend(L[2 * k:2 * k + 2])
            ex.setdefault(50, []).append(L[10])
        if WB_STEP is not None and g == SIG2:
            ex["vm"] = 0
            B = Asm(); kvsig(B); ex["tail"] = B.lines
        if g == 12:
            for k, x in enumerate(k2.kv_addr() + reloc): ex.setdefault(8 + 2 * k, []).append(x)
            ex["vm"] = 0
        if g == 13:
            for k, r in enumerate(k1.wl_reads()): ex.setdefault(1 + 2 * k, []).append(r)
            B = Asm(); k2.k2_setup1(B)
            L = B.lines
            for k in range(0, len(L), 2): ex.setdefault(min(2 + k, 60), []).extend(L[k:k + 2])
            ex.setdefault(KV_GAP, []).append(k2.kv_issue())
            ex["vm"] = 0
    def with_regs(f, *a, **kw):
        sv = k1.S_T0, k1.S_LOG2E
        k1.S_T0, k1.S_LOG2E = S_E0, S_E1
        f(*a, **kw)
        k1.S_T0, k1.S_LOG2E = sv
    M = k2.S_MASK
    st = lambda a, so, imm: f"buffer_store_dwordx4 {ar(a,4)}, v{k2.V_L16}, {sr(k2.SRD_WS,4)}, s{so} offen offset:{imm}{k1.STORE_SC}"
    def hsp(j0):
        return (lambda A: A([f"s_add_u32 s{M+k}, s{S_HD}, {(j0+k)*asmlib.AFS*1024}" for k in range(4)]),
                [st(k1.HST + 4 * ((j0 + k) * 2 + p), M + k, p * 1024) for k in range(4) for p in range(2)])
    k2.SPECIAL = {2: (lambda A: A(f"s_add_u32 s{M}, s{S_WLD}, 4096"),
                      [st(k1.WLR + 4 * c, S_WLD if c < 4 else M, (c % 4) * 1024) for c in range(7)]),
                  4: hsp(0), 6: hsp(4)}
    def ev10(A):
        k3.aux_look(A)
        A(k1.code_touch_ops(76, k2.S_T0, k2.V_T, 31))
    k2.SMALL = {8: lambda A: signal(A, k2.SRD_WS, k2.S_W, F_AUX, k2.V_T, k2.S_T0), 10: ev10, 12: k3.aux_check}
    k2.EV_ALL, k2.EV_A_ONLY = [2, 8, 10, 12], [4, 6]
    k2.K3W, k2.K3A = k3.w_loads, k3.a_loads
    def p0_with(A, lo, extra=None):
        B = Asm(); k2.items(B, lo, 5)
        c = k2.chunks([l for l in B.lines if l != "s_nop 0"], 1)
        c[0].insert(len(c[0]) - 1, "s_nop 0")
        ex = {2 * k + 1: list(v) for k, v in enumerate(c)}
        for k, v in (extra or {}).items(): ex.setdefault(k, []).extend(v)
        k2.p0(A, ex)
    def getq(A):
        dstamp(A, 3)
        k2.poll_partner(A, F_J2)
        dstamp(A, 4)
        k2.q_loads(A, k2.QA, k2.SRD_WS)
    def gend(A):
        k2.kv_check(A)
        dstamp(A, 2)
        B = Asm(); k2.items(B, 0, ANIT)
        c = k2.chunks(B.lines, 1)
        n = min(QMID, 8) * 8
        fill = [[] for _ in range(n)]
        for k, x in enumerate(c): fill[k * n // len(c)] = x
        with_regs(k1.epi_GU, A, S_HD, stage=True, fill=fill, mid=(QMID, getq))
        if QMID >= 8: getq(A)
        A.label("L_f_aq")
        k2.k2_setup2(A)
        k3.setup(A)
        A("s_waitcnt vmcnt(0)", "s_barrier")
        if ANIT < 5: p0_with(A, ANIT)
        else: k2.p0(A)
        A("s_branch L_f_main")
    def hend(A):
        k2.kv_check(A)
        dstamp(A, 2)
        VL = 23
        A(f"s_lshl_b32 s{S_E0}, s{S_WN2}, 15", f"s_lshl_b32 s{S_E1}, s{S_WM2}, 11", f"s_add_u32 s{S_E0}, s{S_E0}, s{S_E1}",
          f"v_add_u32 v{VL}, s{S_E0}, v{k2.V_L16}", f"v_add_u32 v{VL+1}, 65536, v{VL}")
        k2.items(A, 0, 1)
        with_regs(k1.epi_Q_x, A, S_HD, VL)
        A(f"s_mov_b32 s{S_HD}, 0x40000000",
          f"v_add_u32 v{VL+2}, s{k2.S_W8192}, v{k2.V_L16}", f"v_subrev_u32 v{VL+3}, s{k2.S_W8192}, v{k2.V_L16}",
          f"v_add_u32 v{VL+3}, {7*8192}, v{VL+3}", f"v_add_u32 v{VL+4}, 65536, v{VL+2}", f"v_add_u32 v{VL+5}, 65536, v{VL+3}",
          "s_waitcnt lgkmcnt(0)", "s_barrier")
        dstamp(A, 3)
        for f in range(16): A(f"ds_read_b128 {ar(k2.QA+4*f,4)}, v{VL+2+(f>>3)} offset:{(f&7)*1024}")
        for f in range(16): A(f"ds_read_b128 {ar(k2.PA+4*f,4)}, v{VL+4+(f>>3)} offset:{(f&7)*1024}")
        k2.k2_setup2(A)
        A("s_waitcnt vmcnt(16) lgkmcnt(0)", "s_barrier")
        dstamp(A, 4)
        S = Asm(); signal(S, k1.SRD_WS, k1.S_W, F_J2, k2.V_T, k2.S_T0)
        p0_with(A, 1, {QSIG: [f"s_waitcnt vmcnt({(QSIG + 1) // 2})", "s_barrier"] + S.lines})
        k3.setup(A)
        A.label("L_f_main")
        k2.k2_main(A, done)
    def send(A):
        A(reloc, f"s_mov_b32 s{S_HD}, 0x40000000")
        A(k2.kv_addr()); k2.k2_setup1(A)
        k2.kv_check(A, early=False)
        k2.items(A, 0, ANIT)
        getq(A)
        A("s_branch L_f_aq")
    def done(A, role, order):
        if role == "B": A("s_branch L_f_k3"); return
        A.label("L_f_k3")
        if DIAG in (0,): stamp(A, 5)
        if DIAG == 2: stamp(A, 0)
        k3.body(A, order)
        if asmlib.STAMPS:
            A("s_waitcnt vmcnt(0)")
            if DIAG != 3: stamp(A, 6)
            stamp_rt(A, 8)
            stamp_flush(A, k2.SRD_WS, k2.S_W, 0)
        A("s_endpgm")
    k1.k1_body(A, hooks={"J2": j2hook, "sig": (SIG_STEP, kvsig) if WB_STEP is None else (WB_STEP, wb), "sidesig": kvsig, "Gend": gend, "Hend": hend, "Send": send})
    A.label("L_f_end")
    A("s_endpgm")
KV_GAP = 33
WB_STEP = None
SIG2 = 11
QMID = 8
ANIT = 3
QSIG = 15
CT_STEP = 7

def desc_f(A, name="f_kernel"):
    kernel_desc(A, name, 512, 256)
```

```python
from asmlib import *
import asmlib

WBASE = 98304
SRD_A, SRD_W, SRD_WS = 4, 8, 12
S_W, S_WM, S_WN = 16, 17, 18
S_SOA0, S_SOA1, S_SOW, S_WINC = 19, 20, 21, 22
S_RSLOT, S_DSLOT, S_WM0, S_N = 23, 24, 25, 26
S_W8192 = 27
S_DST1, S_DST2, S_T0, S_T1 = 28, 29, 30, 31
S2_A0, S2_A1, S2_ASZ, S2_SOA0, S2_SOA1 = 60, 61, 62, 63, 64
S2_W0, S2_W1, S2_WSZ, S2_SOW, S2_WINC = 65, 66, 67, 68, 69
S_IDX, S_XCD, S_RT1, S_HEAD1, S_RT2, S_C2, S_T2, S_T3, S_KIND = 70, 71, 72, 73, 74, 75, 76, 77, 78
S_STA2, S_STW2, S_LOG2E = 79, 80, 80
S_PF, S_PFO = 44, 82
V_PFD = 31
V_A, V_W, V_RW, V_RA, V_RCUR, V_L16, V_T = 1, 5, 9, 13, 15, 16, 17
V_A2, V_W2 = 32, 36
A_J2 = 160
V_PAD = 22
ACC_V, NACC_V = 32, 56
FR = 0

_stamp0 = stamp
SMAP = None
def stamp(A, k):
    if SMAP is not None: k = SMAP.get(k)
    if k is not None: _stamp0(A, k)

def acc(i, j):
    b = i * 8 + j
    return ("v", ACC_V + 4 * b) if b < NACC_V else ("a", 128 + 4 * (b - NACC_V))
def accs(i, j):
    f, b = acc(i, j)
    return vr(b, 4, f)
def wfrag(p, i): return FR + 64 * p + 4 * i
def afrag(p, j): return FR + 64 * p + 32 + 4 * j

def reads_for(p, wslot):
    R = []
    for i in range(8):
        st, cb = i >> 2, i & 3
        for h in range(2):
            R.append(f"ds_read_b64_tr_b16 {ar(wfrag(p,i)+2*h,2)}, v{V_RW+cb} offset:{wslot*16384+st*8192+h*1024}")
    for j in range(8):
        R.append(f"ds_read_b128 {ar(afrag(p,j),4)}, v{V_RCUR} offset:{j*2048}")
    return R

def dma_w(j): return f"buffer_load_dwordx4 v{V_W+j}, {sr(SRD_W,4)}, s{S_SOW} offen offset:{j*1024} lds"
def dma_a(j, hf): return f"buffer_load_dwordx4 v{V_A+j}, {sr(SRD_A,4)}, s{S_SOA1 if hf else S_SOA0} offen offset:{j*1024} lds"

def step(A, phase, orient, first=False, extra=None, tail=None, nodma=False, vm=16, pf=False, dw=True, da=True, rd=True):
    p = phase & 1
    m = []
    for i in range(8):
        for j in range(8):
            c = "0" if first else accs(i, j)
            w, a = ar(wfrag(p, i), 4), ar(afrag(p, j), 4)
            x, y = (w, a) if orient == "WA" else (a, w)
            m.append(f"v_mfma_f32_16x16x32_bf16 {accs(i,j)}, {x}, {y}, {c}")
    g = {}
    def put(k, *ins): g.setdefault(k, []).extend(ins)
    if phase & 1 and rd:
        put(0, f"s_add_u32 s{S_DSLOT}, s{S_RSLOT}, s{S_W8192}", f"s_add_u32 s{S_RSLOT}, s{S_RSLOT}, 32768",
               f"s_cmp_eq_u32 s{S_RSLOT}, 98304")
        put(2, f"s_cselect_b32 s{S_RSLOT}, 0, s{S_RSLOT}")
    if rd: put(6, f"v_add_u32 v{V_RCUR}, s{S_RSLOT}, v{V_RA + ((phase + 1) & 1)}")
    R = reads_for(1 - p, (phase + 1) & 3)
    for k, r in enumerate(R):
        if rd: put(1 + 2 * k, r)
    if not nodma and dw:
        put(2, f"s_add_u32 m0, s{S_WM0}, {phase*16384}")
        for j in range(4):
            put(4 + 6 * j, dma_w(j))
        put(24, f"s_add_u32 s{S_SOW}, s{S_SOW}, s{S_WINC}")
    if not nodma and da:
        hf = 0 if (phase & 1) else 1
        put(26, f"s_add_u32 m0, s{S_DSLOT}, {hf*4096}")
        for j in range(4):
            put(28 + 6 * j, dma_a(j, hf))
        so = S_SOA1 if hf else S_SOA0
        put(48, f"s_add_u32 s{so}, s{so}, 128")
    if pf:
        lab = f"L_pf{len(A.lines)}"
        _pf_sites.append(lab)
        M = sr(S_PF, 2)
        put(8, f"s_bitcmp1_b32 s{S_PFM}, s{S_PFC}", f"s_cselect_b64 {M}, -1, 0")
        put(12, f"v_cndmask_b32 v{V_T+1}, v{V_T+3}, v{V_PQ}, {M}", f"v_cndmask_b32 v{V_T+2}, v{V_T+4}, v{V_PQ+1}, {M}")
        for k, gp in enumerate((14, 18, 30)):
            put(gp, *[f"v_cndmask_b32 v{V_PQ+i}, v{V_PQ+i}, v{V_PQ+2+i}, {M}" for i in (2 * k, 2 * k + 1)])
        put(50, f"global_load_dword v{V_PFD}, {vr(V_T+1,2)}, off")
        put(32, f"s_cmp_eq_u32 s{S_PFC}, s{S_PF+2}", f"s_cbranch_scc1 {lab}_do", f"{lab}_back:")
        put(36, f"s_add_u32 s{S_PFC}, s{S_PFC}, 1")
        vm += 2
    if extra:
        for k, v in extra.items():
            put(k, *v)
    put(BAR_GAP - 1, f"s_waitcnt vmcnt({vm}) lgkmcnt(0)")
    put(BAR_GAP, "s_barrier")
    if tail: put(63, *tail)
    interleave(A, m, g)

def early_dma(A, phase):
    assert phase % 2 == 0
    A(f"s_add_u32 m0, s{S_WM0}, {phase*16384}", "s_nop 0")
    for j in range(4): A(dma_w(j))
    A(f"s_add_u32 s{S_SOW}, s{S_SOW}, s{S_WINC}", f"s_add_u32 m0, s{S_DSLOT}, 4096", "s_nop 0")
    for j in range(4): A(dma_a(j, 1))
    A(f"s_add_u32 s{S_SOA1}, s{S_SOA1}, 128")

STAGE = 160
TRICKLE = 3
def job(A, tag, orient, nsteps, start, nxt, after=None, pf=False, U=1, hook=None, pf_roll=True, sig=None):
    gw, ga, ge = nsteps - 4, nsteps - 5, nsteps - 1
    ph = lambda g: (start + g) & 3
    nn = lambda g: (start + g) >> 2
    npeel = U
    order = [-2] * 8 + [-1] * 8
    pend = list(after or [])
    if after is not None: order += [0] * 8 + ["s"] * 8
    assert not (nxt and U > ga)
    for g in range(npeel):
        t = [f"s_branch L_{tag}_p{ph(npeel)}"] if (g == npeel - 1 and npeel < nsteps) else None
        ex = {}
        if g == npeel - 1 and npeel < nsteps: ex[60] = [f"s_mov_b32 s{S_N}, {nn(npeel)}"]
        nod = (g == 0 and after is not None)
        dw, da = g < gw, g < ga
        if not nod: order += [g] * (4 * dw + 4 * da)
        if pf: order.append("p")
        for k in range(TRICKLE):
            if pend:
                sd, c, imm, a = pend.pop(0)
                gp = 52 + k * (8 // TRICKLE)
                ex[gp] = [f"s_add_u32 s{S_T0}, s{sd}, {c}"]
                ex[gp + 1] = [f"buffer_store_dwordx4 {ar(a,4)}, v{V_L16}, {sr(SRD_WS,4)}, s{S_T0} offen offset:{imm}{KV_SC}"]
                order.append("s")
        if hook: hook(g, ex, order)
        if (g - 2) in order:
            last = max(i for i, o in enumerate(order) if o == g - 2)
            vm = min(63, len(order) - 1 - last)
        else: vm = 63
        if "vm" in ex: vm = min(vm, ex.pop("vm"))
        if "tail" in ex: t = ex.pop("tail")
        if sig is not None and g == sig[0]:
            assert not pend
            last = max(i for i, o in enumerate(order) if o == "s")
            vm = min(vm, len(order) - 1 - last)
            B = Asm(); sig[1](B); t = B.lines
        step(A, ph(g), orient, first=(g == 0), nodma=nod, vm=vm - (2 if pf else 0), pf=pf, tail=t, extra=ex,
             dw=dw, da=da, rd=(nxt or g < nsteps - 1))
    assert not pend
    if npeel == nsteps: return
    A(".p2align 6")
    for p in range(4):
        A.label(f"L_{tag}_p{p}")
        if p == 0 and SMAP and asmlib.STAMPS:
            for n in range(1, 8):
                if 20 + n in SMAP:
                    A(f"s_cmp_eq_u32 s{S_N}, {n}", f"s_cbranch_scc0 L_{tag}_ns{n}"); stamp(A, 20 + n); A.label(f"L_{tag}_ns{n}")
        ex = {}
        if p == ph(gw):
            assert p % 2 == 0
            if nxt: ex[0] = [f"s_cmp_eq_u32 s{S_N}, {nn(gw)}", f"s_cbranch_scc1 L_{tag}_swW", f"L_{tag}_backW:"]
            else: ex[0] = [f"s_cmp_ge_u32 s{S_N}, {nn(gw)}", f"s_cselect_b32 s{SRD_W+2}, 0, s{SRD_W+2}"]
        if p == ph(ga):
            if nxt: ex[20] = [f"s_cmp_eq_u32 s{S_N}, {nn(ga)}", f"s_cbranch_scc1 L_{tag}_swA", f"L_{tag}_backA:"]
            else: ex[20] = [f"s_cmp_ge_u32 s{S_N}, {nn(ga)}", f"s_cselect_b32 s{SRD_A+2}, 0, s{SRD_A+2}"]
        tail = []
        if p == 3: ex[52] = [f"s_add_u32 s{S_N}, s{S_N}, 1"]
        if p == ph(ge):
            if p == 3:
                ex[54] = [f"s_cmp_le_u32 s{S_N}, {nn(ge)}"]; tail = [f"s_cbranch_scc1 L_{tag}_p0"]
            else:
                ex[54] = [f"s_cmp_eq_u32 s{S_N}, {nn(ge)}"]; tail = [f"s_cbranch_scc1 L_{tag}_done"]
        elif p == 3:
            tail = [f"s_branch L_{tag}_p0"]
        step(A, p, orient, extra=ex, tail=tail, pf=pf and pf_roll)
    A.label(f"L_{tag}_done")

def switch_code(A, tag):
    A.label(f"L_{tag}_swW")
    A(f"s_mov_b32 s{SRD_W}, s{S2_W0}", f"s_mov_b32 s{SRD_W+1}, s{S2_W1}", f"s_mov_b32 s{SRD_W+2}, s{S2_WSZ}",
      f"s_mov_b32 s{S_SOW}, s{S2_SOW}", f"s_mov_b32 s{S_WINC}, s{S2_WINC}")
    for j in range(4): A(f"v_accvgpr_read_b32 v{V_W+j}, a{A_J2+4+j}")
    A(f"s_branch L_{tag}_backW")
    A.label(f"L_{tag}_swA")
    A(f"s_mov_b32 s{SRD_A}, s{S2_A0}", f"s_mov_b32 s{SRD_A+1}, s{S2_A1}", f"s_mov_b32 s{SRD_A+2}, s{S2_ASZ}",
      f"s_mov_b32 s{S_SOA0}, s{S2_SOA0}", f"s_mov_b32 s{S_SOA1}, s{S2_SOA1}")
    for j in range(4): A(f"v_accvgpr_read_b32 v{V_A+j}, a{A_J2+j}")
    A(f"v_mov_b32 v{V_T}, 0", f"global_load_dword v{V_CNT}, v{V_T}, {sr(P_DBG,2)}")
    A(f"s_branch L_{tag}_backA")

def get4(A, blk, tmp):
    f, b = blk
    if f == "v": return b
    for r in range(4): A(f"v_accvgpr_read_b32 v{tmp+r}, a{b+r}")
    return tmp

def pack_store(A, x, y, soff, imm, sc=None):
    sc = STORE_SC if sc is None else sc
    A(f"v_cvt_pk_bf16_f32 v{x}, v{x}, v{x+1}", f"v_cvt_pk_bf16_f32 v{x+1}, v{x+2}, v{x+3}",
      f"v_cvt_pk_bf16_f32 v{x+2}, v{y}, v{y+1}", f"v_cvt_pk_bf16_f32 v{x+3}, v{y+2}, v{y+3}",
      f"buffer_store_dwordx4 {vr(x,4)}, v{V_L16}, {sr(SRD_WS,4)}, s{soff} offen offset:{imm}{sc}")

def epi_WA(A, sdst):
    A("s_nop 7")
    for j in range(8):
        for st in range(2):
            A(f"s_add_u32 s{S_T0}, s{sdst}, {j*8192 + st*4096}")
            for pr in range(2):
                i = 4 * st + 2 * pr
                x = get4(A, acc(i, j), None)
                y = get4(A, acc(i + 1, j), acc(1, j)[1])
                pack_store(A, x, y, S_T0, pr * 1024)
    A("s_nop 1")

def epi_AW(A, sdst):
    A("s_nop 7")
    for jp in range(4):
        for st in range(2):
            A(f"s_add_u32 s{S_T0}, s{sdst}, {jp*16384 + st*8192}")
            for cb in range(4):
                i = 4 * st + cb
                x = get4(A, acc(i, 2 * jp), acc(0, 2 * jp + 1)[1])
                y = get4(A, acc(i, 2 * jp + 1), acc(1, 2 * jp + 1)[1])
                pack_store(A, x, y, S_T0, cb * 1024)
    A("s_nop 1")

def epi_WA_stage(A, sdst):
    A("s_nop 7", ".p2align 3")
    out = []
    c = 0
    for j in range(8):
        for st in range(2):
            if c < 8: A(f"s_add_u32 s{S_T0}, s{sdst}, {j*8192 + st*4096 + 0x10000000 * 0}" if j or st else f"s_add_u32 s{S_T0}, s{sdst}, 0", *(["s_nop 0"] if not (j or st) else []))
            for pr in range(2):
                i = 4 * st + 2 * pr
                x = get4(A, acc(i, j), None)
                y = get4(A, acc(i + 1, j), acc(1, j)[1])
                if c < 8:
                    pack_store(A, x, y, S_T0, pr * 1024, KV_SC)
                else:
                    a = STAGE + 4 * (c - 8)
                    A(f"v_cvt_pk_bf16_f32 v{x}, v{x}, v{x+1}", f"v_cvt_pk_bf16_f32 v{x+1}, v{x+2}, v{x+3}",
                      f"v_cvt_pk_bf16_f32 v{x+2}, v{y}, v{y+1}", f"v_cvt_pk_bf16_f32 v{x+3}, v{y+2}, v{y+3}")
                    for r in range(4): A(f"v_accvgpr_write_b32 a{a+r}, v{x+r}")
                    out.append((sdst, j * 8192 + st * 4096, pr * 1024, a))
                c += 1
    A("s_nop 1")
    return out

def epi_AW_stage(A, sdst):
    A("s_nop 7", ".p2align 3")
    out = []
    c = 0
    for jp in range(4):
        for st in range(2):
            if c < 8: A(f"s_add_u32 s{S_T0}, s{sdst}, {jp*16384 + st*8192}", *(["s_nop 0"] if not (jp or st) else []))
            for cb in range(4):
                i = 4 * st + cb
                x = get4(A, acc(i, 2 * jp), acc(0, 2 * jp + 1)[1])
                y = get4(A, acc(i, 2 * jp + 1), acc(1, 2 * jp + 1)[1])
                if c < 8:
                    pack_store(A, x, y, S_T0, cb * 1024, KV_SC)
                else:
                    a = STAGE + 4 * (c - 8)
                    A(f"v_cvt_pk_bf16_f32 v{x}, v{x}, v{x+1}", f"v_cvt_pk_bf16_f32 v{x+1}, v{x+2}, v{x+3}",
                      f"v_cvt_pk_bf16_f32 v{x+2}, v{y}, v{y+1}", f"v_cvt_pk_bf16_f32 v{x+3}, v{y+2}, v{y+3}")
                    for r in range(4): A(f"v_accvgpr_write_b32 a{a+r}, v{x+r}")
                    out.append((sdst, jp * 16384 + st * 8192, cb * 1024, a))
                c += 1
    A("s_nop 1")
    return out

HST = 160
def epi_GU(A, sdst, stage=False, fill=None, mid=None):
    fill = list(fill or [])
    A("s_nop 7")
    A(f"s_mov_b32 s{S_LOG2E}, 0xbfb8aa3b")
    for j in range(8):
        if not stage: A(f"s_add_u32 s{S_T0}, s{sdst}, {j*asmlib.AFS*1024}")
        if mid and j == mid[0]: mid[1](A)
        for i in range(4):
            gq = acc(i, j)[1]
            uq = get4(A, acc(i + 4, j), acc(4, j)[1])
            for r in range(4): A(f"v_mul_f32 v{gq+r}, s{S_LOG2E}, v{gq+r}")
            for r in range(4): A(f"v_exp_f32 v{gq+r}, v{gq+r}")
            if fill: A(fill.pop(0))
            for r in range(4): A(f"v_add_f32 v{gq+r}, 1.0, v{gq+r}")
            for r in range(4): A(f"v_rcp_f32 v{gq+r}, v{gq+r}")
            if fill: A(fill.pop(0))
            for r in range(4): A(f"v_mul_f32 v{gq+r}, v{uq+r}, v{gq+r}")
            if i & 1:
                x, y = acc(i - 1, j)[1], gq
                if not stage: pack_store(A, x, y, S_T0, (i >> 1) * 1024)
                else:
                    a = HST + 4 * (j * 2 + (i >> 1))
                    A(f"v_cvt_pk_bf16_f32 v{x}, v{x}, v{x+1}", f"v_cvt_pk_bf16_f32 v{x+1}, v{x+2}, v{x+3}",
                      f"v_cvt_pk_bf16_f32 v{x+2}, v{y}, v{y+1}", f"v_cvt_pk_bf16_f32 v{x+3}, v{y+2}, v{y+3}")
                    for r in range(4): A(f"v_accvgpr_write_b32 a{a+r}, v{x+r}")
    assert not fill
def h_stores(A, vl16, sdst, st, j0, j1):
    for j in range(j0, j1):
        A(f"s_add_u32 s{st}, s{sdst}, {j*asmlib.AFS*1024}")
        for p in range(2):
            A(f"buffer_store_dwordx4 {ar(HST+4*(j*2+p),4)}, v{vl16}, {sr(SRD_WS,4)}, s{st} offen offset:{p*1024}{STORE_SC}")

def epi_Q_x(A, sdst, vlds):
    A("s_nop 7")
    for j0 in range(4):
        for st in range(2):
            A(f"s_add_u32 s{S_T0}, s{sdst}, {j0*8192 + st*4096}")
            for pr in range(2):
                for j in (j0, j0 + 4):
                    i = 4 * st + 2 * pr
                    x = get4(A, acc(i, j), None)
                    y = get4(A, acc(i + 1, j), acc(1, j)[1])
                    w = f"ds_write_b128 v{vlds + (j >> 2)}, {vr(x,4)} offset:{(j & 3)*8192 + st*4096 + pr*1024}"
                    if j < 4: pack_store(A, x, y, S_T0, pr * 1024)
                    else:
                        A(f"v_cvt_pk_bf16_f32 v{x}, v{x}, v{x+1}", f"v_cvt_pk_bf16_f32 v{x+1}, v{x+2}, v{x+3}",
                          f"v_cvt_pk_bf16_f32 v{x+2}, v{y}, v{y+1}", f"v_cvt_pk_bf16_f32 v{x+3}, v{y+2}, v{y+3}")
                    A(w)

def voffs(A, dstA, dstW, strideA, strideW):
    t0, t1, t2 = V_T, V_T + 1, V_T + 2
    for j in range(4):
        A(f"v_lshrrev_b32 v{t0}, 3, v0", f"v_add_u32 v{t0}, {8*j}, v{t0}", f"v_mul_lo_u32 v{t0}, v{t0}, {strideA}",
          f"v_lshrrev_b32 v{t1}, 4, v0", f"v_add_u32 v{t1}, {4*(j&1)}, v{t1}", f"v_and_b32 v{t2}, 7, v0",
          f"v_xor_b32 v{t1}, v{t1}, v{t2}", f"v_lshlrev_b32 v{t1}, 4, v{t1}", f"v_add_u32 v{t0}, v{t0}, v{t1}",
          f"v_subrev_u32 v{dstA+j}, {1024*j}, v{t0}")
        A(f"v_lshrrev_b32 v{t1}, 4, v0", f"v_add_u32 v{t0}, {4*j}, v{t1}", f"v_mul_lo_u32 v{t0}, v{t0}, {strideW}",
          f"v_lshlrev_b32 v{t1}, 1, v{t1}", f"v_add_u32 v{t1}, {8*(j>>1)}, v{t1}", f"v_and_b32 v{t2}, 15, v0",
          f"v_xor_b32 v{t1}, v{t1}, v{t2}", f"v_lshlrev_b32 v{t1}, 4, v{t1}", f"v_add_u32 v{t0}, v{t0}, v{t1}",
          f"v_subrev_u32 v{dstW+j}, {1024*j}, v{t0}")

def fin(A):
    if not asmlib.STAMPS: return
    stamp(A, 5)
    A("s_waitcnt vmcnt(0)")
    stamp(A, 6); stamp_rt(A, 8)
    stamp_flush(A, SRD_WS, S_W, 0)

WL_LDS = 131072
def wl_setup():
    t0, t1 = V_T, V_T + 1
    return [f"s_cmp_ge_u32 s2, 128",
      f"s_cselect_b32 s{SRD_A}, s{P_WD}, s{P_WO}", f"s_cselect_b32 s{SRD_A+1}, s{P_WD+1}, s{P_WO+1}",
      f"s_mov_b32 s{SRD_A+2}, {4096*448*2}", f"s_cselect_b32 s{SRD_A+2}, {1792*448*2}, s{SRD_A+2}",
      f"s_and_b32 s{S_SOA0}, s2, 127", f"s_mul_i32 s{S_SOA0}, s{S_SOA0}, 28672", f"s_mul_i32 s{S_WINC}, s{S_W}, 7168",
      f"s_add_u32 s{S_SOA0}, s{S_SOA0}, s{S_WINC}", f"s_add_u32 s{S_WINC}, s{S_WINC}, {WL_LDS}",
      f"s_mul_i32 s{S_SOA1}, s2, 7168", f"s_mul_i32 s{S_SOW}, s{S_W}, {KSTEPS3*7168}", f"s_add_u32 s{S_SOA1}, s{S_SOA1}, s{S_SOW}",
      f"s_add_u32 s{S_SOA1}, s{S_SOA1}, {WF_OFF}", f"s_cmp_ge_u32 s2, {KSTEPS3}", f"s_cselect_b32 s{S_SOA1}, 0x40000000, s{S_SOA1}",
      f"s_mul_i32 s{S_SOW}, s{S_W}, 224", f"s_add_u32 s{S_SOW}, s{S_SOW}, {WL_LDS}",
      f"v_lshrrev_b32 v{t0}, 2, v0", f"v_mul_u32_u24 v{t0}, 896, v{t0}", f"v_and_b32 v{t1}, 3, v0",
      f"v_lshl_add_u32 v{t0}, v{t1}, 3, v{t0}", f"v_add_u32 v{V_T+2}, s{S_SOW}, v{t0}"]
def wl_dma():
    L = [[f"s_mov_b32 m0, s{S_WINC}"]]
    for j in range(7):
        if j == 4: L.append([f"s_add_u32 m0, m0, 4096", f"s_add_u32 s{S_SOA0}, s{S_SOA0}, 4096"])
        L.append([f"buffer_load_dwordx4 v{V_L16}, {sr(SRD_A,4)}, s{S_SOA0} offen offset:{(j%4)*1024} lds"])
    return L
WLR = 224
def wl_reads():
    return [f"ds_read_b64_tr_b16 {ar(WLR+4*c+2*h,2)}, v{V_T+2} offset:{h*16*896 + c*32}" for c in range(7) for h in range(2)]
def wl_stores(A, vl16, sdst):
    for c in range(7):
        if c == 4: A(f"s_add_u32 s{sdst}, s{sdst}, 4096")
        A(f"buffer_store_dwordx4 {ar(WLR+4*c,4)}, v{vl16}, {sr(SRD_WS,4)}, s{sdst} offen offset:{(c%4)*1024}{STORE_SC}")
def wl_finish(A):
    A(wl_reads(), "s_waitcnt lgkmcnt(0)")
    wl_stores(A, V_L16, S_SOA1)
def wl_hook(g, ex, order):
    if g == 10:
        st = wl_setup()
        for k in range(0, len(st), 2):
            ex.setdefault(8 + 2 * k if 8 + 2 * k < 50 else 50, []).extend(st[k:k + 2])
    if g == 11:
        for k, c in enumerate(wl_dma()): ex.setdefault(8 + 4 * k, []).extend(c)
        n = sum(1 for o in reversed(order[-TRICKLE:]) if o == "s")
        order[len(order) - n:len(order) - n] = [11] * 7

def side_job(A, kvsig=None):
    S_U = S_RT2
    t0, t1, t2 = V_T, V_T + 1, V_T + 2
    A(f"s_sub_u32 s{S_U}, s{S_IDX}, 14", f"s_lshl_b32 s{S_U}, s{S_U}, 3", f"s_add_u32 s{S_U}, s{S_U}, s{S_XCD}",
      f"s_lshl_b32 s{S_U}, s{S_U}, 2", f"s_add_u32 s{S_U}, s{S_U}, s{S_W}")
    A(f"s_mov_b32 s{SRD_A}, s{P_X}", f"s_mov_b32 s{SRD_A+1}, s{P_X+1}", f"s_mov_b32 s{SRD_A+2}, {2048*448*2}",
      f"s_mov_b32 s{SRD_W}, s{P_GW}", f"s_mov_b32 s{SRD_W+1}, s{P_GW+1}", f"s_mov_b32 s{SRD_W+2}, 896")
    A(f"v_and_b32 v{t0}, 15, v0", f"v_mul_u32_u24 v{t0}, 896, v{t0}", f"v_lshrrev_b32 v{t1}, 4, v0",
      f"v_lshlrev_b32 v{t1}, 4, v{t1}", f"v_add_u32 v{t0}, v{t0}, v{t1}",
      f"s_mul_i32 s{S_T0}, s{S_U}, {32*896}", f"s_add_u32 s{S_T1}, s{S_T0}, {16*896}")
    GA = 0
    for k in range(14):
        A(f"buffer_load_dwordx4 {ar(GA+4*k,4)}, v{t1}, {sr(SRD_W,4)}, 0 offen offset:{k*64}")
        A(f"buffer_load_dwordx4 {ar(GA+56+4*k,4)}, v{t0}, {sr(SRD_A,4)}, s{S_T0} offen offset:{k*64}")
        A(f"buffer_load_dwordx4 {ar(GA+112+4*k,4)}, v{t0}, {sr(SRD_A,4)}, s{S_T1} offen offset:{k*64}")
    A("s_waitcnt vmcnt(42)", "s_barrier")
    if kvsig: kvsig(A)
    A(wl_setup())
    for c in wl_dma(): A(c, "s_nop 0")
    A("s_waitcnt vmcnt(7)")
    G = 144
    for k in range(14):
        A(f"v_mfma_f32_16x16x32_bf16 {vr(G,4)}, {ar(GA+4*k,4)}, {ar(GA+56+4*k,4)}, {'0' if k == 0 else vr(G,4)}")
        A(f"v_mfma_f32_16x16x32_bf16 {vr(G+4,4)}, {ar(GA+4*k,4)}, {ar(GA+112+4*k,4)}, {'0' if k == 0 else vr(G+4,4)}")
    A(f"s_mov_b32 s{S_LOG2E}, 0xbfb8aa3b", f"v_and_b32 v{t0}, 15, v0", f"v_lshlrev_b32 v{t0}, 2, v{t0}",
      f"s_lshl_b32 s{S_T0}, s{S_U}, 7", f"s_add_u32 s{S_T0}, s{S_T0}, {G_OFF}", "s_waitcnt vmcnt(0)", "s_barrier", "s_nop 2")
    for rb in range(2):
        v = G + 4 * rb
        A(f"v_mul_f32 v{v}, s{S_LOG2E}, v{v}", f"v_exp_f32 v{v}, v{v}", "s_nop 0", f"v_add_f32 v{v}, 1.0, v{v}",
          f"v_rcp_f32 v{v}, v{v}", "s_nop 0",
          f"buffer_store_dword v{v}, v{t0}, {sr(SRD_WS,4)}, s{S_T0} offen offset:{rb*64}{STORE_SC}")
    if kvsig: A(wl_reads(), "s_waitcnt lgkmcnt(0)", "s_barrier")
    else: wl_finish(A)

STORE_SC = " sc0 sc1"
KV_SC = " sc0 sc1"
ORDER = "LS"
PREFETCH = True

S_PFM, S_PFC = 83, 3
V_PQ = 22
PF_WS = 2
BAR_GAP = 63
PRO_SKIP = 4
PF_T0 = 3
_pf_sites = []
def prefetch_setup(A):
    late = [(P_X, 224), (P_WQ, 448), (S_KIND, 196), (P_WU, 196), (P_WO, 448), (P_WD, 196)]
    n1 = 160 * (16 - PF_T0)
    sv, st, sr_, sb0, sb1, so, sstr = S_T0, S_T1, S_T2, S_PF, S_PF + 1, S_PF + 2, S_PF + 3
    A(f"s_lshr_b32 s{S_PFM}, s2, 5", f"s_mul_i32 s{sv}, s{S_W}, {PF_WS}", f"s_add_u32 s{S_PFM}, s{S_PFM}, s{sv}", f"s_and_b32 s{S_PFM}, s{S_PFM}, 7",
      f"s_and_b32 s{S_PFC}, s2, 31", f"s_lshl_b32 s{S_PFC}, s{S_PFC}, 2", f"s_add_u32 s{S_PFC}, s{S_PFC}, s{S_W}",
      f"s_lshl_b32 s{sv}, s{S_PFM}, 7", f"s_add_u32 s{S_PFC}, s{S_PFC}, s{sv}")
    for k in range(4):
        A(f"s_add_u32 s{sv}, s{S_PFC}, {1024*k}")
        lo, hi = 1024 * k, 1024 * k + 1023
        if lo < n1:
            A(f"s_mul_i32 s{st}, s{sv}, 52429", f"s_lshr_b32 s{st}, s{st}, 23", f"s_mul_i32 s{sr_}, s{st}, 160",
              f"s_sub_u32 s{sr_}, s{sv}, s{sr_}", f"s_add_u32 s{st}, s{st}, {PF_T0}")
            A(f"s_mov_b32 s{sb0}, s{P_CKV}", f"s_mov_b32 s{sb1}, s{P_CKV+1}", f"s_lshl_b32 s{so}, s{sr_}, 17",
              f"s_lshl_b32 s{S_T3}, s{st}, 7", f"s_add_u32 s{so}, s{so}, s{S_T3}", f"s_mov_b32 s{sstr}, 2048")
            A(f"s_lshl_b32 s{st}, s{st}, 19", f"s_add_u32 s{S_T3}, s{sr_}, 32", f"s_and_b32 s{S_T3}, s{S_T3}, 63",
              f"s_lshl_b32 s{S_T3}, s{S_T3}, 13", f"s_add_u32 s{st}, s{st}, s{S_T3}")
            A(f"s_cmp_ge_u32 s{sr_}, 32", f"s_cselect_b32 s{sb0}, s{P_WUK}, s{sb0}", f"s_cselect_b32 s{sb1}, s{P_WUK+1}, s{sb1}",
              f"s_cselect_b32 s{so}, s{st}, s{so}", f"s_cselect_b32 s{sstr}, 128, s{sstr}",
              f"s_cmp_ge_u32 s{sr_}, 96", f"s_cselect_b32 s{sb0}, s{P_WUV}, s{sb0}", f"s_cselect_b32 s{sb1}, s{P_WUV+1}, s{sb1}")
        base = n1
        for p, n in late + [(P_X, 1 << 20)]:
            if base + n > lo and base <= hi:
                last = n == 1 << 20
                A(f"s_sub_u32 s{st}, s{sv}, {base}", f"s_lshl_b32 s{st}, s{st}, 13")
                if last: A(f"s_mov_b32 s{st}, 0")
                A(f"s_cmp_ge_u32 s{sv}, {base}", f"s_cselect_b32 s{sb0}, s{p}, s{sb0}", f"s_cselect_b32 s{sb1}, s{p+1}, s{sb1}",
                  f"s_cselect_b32 s{so}, s{st}, s{so}", f"s_cselect_b32 s{sstr}, 128, s{sstr}")
            base += n
        A(f"s_add_u32 s{sb0}, s{sb0}, s{so}", f"s_addc_u32 s{sb1}, s{sb1}, 0",
          f"v_mul_lo_u32 v{V_T}, v0, s{sstr}", f"v_mov_b32 v{V_T+1}, s{sb1}",
          f"v_add_co_u32 v{V_PQ+2*k}, vcc, s{sb0}, v{V_T}", "s_nop 1",
          f"v_addc_co_u32 v{V_PQ+2*k+1}, vcc, 0, v{V_T+1}, vcc")
    A(f"s_add_u32 s{S_PF+2}, s{S_PFM}, 6", f"s_cmp_eq_u32 s{S_W}, 0", f"s_cselect_b32 s{S_PF+2}, s{S_PF+2}, 0x7fff",
      f"v_mov_b32 v{V_T+3}, s{P_GW}", f"v_mov_b32 v{V_T+4}, s{P_GW+1}")
    A(f"s_lshl_b32 s{S_PFM}, 0x01010101, s{S_PFM}", f"s_mov_b32 s{S_PFC}, 0")
V_CNT = 30
def pf_blocks(A):
    for lab in _pf_sites:
        A.label(f"{lab}_do")
        A(f"v_mov_b32 v{V_T}, 1", f"v_mov_b32 v{V_CNT}, 0", "s_mov_b64 exec, 1",
          f"global_atomic_add v{V_CNT}, v{V_T}, {sr(P_DBG,2)} sc1", "s_mov_b64 exec, -1", f"s_branch {lab}_back")
    _pf_sites.clear()

S_PC = 0
def code_touch(A, nbytes):
    A(f"s_getpc_b64 {sr(S_PC,2)}", "L_f_pc:")
    A(code_touch_ops(S_PF, S_T0, V_T, V_PFD))
def code_touch_ops(srd, st, vt, vd):
    return [f"s_mov_b32 s{srd}, s{S_PC}", f"s_mov_b32 s{srd+1}, s{S_PC+1}", f"s_mov_b32 s{srd+2}, {CODE_BYTES}", f"s_mov_b32 s{srd+3}, 0x20000",
      f"s_lshr_b32 s{st}, s2, 3", f"s_lshl_b32 s{st}, s{st}, 2", f"s_add_u32 s{st}, s{st}, s{S_W}", f"s_lshl_b32 s{st}, s{st}, 10",
      f"v_and_b32 v{vt}, 7, v0", f"v_lshlrev_b32 v{vt}, 7, v{vt}",
      f"buffer_load_dword v{vd}, v{vt}, {sr(srd,4)}, s{st} offen"]

CODE_BYTES = "L_f_end-L_f_pc"
def k1_body(A, fused=False, hooks=None):
    hooks = hooks or {}
    load_kernargs(A)
    stamp_rt(A, 7); stamp(A, 0)
    A(f"v_lshrrev_b32 v{V_T}, 6, v0", "v_and_b32 v0, 63, v0", f"v_readfirstlane_b32 s{S_W}, v{V_T}",
      f"v_lshlrev_b32 v{V_L16}, 4, v0")
    A(f"s_and_b32 s{S_XCD}, s2, 7", f"s_lshr_b32 s{S_IDX}, s2, 3",
      f"s_and_b32 s{S_WM}, s{S_W}, 1", f"s_lshr_b32 s{S_WN}, s{S_W}, 1",
      f"s_lshl_b32 s{S_W8192}, s{S_W}, 13",
      f"s_and_b32 s{S_RT1}, s{S_IDX}, 7",
      f"s_lshr_b32 s{S_T0}, s{S_IDX}, 3", f"s_and_b32 s{S_T0}, s{S_T0}, 1",
      f"s_lshl_b32 s{S_HEAD1}, s{S_XCD}, 1", f"s_add_u32 s{S_HEAD1}, s{S_HEAD1}, s{S_T0}")
    LO = f"s_cmp_lt_u32 s{S_IDX}, 16"
    LS = ORDER == "LS"
    J1L = f"s_cmp_lt_u32 s{S_IDX}, {32 if LS else 16}"
    A(f"s_mov_b32 s{S_T2}, 896", J1L, f"s_cselect_b32 s{S_T2}, 2048, s{S_T2}",
      f"s_mov_b32 s{S_STA2}, 2048", f"s_cselect_b32 s{S_STA2}, 896, s{S_STA2}", f"s_mov_b32 s{S_T3}, 8192")
    A(f"s_lshl_b32 s{S_T0}, s{S_RT1}, 8", f"s_lshl_b32 s{S_T1}, s{S_W}, 6", f"s_add_u32 s{S_T0}, s{S_T0}, s{S_T1}",
      f"s_mul_i32 s{S_SOA0}, s{S_T0}, s{S_T2}", f"s_lshl_b32 s{S_T1}, s{S_T2}, 5", f"s_add_u32 s{S_SOA1}, s{S_SOA0}, s{S_T1}")
    A(f"s_lshl_b32 s{S_T0}, s{S_WM}, 17", f"s_lshl_b32 s{S_T1}, s{S_HEAD1}, 9", f"s_add_u32 s{S_SOW}, s{S_T0}, s{S_T1}",
      f"s_lshl_b32 s{S_T1}, s{S_WN}, 8", f"s_add_u32 s{S_SOW}, s{S_SOW}, s{S_T1}",
      f"s_mov_b32 s{S2_SOW}, s{S_SOW}",
      f"s_mov_b32 s{S_WINC}, {32*8192}")
    A(f"s_lshl_b32 s{S_WM0}, s{S_W}, 12", f"s_add_u32 s{S_WM0}, s{S_WM0}, {WBASE}")
    voffs(A, V_A, V_W, f"s{S_T2}", f"s{S_T3}")
    A(f"s_mov_b32 s{S_T0}, {2048*448*2}", f"s_mov_b32 s{S_T1}, {448*4096*2}")
    A("s_waitcnt lgkmcnt(0)")
    stamp(A, 10)
    w1lo, w1hi, w2hi = (P_WUV, P_WUK, P_WQ) if LS else (P_WUK, P_WQ, P_WUV)
    A(J1L,
      f"s_cselect_b32 s{SRD_A}, s{P_CKV}, s{P_X}", f"s_cselect_b32 s{SRD_A+1}, s{P_CKV+1}, s{P_X+1}",
      f"s_cselect_b32 s{SRD_A+2}, {2048*1024*2}, s{S_T0}", f"s_mov_b32 s{SRD_A+3}, 0x20000",
      f"s_cselect_b32 s{SRD_W+2}, {1024*4096*2}, s{S_T1}", f"s_mov_b32 s{SRD_W+3}, 0x20000",
      LO, f"s_cselect_b32 s{SRD_W}, s{w1lo}, s{w1hi}", f"s_cselect_b32 s{SRD_W+1}, s{w1lo+1}, s{w1hi+1}")
    def a_group(A, slot, hf):
        A(f"s_add_u32 m0, s{S_W8192}, {slot*32768 + hf*4096}", "s_nop 0")
        for j in range(4): A(dma_a(j, hf))
        so = S_SOA1 if hf else S_SOA0
        A(f"s_add_u32 s{so}, s{so}, 128")
    def w_group(A, slot):
        A(f"s_add_u32 m0, s{S_WM0}, {slot*16384}", "s_nop 0")
        for j in range(4): A(dma_w(j))
        A(f"s_add_u32 s{S_SOW}, s{S_SOW}, s{S_WINC}")
    a_group(A, 0, 0); a_group(A, 0, 1); w_group(A, 0)
    R = Asm()
    w_group(R, 1); a_group(R, 1, 0); a_group(R, 1, 1); w_group(R, 2); a_group(R, 2, 0); w_group(R, 3)
    A_out = A
    A = Asm()
    npf = 0
    stamp(A, 11)
    A(f"s_mov_b32 s{SRD_WS}, s{P_WS}", f"s_mov_b32 s{SRD_WS+1}, s{P_WS+1}", f"s_mov_b32 s{SRD_WS+2}, {WS_BYTES}",
      f"s_mov_b32 s{SRD_WS+3}, 0x20000")
    A(f"s_add_u32 s{S_DSLOT}, s{S_W8192}, {2*32768}", f"s_mov_b32 s{S_RSLOT}, 0")
    A(f"v_lshlrev_b32 v{V_T}, 2, v0", f"v_mov_b32 v{V_T+1}, 0",
      f"s_lshl_b32 s{S_T0}, s2, 8", f"s_add_u32 s{S_T0}, s{S_T0}, {FL_OFF}",
      f"buffer_store_dword v{V_T+1}, v{V_T}, {sr(SRD_WS,4)}, s{S_T0} offen sc0 sc1")
    npf += 1
    t0, t1, t2, t3 = V_T, V_T + 1, V_T + 2, V_T + 3
    A(f"v_lshrrev_b32 v{t0}, 4, v0",
      f"v_bfe_u32 v{t1}, v0, 2, 2",
      f"v_lshl_add_u32 v{t2}, v{t0}, 3, v{t1}",
      f"v_lshlrev_b32 v{t2}, 8, v{t2}",
      f"v_and_b32 v{t3}, 1, v0", f"v_lshl_add_u32 v{t2}, v{t3}, 3, v{t2}",
      f"v_add_u32 v{t2}, {WBASE}, v{t2}",
      f"v_and_b32 v{t0}, 1, v{t0}", f"v_lshl_add_u32 v{t1}, v{t0}, 2, v{t1}", f"v_lshlrev_b32 v{t1}, 1, v{t1}",
      f"v_bfe_u32 v{t3}, v0, 1, 1",
      f"s_lshl_b32 s{S_T0}, s{S_WM}, 3",
      f"v_add_u32 v{t3}, s{S_T0}, v{t3}")
    for cb in range(4):
        A(f"v_add_u32 v{t0}, {2*cb}, v{t3}", f"v_xor_b32 v{t0}, v{t0}, v{t1}",
          f"v_lshl_add_u32 v{V_RW+cb}, v{t0}, 4, v{t2}")
    A(f"v_and_b32 v{t0}, 15, v0", f"s_lshl_b32 s{S_T0}, s{S_WN}, 7", f"v_add_u32 v{t1}, s{S_T0}, v{t0}",
      f"v_lshlrev_b32 v{t1}, 7, v{t1}", f"v_lshrrev_b32 v{t0}, 1, v{t0}", f"v_lshrrev_b32 v{t2}, 4, v0")
    for ks in range(2):
        A(f"v_add_u32 v{t3}, {4*ks}, v{t2}", f"v_xor_b32 v{t3}, v{t3}, v{t0}",
          f"v_lshl_add_u32 v{V_RA+ks}, v{t3}, 4, v{t1}")
    A(f"s_mul_i32 s{S_T0}, s{S_XCD}, 14", f"s_add_u32 s{S_T0}, s{S_T0}, s{S_IDX}",
      f"s_lshr_b32 s{S_C2}, s{S_T0}, 3", f"s_and_b32 s{S_T0}, s{S_T0}, 7",
      LO,
      f"s_cselect_b32 s{S_RT2}, s{S_T0}, s{S_RT1}",
      f"s_mov_b32 s{S_STW2}, 8192", f"s_cselect_b32 s{S_STW2}, 3584, s{S_STW2}",
      f"s_mov_b32 s{S2_WSZ}, {(448 if LS else 1024)*4096*2}", f"s_cselect_b32 s{S2_WSZ}, {448*1792*2}, s{S2_WSZ}",
      J1L,
      f"s_mov_b32 s{S2_ASZ}, {2048*1024*2}", f"s_cselect_b32 s{S2_ASZ}, {2048*448*2}, s{S2_ASZ}",
      f"s_cselect_b32 s{S2_A0}, s{P_X}, s{P_CKV}", f"s_cselect_b32 s{S2_A1}, s{P_X+1}, s{P_CKV+1}")
    A(f"s_cmp_eq_u32 s{S_WN}, 1",
      f"s_cselect_b32 s{S_T2}, s{P_WU}, s{P_WG}", f"s_cselect_b32 s{S_T3}, s{P_WU+1}, s{P_WG+1}",
      f"s_lshl_b32 s{S_T1}, s{S_C2}, 8", f"s_mul_i32 s{S_T0}, s{S_WM}, {16*3584}", f"s_add_u32 s{S_T0}, s{S_T0}, s{S_T1}",
      LO,
      f"s_cselect_b32 s{S2_W0}, s{S_T2}, s{w2hi}", f"s_cselect_b32 s{S2_W1}, s{S_T3}, s{w2hi+1}",
      f"s_cselect_b32 s{S2_SOW}, s{S_T0}, s{S2_SOW}",
      f"s_lshl_b32 s{S2_WINC}, s{S_STW2}, 5")
    A(f"s_sub_u32 s{S_N}, 15, s{S_RT1}", f"s_cmp_eq_u32 s{S_WM}, 1", f"s_cselect_b32 s{S_T2}, s{S_RT1}, s{S_N}",
      f"s_lshl_b32 s{S_T2}, s{S_T2}, 7", f"s_lshl_b32 s{S_T1}, s{S_WN}, 6", f"s_add_u32 s{S_T2}, s{S_T2}, s{S_T1}")
    A(f"s_lshl_b32 s{S_T0}, s{S_RT2}, 8", f"s_lshl_b32 s{S_T1}, s{S_W}, 6", f"s_add_u32 s{S_T0}, s{S_T0}, s{S_T1}",
      LO, f"s_cselect_b32 s{S_T0}, s{S_T0}, s{S_T2}",
      f"s_mul_i32 s{S2_SOA0}, s{S_T0}, s{S_STA2}", f"s_lshl_b32 s{S_T1}, s{S_STA2}, 5", f"s_add_u32 s{S2_SOA1}, s{S2_SOA0}, s{S_T1}")
    A(f"s_and_b32 s{S_T0}, s{S_IDX}, 30", f"s_cmp_eq_u32 s{S_T0}, 14",
      f"s_cselect_b32 s{S2_ASZ}, 0, s{S2_ASZ}", f"s_cselect_b32 s{S2_WSZ}, 0, s{S2_WSZ}")
    voffs(A, V_A2, V_W2, f"s{S_STA2}", f"s{S_STW2}")
    for j in range(8): A(f"v_accvgpr_write_b32 a{A_J2+j}, v{V_A2+j}")
    A(f"s_lshl_b32 s{S_T0}, s{S_HEAD1}, 20", f"s_lshl_b32 s{S_T1}, s{S_RT1}, 17", f"s_add_u32 s{S_T0}, s{S_T0}, s{S_T1}",
      f"s_lshl_b32 s{S_T1}, s{S_WN}, 16", f"s_add_u32 s{S_T0}, s{S_T0}, s{S_T1}",
      f"s_lshl_b32 s{S_T1}, s{S_WM}, 11", f"s_add_u32 s{S_T2}, s{S_T0}, s{S_T1}",
      f"s_lshl_b32 s{S_T1}, s{S_WM}, 12", f"s_add_u32 s{S_T3}, s{S_T0}, s{S_T1}",
      )
    if LS:
        A(f"s_lshl_b32 s{S_DST2}, s{S_HEAD1}, 20", f"s_lshl_b32 s{S_T1}, s{S_N}, 16", f"s_add_u32 s{S_DST2}, s{S_DST2}, s{S_T1}",
          f"s_lshl_b32 s{S_T1}, s{S_WN}, 15", f"s_add_u32 s{S_DST2}, s{S_DST2}, s{S_T1}",
          f"s_lshl_b32 s{S_T1}, s{S_WM}, 11", f"s_add_u32 s{S_DST2}, s{S_DST2}, s{S_T1}", f"s_add_u32 s{S_DST2}, s{S_DST2}, {QF_OFF}")
        A(f"s_add_u32 s{S_T3}, s{S_T3}, {VF_OFF}", f"s_add_u32 s{S_T2}, s{S_T2}, {KF_OFF}",
          LO, f"s_cselect_b32 s{S_DST1}, s{S_T3}, s{S_T2}")
    else:
        A(f"s_add_u32 s{S_DST2}, s{S_T3}, {VF_OFF}", f"s_add_u32 s{S_T3}, s{S_T2}, {KF_OFF}", f"s_add_u32 s{S_T2}, s{S_T2}, {QF_OFF}",
          LO, f"s_cselect_b32 s{S_DST1}, s{S_T3}, s{S_T2}")
    A(f"s_lshl_b32 s{S_T0}, s{S_RT2}, 4", f"s_lshl_b32 s{S_T1}, s{S_WN}, 3", f"s_add_u32 s{S_T0}, s{S_T0}, s{S_T1}",
      f"s_mul_i32 s{S_T0}, s{S_T0}, {asmlib.AFS}", f"s_lshl_b32 s{S_T1}, s{S_C2}, 2", f"s_add_u32 s{S_T0}, s{S_T0}, s{S_T1}",
      f"s_lshl_b32 s{S_T1}, s{S_WM}, 1", f"s_add_u32 s{S_T0}, s{S_T0}, s{S_T1}", f"s_add_u32 s{S_T0}, s{S_T0}, 128",
      f"s_lshl_b32 s{S_T0}, s{S_T0}, 10", f"s_add_u32 s{S_T0}, s{S_T0}, {AF_OFF}",
      LO, f"s_cselect_b32 s{S_DST2}, s{S_T0}, s{S_DST2}")
    A(f"s_mov_b32 s{S_KIND}, s{P_WG}", f"s_mov_b32 s{S_STA2}, s{P_WG+1}")
    if CODE_BYTES:
        code_touch(A, CODE_BYTES); npf += 1
    if PREFETCH: prefetch_setup(A)
    A(f"v_mov_b32 v{V_RCUR}, v{V_RA}")
    body = [l for l in A.lines if not l.startswith("buffer_")]
    late = []
    setup = A.lines
    A = A_out
    rest = []
    cur = []
    for l in R.lines:
        cur.append(l)
        if l.startswith("buffer_"): rest.append(cur); cur = []
    rest[-1].extend(cur)
    def scc_live(i):
        for l in setup[i:]:
            if l.startswith(("s_cselect", "s_addc", "s_cbranch_scc")): return True
            if l.startswith(("s_cmp", "s_add_u32", "s_sub_u32", "s_lshl", "s_lshr", "s_and", "s_or", "s_min", "s_bfe")): return False
        return False
    n = len(setup); k = 0; vm_order = []
    for i, l in enumerate(setup):
        if k < len(rest) and i >= (k + PRO_SKIP) * n // (len(rest) + PRO_SKIP) and not scc_live(i) and not l.startswith("L_f_pc"):
            A(rest[k]); vm_order.append(k); k += 1
        A(l)
        if l.startswith("buffer_"): vm_order.append("x")
    while k < len(rest): A(rest[k]); vm_order.append(k); k += 1
    stamp(A, 12)
    A(f"s_waitcnt vmcnt({len(vm_order)})", "s_barrier")
    A(reads_for(0, 0))
    A(f"s_waitcnt vmcnt({len(vm_order) - 1 - vm_order.index(3)}) lgkmcnt(0)", "s_barrier")
    stamp(A, 1)
    A(LO, "s_cbranch_scc0 L_k1_hi")
    job(A, "k1L", "AW" if LS else "WA", 32, 0, True, pf=PREFETCH)
    stamp(A, 2)
    if "J1end" in hooks: hooks["J1end"](A)
    A(f"s_cmp_ge_u32 s{S_IDX}, 14", "s_cbranch_scc1 L_k1_side")
    early_dma(A, 0)
    aft = (epi_AW_stage if LS else epi_WA_stage)(A, S_DST1)
    stamp(A, 3)
    job(A, "k1G", "WA", 14, 0, False, after=aft, U=14, hook=hooks.get("J2", wl_hook), sig=hooks.get("sig"))
    stamp(A, 4)
    if "Gend" in hooks: hooks["Gend"](A)
    else:
        wl_finish(A); epi_GU(A, S_DST2); fin(A); A("s_endpgm")
    switch_code(A, "k1L")
    switch_code(A, "k1H")
    pf_blocks(A)
    A.label("L_k1_hi")
    job(A, "k1H", "WA", 32 if LS else 14, 0, True, pf=PREFETCH)
    stamp(A, 2)
    if "J1end" in hooks: hooks["J1end"](A)
    early_dma(A, 0 if LS else 2)
    aft = epi_WA_stage(A, S_DST1)
    stamp(A, 3)
    if LS: job(A, "k1Q", "WA", 14, 0, False, after=aft, U=14, hook=hooks.get("J2", wl_hook), sig=hooks.get("sig"))
    else: job(A, "k1V", "AW", 32, 2, False, after=aft, U=24 // TRICKLE, pf=PREFETCH, pf_roll=False)
    stamp(A, 4)
    assert LS
    if "Hend" in hooks: hooks["Hend"](A)
    else:
        wl_finish(A); (epi_WA if LS else epi_AW)(A, S_DST2); fin(A); A("s_endpgm")
    pf_blocks(A)
    A.label("L_k1_side")
    (epi_AW if LS else epi_WA)(A, S_DST1)
    stamp(A, 3)
    side_job(A, hooks.get("sidesig"))
    stamp(A, 4)
    if "Send" in hooks: hooks["Send"](A)
    else: fin(A)

def gen_k1(A, name="k1_kernel"):
    kernel_begin(A, name)
    A("s_cmp_ge_u32 s2, 256", "s_cbranch_scc1 L_k1_end")
    k1_body(A)
    A.label("L_k1_end")
    A("s_endpgm")

def desc_k1(A, name="k1_kernel"):
    kernel_desc(A, name, 512, 256)
```

```python
from asmlib import *
import asmlib

SRD_K, SRD_V, SRD_WS, SRD_DBG = 4, 8, 12, 60
S_W, S_W8192, S_CUR, S_NXT, S_KSO, S_VSO = 16, 17, 18, 19, 20, 21
S_T, S_T1N, S_EVA, S_MODE, S_QSO, S_C, S_THR = 22, 23, 24, 25, 26, 27, 28
S_T0, S_T1, S_T2, S_T3 = 29, 30, 31, 64
S_HEAD, S_PAIR, S_QB, S_EVB, S_WSSZ, S_PART, S_FLAG, S_KB0, S_VB0 = 65, 66, 67, 68, 69, 70, 71, 72, 73
S_POLLT, S_X = 82, 83
NT = 17
V_X8 = 24
V_SV = 20
SPLIT = 15
S_MASK = 74
V_L16, V_AK, V_AV, V_D0, V_D, V_MC, V_L, V_TS, V_T, V_X = 1, 2, 3, 4, 5, 6, 8, 10, 14, 16
S0, P0, O0 = 32, 96, 128
QA, FA, PA = 0, 64, 128
NSLOT = 5
PART_STRIDE = 4 * 17 * 1024
THR = 0x44800000

def S(par, kb, qb, r=0): return S0 + par * 32 + (kb * 2 + qb) * 4 + r
def P(par, ks, qb, d=0): return P0 + par * 16 + (ks * 2 + qb) * 4 + d
def O(db, qb, r=0): return O0 + (db * 2 + qb) * 4 + r
def Q(qb, ds): return QA + (qb * 8 + ds) * 4
def F(k): return FA + (k % 16) * 4
def TS(par, qb): return V_TS + par * 2 + qb

def rd(k, vaddr): return f"ds_read_b128 {ar(F(k),4)}, v{vaddr} offset:{(k % 32) * 1024}"

def qk_mfmas(par):
    m = []
    for kb in range(4):
        for ds in range(8):
            for qb in range(2):
                c = "0" if ds == 0 else vr(S(par, kb, qb), 4)
                m.append(f"v_mfma_f32_16x16x32_bf16 {vr(S(par,kb,qb),4)}, {ar(F(kb*8+ds),4)}, {ar(Q(qb,ds),4)}, {c}")
    return m
def pv_mfmas(par):
    m = []
    for ks in range(2):
        for db in range(16):
            for qb in range(2):
                m.append(f"v_mfma_f32_16x16x32_bf16 {vr(O(db,qb),4)}, {ar(F(ks*16+db),4)}, {vr(P(par,ks,qb),4)}, {vr(O(db,qb),4)}")
    return m

def sm_pair(par, h, p):
    kb, qb, rr = 2 * h + (p >> 2), (p >> 1) & 1, (p & 1) * 2
    xa, xb = V_X + (p & 1) * 2, V_X + (p & 1) * 2 + 1
    if h == 1 and p == 0: xa, xb = V_X8, V_X8 + 1
    ts = TS(par, qb)
    first = (h == 0 and (p >> 2) == 0 and (p & 1) == 0)
    return dict(
        fa=f"v_fma_f32 v{xa}, v{S(par,kb,qb,rr)}, s{S_C}, -v{V_MC+qb}",
        fb=f"v_fma_f32 v{xb}, v{S(par,kb,qb,rr+1)}, s{S_C}, -v{V_MC+qb}",
        ea=f"v_exp_f32 v{xa}, v{xa}", eb=f"v_exp_f32 v{xb}, v{xb}",
        aa=(f"v_mov_b32 v{ts}, v{xa}" if first else f"v_add_f32 v{ts}, v{ts}, v{xa}"),
        ab=f"v_add_f32 v{ts}, v{ts}, v{xb}",
        cv=f"v_cvt_pk_bf16_f32 v{P(par,h,qb,2*(kb&1)+(p&1))}, v{xa}, v{xb}")

def sm_plain(A, par, h, split=False):
    for p in range(0, 8, 2):
        a, b = sm_pair(par, h, p), sm_pair(par, h, p + 1)
        if split and h == 1 and p == 0:
            A(b["fa"], b["fb"], a["ab"], b["ea"], b["eb"], a["cv"], b["aa"], b["ab"], b["cv"])
        else:
            A(a["fa"], a["fb"], b["fa"], b["fb"], a["ea"], a["eb"], b["ea"], b["eb"],
              a["aa"], a["ab"], a["cv"], b["aa"], b["ab"], b["cv"])
    if split and h == 0:
        a = sm_pair(par, 1, 0)
        A(a["fa"], a["fb"], a["ea"], a["eb"], a["aa"])

def dma(srd, so, j): return f"buffer_load_dwordx4 v{V_L16}, {sr(srd,4)}, s{so} offen offset:{(j&3)*1024} lds"

def phase(A, kind, par, after=None, eg=None):
    if kind == "A":
        m = qk_mfmas(1 - par); vcur, vnxt = V_AK, V_AV; so = S_KSO
        nso, nb0, ahead, ev = S_VSO, S_VB0, 2, S_EVA
        smp = par
    else:
        m = pv_mfmas(par); vcur, vnxt = V_AV, V_AK; so = S_VSO
        nso, nb0, ahead, ev = S_KSO, S_KB0, 4, S_EVB
        smp = 1 - par
    g = {}
    def put(k, *ins): g.setdefault(k, []).extend(ins)
    if eg is None:
        sc = {3: f"s_add_u32 s{S_NXT}, s{S_CUR}, 32768", 5: f"s_cmp_eq_u32 s{S_NXT}, {NSLOT*32768}",
              11: f"s_cselect_b32 s{S_NXT}, 0, s{S_NXT}", 13: f"s_add_u32 s{S_T0}, s{S_T}, {ahead}",
              19: f"s_cmp_eq_u32 s{S_T0}, s{S_T1N}", 21: f"s_cselect_b32 s{nso}, s{nb0}, s{nso}",
              27: "s_add_u32 m0, m0, 4096", 29: f"s_add_u32 s{so}, s{so}, 4096",
              37: f"s_add_u32 s{S_T1}, s{S_CUR}, s{S_W8192}", 43: f"s_mov_b32 s{S_CUR}, s{S_NXT}",
              45: f"s_add_u32 s{S_T2}, s{so}, 28672", 51: f"s_bitcmp1_b32 s{ev}, s{S_T}",
              59: f"s_mov_b32 m0, s{S_T1}", 61: "s_barrier"}
        if kind == "B": sc[35] = f"s_add_u32 s{S_T}, s{S_T}, 1"
        dl = [dma(SRD_WS, so, grp) for grp in range(8)]
        vm = 15
    else:
        sc = dict(eg["sc"]); sc[61] = "s_barrier"; dl = eg["d"]; vm = eg["vm"]
    sc[53] = f"s_waitcnt vmcnt({vm})"
    pairs = eg.get("pairs") if eg else None
    for grp in range(8):
        b = grp * 8
        if pairs: d = sm_pair(smp, *pairs[grp])
        elif kind == "B": d = sm_pair(smp, 0, grp)
        else: d = sm_pair(smp, 1, grp + 1) if grp < 7 else None
        for i in range(4):
            k = 4 * (grp + 2) + i
            put(b + 2 * i, rd(k, vcur if k < 32 else vnxt))
        put(b + 1, dl[grp])
        for k in (3, 5):
            if b + k in sc: put(b + k, sc[b + k])
        put(b + 7, "s_waitcnt lgkmcnt(4)")
        if d:
            put(b + 0, d["fa"]); put(b + 2, d["fb"]); put(b + 3, d["ea"]); put(b + 5, d["eb"])
            put(b + 6, d["aa"]); put(b + 7, d["ab"], d["cv"])
    put(44, f"v_add_u32 v{vnxt}, {'s%d' % S_NXT if eg is None else eg['nslot'] * 32768}, v{V_L16}")
    if kind == "B":
        put(4, f"v_add_f32 v{V_L}, v{V_L}, v{TS(par,0)}")
        put(12, f"v_add_f32 v{V_L+1}, v{V_L+1}, v{TS(par,1)}")
    if not pairs:
        e = sm_pair(smp, 1, 0)
        if kind == "B":
            put(20, e["fa"]); put(28, e["fb"]); put(36, e["ea"]); put(52, e["eb"]); put(60, e["aa"])
        else:
            put(4, e["ab"]); put(12, e["cv"])
            put(56, f"v_add_f32 v{V_T}, v{TS(par,0)}, v{TS(par,1)}")
            put(58, f"v_cmp_nge_f32 vcc, s{S_THR}, v{V_T}")
    if eg is None:
        if kind == "A": put(62, f"s_mov_b32 s{so}, s{S_T2}")
        else: put(57, f"s_mov_b32 s{so}, s{S_T2}")
    for k, v in (after or {}).items(): put(k, *v)
    interleave(A, m, g)

def half_phase(A, m, vcur, vnxt, valu, other, bar=None):
    g = {}
    def put(k, *ins): g.setdefault(k, []).extend(ins)
    for k in range(32):
        if k + 8 < 32: put(k, rd(k + 8, vcur))
        elif vnxt is not None: put(k, rd(k + 8, vnxt))
    for i, x in enumerate(valu): put(i * 29 // len(valu), x)
    for k, v in other.items(): put(k, *v)
    for k in range(3, 32, 4):
        if vnxt is not None or k < 24: put(k, "s_waitcnt lgkmcnt(4)")
        elif k < 28: put(k, "s_waitcnt lgkmcnt(0)")
    if bar: put(29, *bar)
    interleave(A, m, g)

def check(A, par, tag):
    A(f"v_add_f32 v{V_T}, v{TS(par,0)}, v{TS(par,1)}",
      f"v_cmp_nge_f32 vcc, s{S_THR}, v{V_T}")

def xmax(A, v, t):
    A(f"v_mov_b32 v{t}, v{v}", "s_nop 1", f"v_permlane16_swap_b32 v{v}, v{t}", "s_nop 1", f"v_max_f32 v{v}, v{v}, v{t}",
      f"v_mov_b32 v{t}, v{v}", "s_nop 1", f"v_permlane32_swap_b32 v{v}, v{t}", "s_nop 1", f"v_max_f32 v{v}, v{v}, v{t}")
def xsum(A, v, t):
    A(f"v_mov_b32 v{t}, v{v}", "s_nop 1", f"v_permlane16_swap_b32 v{v}, v{t}", "s_nop 1", f"v_add_f32 v{v}, v{v}, v{t}",
      f"v_mov_b32 v{t}, v{v}", "s_nop 1", f"v_permlane32_swap_b32 v{v}, v{t}", "s_nop 1", f"v_add_f32 v{v}, v{v}, v{t}")

def rowmax(A, par, qb, dst, t):
    regs = [S(par, kb, qb, r) for kb in range(4) for r in range(4)]
    A(f"v_max3_f32 v{dst}, v{regs[0]}, v{regs[1]}, v{regs[2]}")
    for i in range(3, 15, 2):
        A(f"v_max3_f32 v{dst}, v{dst}, v{regs[i]}, v{regs[i+1]}")
    A(f"v_max_f32 v{dst}, v{dst}, v{regs[15]}")
    xmax(A, dst, t)
    A(f"v_mul_f32 v{dst}, s{S_C}, v{dst}")

S_RET = 46
def call(lab): return f"s_call_b64 {sr(S_RET,2)}, {lab}"
RET = f"s_setpc_b64 {sr(S_RET,2)}"
LASTP = [(h, p) for h in range(2) for p in (2, 3, 6, 7)]
def slow(A, par, lab, qbs=(0, 1)):
    A.label(lab)
    A("s_nop 7")
    for qb in qbs:
        rowmax(A, par, qb, V_T, V_T + 1)
        A(f"v_max_f32 v{V_T}, v{V_T}, v{V_MC+qb}",
          f"v_sub_f32 v{V_T+1}, v{V_MC+qb}, v{V_T}", f"v_exp_f32 v{V_T+1}, v{V_T+1}",
          f"v_mov_b32 v{V_MC+qb}, v{V_T}",
          f"v_mul_f32 v{V_L+qb}, v{V_L+qb}, v{V_T+1}")
        for db in range(16):
            for r in range(4): A(f"v_mul_f32 v{O(db,qb,r)}, v{O(db,qb,r)}, v{V_T+1}")
    if len(qbs) == 2:
        sm_plain(A, par, 0); sm_plain(A, par, 1)
    else:
        for k in range(0, 8, 2):
            a, b = sm_pair(par, *LASTP[k]), sm_pair(par, *LASTP[k + 1])
            A(a["fa"], a["fb"], b["fa"], b["fb"], a["ea"], a["eb"], b["ea"], b["eb"],
              a["aa"], a["ab"], a["cv"], b["aa"], b["ab"], b["cv"])
    A("s_nop 1", RET)

def mask(A, par, qb):
    A(f"s_lshl_b32 s{S_T0}, s{S_W}, 4")
    if qb: A(f"s_sub_u32 s{S_T0}, 48, s{S_T0}")
    A(f"v_add_u32 v{V_D}, s{S_T0}, v{V_D0}", f"v_mov_b32 v{V_T}, 0xff800000", "s_nop 4")
    for kb in range(4):
        for r in range(4):
            A(f"v_cmp_le_i32 {sr(S_MASK+2*r,2)}, {16*kb + r}, v{V_D}")
        for r in range(4):
            A(f"v_cndmask_b32 v{S(par,kb,qb,r)}, v{V_T}, v{S(par,kb,qb,r)}, {sr(S_MASK+2*r,2)}")

def q_loads(A, base, srd):
    for qb in range(2):
        if qb == 0: A(f"s_add_u32 s{S_T1}, s{S_QSO}, s{S_W8192}")
        else: A(f"s_sub_u32 s{S_T1}, s{S_QSO}, s{S_W8192}", f"s_add_u32 s{S_T1}, s{S_T1}, {7*8192}")
        for ds in range(8):
            if ds == 4: A(f"s_add_u32 s{S_T1}, s{S_T1}, 4096")
            A(f"buffer_load_dwordx4 {ar(base + (qb*8+ds)*4,4)}, v{V_L16}, {sr(srd,4)}, s{S_T1} offen offset:{(ds%4)*1024}")

def item_load(A, slot, kind, t):
    so, b0 = (S_KSO, S_KB0) if kind == "K" else (S_VSO, S_VB0)
    if t: A(f"s_cmp_eq_u32 s{S_T1N}, {t}", f"s_cselect_b32 s{so}, s{b0}, s{so}")
    for hf in range(2):
        A(f"s_add_u32 m0, s{S_W8192}, {slot*32768 + hf*4096}", "s_nop 0")
        for j in range(4): A(dma(SRD_WS, so, j))
        A(f"s_add_u32 s{so}, s{so}, {28672 if hf else 4096}")

def q_off(A, qblk):
    A(f"s_lshl_b32 s{S_T0}, s{S_HEAD}, 20", f"s_lshl_b32 s{S_T1}, s{qblk}, 16", f"s_add_u32 s{S_QSO}, s{S_T0}, s{S_T1}")
    if QF_OFF: A(f"s_add_u32 s{S_QSO}, s{S_QSO}, {QF_OFF}")

def pack_pair(A, x, y):
    A(f"v_cvt_pk_bf16_f32 v{x}, v{x}, v{x+1}", f"v_cvt_pk_bf16_f32 v{x+1}, v{x+2}, v{x+3}",
      f"v_cvt_pk_bf16_f32 v{x+2}, v{y}, v{y+1}", f"v_cvt_pk_bf16_f32 v{x+3}, v{y+2}, v{y+3}")

FINAL_SC = " sc0 sc1"
DIAG2 = False
_stamp0 = stamp
SMAP = {1: 3, 2: None, 3: 4}
def stamp(A, k):
    k = SMAP.get(k)
    if k is not None: _stamp0(A, k)

def final_store(A):
    A(f"s_mul_i32 s{S_T0}, s{S_QB}, {8*asmlib.AFS*1024}", f"s_lshl_b32 s{S_T1}, s{S_HEAD}, 13", f"s_add_u32 s{S_T0}, s{S_T0}, s{S_T1}",
      f"s_mul_i32 s{S_T1}, s{S_W}, {asmlib.AFS*1024}", f"s_add_u32 s{S_T0}, s{S_T0}, {AF_OFF}",
      f"s_sub_u32 s{S_T3}, s{S_T0}, s{S_T1}", f"s_add_u32 s{S_T3}, s{S_T3}, {7*asmlib.AFS*1024}", f"s_add_u32 s{S_T0}, s{S_T0}, s{S_T1}")

def poll_partner(A, idx):
    A(f"v_mov_b32 v{V_T+1}, 0")
    poll(A, [(f"buffer_load_dword v{V_T}, v{V_T+1}, {sr(SRD_WS,4)}, s{S_FLAG} offen offset:{4*idx} sc0 sc1", V_T, 1)], S_T1)

def part_loads(base):
    L = []
    for i in range(16):
        c = [f"s_add_u32 s{S_T3}, s{base}, {i*1024}"] if i % 4 == 0 else []
        L.append(c + [f"buffer_load_dwordx4 {ar(PA+4*i,4)}, v{V_L16}, {sr(SRD_WS,4)}, s{S_T3} offen offset:{(i%4)*1024} sc0 sc1"])
    L.append([f"s_add_u32 s{S_T3}, s{base}, {16*1024}",
              f"buffer_load_dwordx4 {vr(V_PS,4)}, v{V_L16}, {sr(SRD_WS,4)}, s{S_T3} offen sc0 sc1"])
    return L

def k2_setup1(A):
    A(f"v_lshlrev_b32 v{V_L16}, 4, v0")
    A(f"s_lshl_b32 s{S_W8192}, s{S_W}, 13",
      f"s_and_b32 s{S_T0}, s2, 7", f"s_lshr_b32 s{S_T1}, s2, 3",
      f"s_lshl_b32 s{S_HEAD}, s{S_T0}, 1", f"s_bfe_u32 s{S_T0}, s{S_T1}, 0x10003", f"s_add_u32 s{S_HEAD}, s{S_HEAD}, s{S_T0}",
      f"s_lshr_b32 s{S_MODE}, s{S_T1}, 4",
      f"s_and_b32 s{S_PAIR}, s{S_T1}, 7",
      f"s_sub_u32 s{S_QB}, 15, s{S_PAIR}",
      f"s_lshl_b32 s{S_T2}, s{S_PAIR}, 1", f"s_sub_u32 s{S_T2}, {SPLIT}, s{S_T2}")
    q_off(A, S_QB)
    A(f"s_add_u32 s{S_T0}, s{S_T0}, s{S_W8192}",
      f"s_add_u32 s{S_KB0}, s{S_T0}, {KF_OFF}", f"s_add_u32 s{S_VB0}, s{S_T0}, {VF_OFF}",
      f"s_lshl_b32 s{S_T1}, s{S_T2}, 15",
      f"s_cmp_eq_u32 s{S_MODE}, 0",
      f"s_cselect_b32 s{S_T1}, s{S_T1}, 0", f"s_cselect_b32 s{S_T1N}, 0x7fff, s{S_T2}",
      f"s_add_u32 s{S_KSO}, s{S_KB0}, s{S_T1}", f"s_add_u32 s{S_VSO}, s{S_VB0}, s{S_T1}")
    A(f"s_mov_b32 s{SRD_DBG}, s{P_DBG}", f"s_mov_b32 s{SRD_DBG+1}, s{P_DBG+1}", f"s_mov_b32 s{SRD_DBG+2}, 256",
      f"s_mov_b32 s{SRD_DBG+3}, 0x20000")
    A(f"s_or_b32 s{S_FLAG}, s2, 128", f"s_lshl_b32 s{S_FLAG}, s{S_FLAG}, 8", f"s_add_u32 s{S_FLAG}, s{S_FLAG}, {FL_OFF}")

V_KA, V_KF, S_KA = 21, 22, 36
def kv_addr():
    return [f"v_and_b32 v{V_KA}, 7, v0", f"v_lshlrev_b32 v{V_KA}, 11, v{V_KA}", f"v_bfe_u32 v{V_KF}, v0, 3, 1",
      f"v_lshl_add_u32 v{V_KA}, v{V_KF}, 15, v{V_KA}",
      f"s_and_b32 s{S_KA}, s2, 0x47", f"s_lshl_b32 s{S_KA}, s{S_KA}, 8", f"s_add_u32 s{S_KA}, s{S_KA}, {FL_OFF + 4*F_KV}"]
def kv_issue(): return f"buffer_load_dword v{V_KF}, v{V_KA}, {sr(SRD_WS,4)}, s{S_KA} offen sc0 sc1"
def kv_check(A, early=True):
    asmlib._lbl[0] += 1
    l = f"L_kv{asmlib._lbl[0]}"
    A(f"s_mov_b32 s{S_T2}, 256", f"v_cmp_gt_u32 vcc, s{S_T2}, v30", f"v_mov_b32 v{V_D}, 0", "s_nop 3", f"s_cbranch_vccnz {l}_s")
    if early: A(f"v_cmp_ne_u32 vcc, 1, v{V_KF}", "s_nop 4", f"s_cbranch_vccz {l}_ok")
    A(f"s_branch {l}_p", f"{l}_s:")
    poll(A, [(f"buffer_load_dword v{V_T}, v{V_D}, {sr(SRD_DBG,4)}, 0 offen sc0 sc1", V_T, f"s{S_T2}")], S_T1, sleep=32, cmp="gt")
    A(f"{l}_p:")
    poll(A, [(kv_issue(), V_KF, 1)], S_T1)
    A(f"{l}_ok:")

def k2_setup2(A):
    A(f"v_and_b32 v{V_D0}, 15, v0", f"v_lshrrev_b32 v{V_T}, 4, v0", f"v_lshlrev_b32 v{V_T}, 2, v{V_T}",
      f"v_sub_u32 v{V_D0}, v{V_D0}, v{V_T}")
    A(f"s_mov_b32 s{S_C}, 0x3db8aa3b", f"s_mov_b32 s{S_THR}, {THR}")
    A(f"s_lshl_b32 s{S_T0}, s{S_HEAD}, 3", f"s_add_u32 s{S_T0}, s{S_T0}, s{S_PAIR}",
      f"s_mul_i32 s{S_PART}, s{S_T0}, {PART_STRIDE}", f"s_mul_i32 s{S_T1}, s{S_W}, {17*1024}",
      f"s_add_u32 s{S_PART}, s{S_PART}, s{S_T1}", f"s_add_u32 s{S_PART}, s{S_PART}, {PART_OFF}")
    A(f"s_sub_u32 s{S_X}, s{S_T1N}, 1", f"s_lshl_b32 s{S_EVA}, 3, s{S_X}",
      f"s_cmp_eq_u32 s{S_MODE}, 0", f"s_cselect_b32 s{S_EVA}, 0, s{S_EVA}",
      f"s_cselect_b32 s{S_EVB}, {sum(1 << u for u in EV_A_ONLY)}, s{S_EVA}",
      f"s_or_b32 s{S_EVB}, s{S_EVB}, {sum(1 << u for u in EV_ALL) | 1 << (NT-3)}")
    A(f"v_mov_b32 v{V_L}, 0", f"v_mov_b32 v{V_L+1}, 0", f"s_mov_b32 s{S_T}, 0")
    A(f"v_add_u32 v{V_AV}, {slot_of(0)*32768}, v{V_L16}", f"v_add_u32 v{V_AK}, {slot_of(1)*32768}, v{V_L16}")

ITEMS = (("K", 0), ("K", 1), ("V", 0), ("K", 2), ("V", 1))
SLOT0 = 4
def slot_of(n): return (n + SLOT0) % NSLOT
def items(A, lo, hi):
    for n in range(lo, hi): item_load(A, slot_of(n), *ITEMS[n])
    if hi == 5: A(f"s_cmp_eq_u32 s{S_T1N}, 3", f"s_cselect_b32 s{S_KSO}, s{S_KB0}, s{S_KSO}")
def chunks(lines, per):
    out, cur, n = [], [], 0
    for l in lines:
        if l.startswith("buffer_") and n == per:
            out.append(cur); cur, n = [], 0
        cur.append(l)
        if l.startswith("buffer_"): n += 1
    out.append(cur)
    return out

def p0(A, extra=None):
    for k in range(8): A(rd(k, V_AV))
    m = qk_mfmas(0)
    g = {}
    for grp in range(6):
        for i in range(4):
            g.setdefault(grp * 8 + 2 * i, []).append(rd(4 * (grp + 2) + i, V_AV))
    for k, v in (extra or {}).items(): g.setdefault(k, []).extend(v)
    for grp in range(7): g.setdefault(grp * 8 + 7, []).append("s_waitcnt lgkmcnt(4)" if grp < 6 else "s_waitcnt lgkmcnt(0)")
    z = [f"v_pk_mul_f32 {vr(O0+2*i,2)}, 0, 0" if False else f"v_mov_b64 {vr(O0+2*i,2)}, 0" for i in range(64)]
    for k in range(64): g.setdefault(k, []).append(z[k])
    A("s_waitcnt lgkmcnt(4)")
    interleave(A, m, g)

V_PS = V_SV
V_LOOK = 30
S_PB = S_POLLT
EV_ALL, EV_A_ONLY = [], []
SPECIAL = {}
SMALL = {}
K3W = None
K3A = None
SPARE_A = [20, 28, 36, 52, 59, 61, 63, 60]
def k2_main(A, done):
    A("s_nop 7")
    for qb in range(2): rowmax(A, 0, qb, V_MC + qb, V_T)
    A("s_waitcnt vmcnt(16)", "s_barrier")
    for k in range(8): A(rd(k, V_AK))
    sm_plain(A, 0, 0, split=True)
    A(f"s_mov_b32 s{S_CUR}, {slot_of(1)*32768}", f"s_add_u32 m0, s{S_W8192}, {slot_of(0)*32768}", "s_waitcnt lgkmcnt(4)")
    stamp(A, 2)
    A(f"s_bitcmp1_b32 s{S_EVB}, 0", "s_cbranch_scc1 L_k2_evb0")
    A(".p2align 6")
    for par in range(2):
        A.label(f"L_k2_a{par}")
        phase(A, "A", par)
        A(f"s_cbranch_scc1 L_k2_eva{par}")
        A(f"s_cbranch_vccnz L_k2_eva{par}")
        A.label(f"L_k2_b{par}")
        phase(A, "B", par)
        if par == 0: A("s_cbranch_scc1 L_k2_evb1")
        else: A("s_cbranch_scc0 L_k2_a0")
    A.label("L_k2_evb0")
    if DIAG2 and asmlib.STAMPS:
        for k, u in ((1, 2), (2, 8), (3, 12), (4, 14)):
            A(f"s_cmp_eq_u32 s{S_T}, {u}", f"s_cbranch_scc0 L_k2_ns{k}"); _stamp0(A, k); A.label(f"L_k2_ns{k}")
    A(f"s_cmp_eq_u32 s{S_T}, s{S_X}", "s_cbranch_scc0 L_k2_noq")
    for i in range(64): A(f"v_accvgpr_mov_b32 a{QA+i}, a{PA+i}")
    A.label("L_k2_noq")
    A(f"s_cmp_eq_u32 s{S_T}, {NT-3}", "s_cbranch_scc1 L_k2_eg")
    for u in SPECIAL: A(f"s_cmp_eq_u32 s{S_T}, {u}", f"s_cbranch_scc1 L_k2_sp{u}")
    for u, f in SMALL.items():
        A(f"s_cmp_eq_u32 s{S_T}, {u}", f"s_cbranch_scc0 L_k2_nd{u}")
        f(A)
        A.label(f"L_k2_nd{u}")
    A("s_branch L_k2_a0")
    for u, (st, L) in SPECIAL.items():
        A.label(f"L_k2_sp{u}")
        st(A)
        phase(A, "A", 0, after={gp: [x] for gp, x in zip(SPARE_A, L)})
        A("s_cbranch_scc1 L_k2_eva0", "s_cbranch_vccnz L_k2_eva0", "s_branch L_k2_b0")
    A.label("L_k2_evb1")
    A(call("L_k2_ostore"), "s_branch L_k2_a1")
    def cond_call(cmp, lab, n):
        A(cmp, f"s_cbranch_scc0 L_k2_cc{n}", call(lab), f"L_k2_cc{n}:")
    def slow_call(lab, n):
        A(f"s_cbranch_vccz L_k2_cs{n}", call(lab), f"L_k2_cs{n}:")
    IS_X, IS_N1 = f"s_cmp_eq_u32 s{S_T}, s{S_X}", f"s_cmp_eq_u32 s{S_T}, s{S_T1N}"
    A.label("L_k2_eva0"); slow_call("L_k2_slow0", 0); cond_call(IS_X, "L_k2_x", 0); A("s_branch L_k2_b0")
    A.label("L_k2_eva1"); slow_call("L_k2_slow1", 1)
    A(IS_N1, "s_cbranch_scc0 L_k2_b1", "s_waitcnt vmcnt(8)", call("L_k2_pub"), "s_branch L_k2_b1")
    A.label("L_k2_eg")
    order = ["k16"] * 8 + ["v15"] * 8
    def after_tag(tag):
        return min(63, len(order) - 1 - max(i for i, o in enumerate(order) if o == tag))
    def run(kind, par, dl, dtags, sc, nslot, need, xs, xtags, gaps, pairs=None):
        ev = sorted([(8 * k + 1, t) for k, t in enumerate(dtags)] + list(zip(gaps, xtags)), key=lambda e: e[0])
        for gp, t in ev:
            if gp < 53: order.append(t)
        vm = after_tag(need) if need else 63
        for gp, t in ev:
            if gp >= 53: order.append(t)
        aft = {}
        for gp, x in zip(gaps, xs): aft.setdefault(gp, []).extend(x)
        phase(A, kind, par, after=aft, eg=dict(d=dl, sc=sc, nslot=nslot, vm=vm, pairs=pairs))
    def wpair(s):
        p0_, l0 = K3W(s); p1, l1 = K3W(s + 1)
        return p0_, l0 + l1, {27: p1[0], 29: p1[1], 35: p1[2]}, [("w", s)] * 4 + [("w", s + 1)] * 4
    def achunks(s0, s1):
        out, tags = [], []
        for s in range(s0, s1):
            p, l = K3A(s)
            out += [p + [l[0]]] + [[x] for x in l[1:]]; tags += [("a", s)] * 4
        return out, tags
    sK16, sV14, sV15, sV16 = slot_of(31), slot_of(30), slot_of(32), slot_of(34)
    look = [f"v_mov_b32 v{V_D}, 0", f"buffer_load_dword v{V_LOOK}, v{V_D}, {sr(SRD_WS,4)}, s{S_FLAG} offen offset:{4*F_PART} sc0 sc1"]
    pre, dl, sc, dt = wpair(0); A(pre)
    sc[59] = f"s_add_u32 m0, s{S_W8192}, {sV16*32768}"
    xs, xt = achunks(0, 2)
    run("A", 0, dl, dt, sc, sV14, "k16", xs + [look], xt + ["look"], sorted(SPARE_A) + [63])
    slow_call("L_k2_slow0", 2); mask(A, 1, 0); cond_call(IS_X, "L_k2_x", 2)
    xs, xt = achunks(2, 4)
    run("B", 0, [dma(SRD_WS, S_VSO, k) for k in range(8)], ["v16"] * 8,
        {27: "s_add_u32 m0, m0, 4096", 29: f"s_add_u32 s{S_VSO}, s{S_VSO}, 4096", 35: f"s_add_u32 s{S_T}, s{S_T}, 1"},
        sK16, "look", xs, xt, [3, 11, 19, 27, 35, 43, 51, 59])
    cond_call(IS_N1, "L_k2_ostore", 3)
    A(f"v_readfirstlane_b32 s{S_T0}, v{V_LOOK}", f"s_mov_b32 s{S_PB}, 0x40000000", "s_nop 2", f"s_sub_u32 s{S_T0}, s{S_T0}, s{S_MODE}",
      f"s_sub_u32 s{S_T0}, s{S_T0}, s{S_MODE}", f"s_cmp_eq_u32 s{S_T0}, 1", f"s_cselect_b32 s{S_PB}, s{S_PART}, s{S_PB}")
    pl = part_loads(S_PB)
    B = Asm(); sm_plain(B, 1, 1, split=True)
    valu = B.lines + [f"v_add_f32 v{V_T}, v{TS(1,0)}, v{TS(1,1)}", f"v_cmp_nge_f32 vcc, s{S_THR}, v{V_T}"]
    pre, dl, sc, dt = wpair(2); A(pre)
    oth = {20: [f"v_add_u32 v{V_AV}, {sV15*32768}, v{V_L16}"]}
    for k in range(8): oth.setdefault(1 + 3 * k, []).append(dl[k])
    oth[11] = [sc[27], sc[29], sc[35]]
    order += dt
    n15 = 8
    half_phase(A, [x for x in qk_mfmas(0)[1::2]], V_AK, V_AV, valu, oth, bar=[f"s_waitcnt vmcnt({after_tag('v16')})", "s_barrier"])
    slow_call("L_k2_slow1", 4); mask(A, 0, 1)
    A(IS_N1, "s_cbranch_scc0 L_k2_cc5", f"s_waitcnt vmcnt({n15})", call("L_k2_pub"), "L_k2_cc5:")
    pre, dl, sc, dt = wpair(4); A(pre)
    run("B", 1, dl, dt, sc, sV16, None, pl, ["p"] * 17, [3, 5, 11, 13, 19, 20, 21, 28, 36, 37, 43, 45, 51, 52, 59, 60, 61], pairs=LASTP)
    if DIAG2: _stamp0(A, 5)
    A(f"v_cmp_nge_f32 vcc, s{S_THR}, v{TS(0,1)}")
    pre, dl, sc, dt = wpair(6); A(pre)
    A(f"s_add_u32 s{S_T0}, s{S_PB}, s{S_MODE}", f"s_cmp_eq_u32 s{S_T0}, 0x40000000")
    slow_call("L_k2_slowl", 6)
    A("s_cbranch_scc1 L_k2_late", "L_k2_lateback:")
    oth = {}
    for k in range(8): oth.setdefault(1 + 4 * k, []).append(dl[k])
    oth[14] = [sc[27], sc[29], sc[35]]
    order += dt
    half_phase(A, pv_mfmas(0)[1::2], V_AK, None, [f"v_add_f32 v{V_L+1}, v{V_L+1}, v{TS(0,1)}"], oth)
    stamp(A, 3)
    xs, xt = achunks(4, 7); A(xs); order += xt
    final_store(A)
    def scale_store(scale):
        for qb in range(2):
            so = S_T3 if qb else S_T0
            for dp in range(8):
                if dp == 4: A(f"s_add_u32 s{so}, s{so}, 4096")
                x, y = O(2 * dp, qb), O(2 * dp + 1, qb)
                scale(qb, dp)
                pack_pair(A, x, y)
                A(f"buffer_store_dwordx4 {vr(x,4)}, v{V_L16}, {sr(SRD_WS,4)}, s{so} offen offset:{(dp%4)*1024}{FINAL_SC}")
    order += ["st"] * 16
    A(f"s_cmp_eq_u32 s{S_MODE}, 0", "s_cbranch_scc1 L_k2_epi_comb")
    for qb in range(2):
        xsum(A, V_L + qb, V_T)
        A(f"v_rcp_f32 v{V_L+qb}, v{V_L+qb}")
    A("s_nop 0")
    def sc_plain(qb, dp):
        for db in (2 * dp, 2 * dp + 1):
            for r in range(4): A(f"v_mul_f32 v{O(db,qb,r)}, v{O(db,qb,r)}, v{V_L+qb}")
    scale_store(sc_plain)
    done(A, "B", order)
    A.label("L_k2_epi_comb")
    A("s_waitcnt vmcnt(20)")
    WA_, WB_ = V_X, V_X + 2
    for qb in range(2):
        A(f"v_max_f32 v{V_T}, v{V_MC+qb}, v{V_PS+qb}",
          f"v_sub_f32 v{WA_+qb}, v{V_MC+qb}, v{V_T}", f"v_sub_f32 v{WB_+qb}, v{V_PS+qb}, v{V_T}",
          f"v_exp_f32 v{WA_+qb}, v{WA_+qb}", f"v_exp_f32 v{WB_+qb}, v{WB_+qb}", "s_nop 0",
          f"v_mul_f32 v{V_L+qb}, v{V_L+qb}, v{WA_+qb}", f"v_fma_f32 v{V_L+qb}, v{V_PS+2+qb}, v{WB_+qb}, v{V_L+qb}")
        xsum(A, V_L + qb, V_T)
        A(f"v_rcp_f32 v{V_L+qb}, v{V_L+qb}", "s_nop 0",
          f"v_mul_f32 v{WA_+qb}, v{WA_+qb}, v{V_L+qb}", f"v_mul_f32 v{WB_+qb}, v{WB_+qb}, v{V_L+qb}")
    A(f"s_mov_b32 s{S_T2}, 0xffff0000")
    def sc_comb(qb, dp):
        i = qb * 8 + dp
        t = S0 + (i & 1) * 8
        regs = [O(2 * dp, qb, r) for r in range(4)] + [O(2 * dp + 1, qb, r) for r in range(4)]
        for d in range(4): A(f"v_accvgpr_read_b32 v{t+2*d+1}, a{PA + 4*i + d}")
        for r in regs: A(f"v_mul_f32 v{r}, v{r}, v{WA_+qb}")
        for d in range(4):
            A(f"v_lshlrev_b32 v{t+2*d}, 16, v{t+2*d+1}", f"v_and_b32 v{t+2*d+1}, s{S_T2}, v{t+2*d+1}")
        for k, r in enumerate(regs): A(f"v_fmac_f32 v{r}, v{t+k}, v{WB_+qb}")
    scale_store(sc_comb)
    done(A, "A", order)
    A.label("L_k2_late")
    poll_partner(A, F_PART)
    A(part_loads(S_PART), "s_branch L_k2_lateback")
    A.label("L_k2_ostore")
    A("s_nop 7")
    for i in range(16):
        qb, dp = i >> 3, i & 7
        if i % 4 == 0: A(f"s_add_u32 s{S_T0}, s{S_PART}, {i*1024}")
        x, y = O(2 * dp, qb), O(2 * dp + 1, qb)
        pack_pair(A, x, y)
        A(f"buffer_store_dwordx4 {vr(x,4)}, v{V_L16}, {sr(SRD_WS,4)}, s{S_T0} offen offset:{(i%4)*1024} sc0 sc1")
        A(f"v_mov_b64 {vr(y,2)}, 0", f"v_mov_b64 {vr(y+2,2)}, 0", f"v_mov_b64 {vr(x,2)}, 0", f"v_mov_b64 {vr(x+2,2)}, 0")
    A(f"s_add_u32 s{S_T0}, s{S_PART}, {16*1024}")
    A(f"buffer_store_dwordx4 {vr(V_SV,4)}, v{V_L16}, {sr(SRD_WS,4)}, s{S_T0} offen sc0 sc1")
    A(f"s_mov_b32 s{S_QB}, s{S_PAIR}", RET)
    A.label("L_k2_x")
    A("s_nop 4")
    for qb in range(2):
        A(f"v_mov_b32 v{V_SV+qb}, v{V_MC+qb}", f"v_add_f32 v{V_SV+2+qb}, v{V_L+qb}, v{TS(0,qb)}",
          f"v_mov_b32 v{V_L+qb}, 0", f"v_mov_b32 v{TS(0,qb)}, 0")
        rowmax(A, 1, qb, V_MC + qb, V_T)
    A(RET)
    A.label("L_k2_pub")
    A("s_barrier")
    signal(A, SRD_WS, S_W, F_PART, V_T, S_T0)
    A(RET)
    slow(A, 0, "L_k2_slow0"); slow(A, 1, "L_k2_slow1"); slow(A, 0, "L_k2_slowl", (1,))
```

```python
from asmlib import *
import asmlib

SRD_WS, SRD_OUT = 12, 48
S_W = 16
S_QB, S_CT, S_J, S_AH, S_AC, S_WH, S_WC, S_WSO3, S_M0, S_T0, S_T1, S_T2, S_RED, S_FL = range(32, 46)
V_L16, V_AO, V_AUX, V_AUXA = 1, 26, 28, 29
V_T, V_G, V_RD = 4, 8, 10
D = 4
NH, NC = 7, 16
NS = NH + NC
PS = 6
VGAPS = [1, 4, 8, 11, 15, 18, 22, 25]
WGAP = 27
ACC_A, ACC_B = 32, 96
WF_R = 48
AV_R, NAV = 152, 6
WF_CT = KSTEPS3 * 7 * 1024
WPOS = [4, 5, 8, 9, 0, 1, 2, 3, 6, 7]
NW = 10

_stamp0 = stamp
SMAP = {}
def stamp(A, k):
    k = SMAP.get(k)
    if k is not None: _stamp0(A, k)

def areg(s, k, rb):
    o = (k * 2 + rb) * 4
    if s < 4: return ar(192 + 16 * s + o, 4)
    if s < NH: return ar(16 * (s - 4) + o, 4)
    return vr(AV_R + ((s - NH) % NAV) * 16 + o, 4)
def wreg(s, k, cb): return WF_R + (s & 1) * 56 + (k * 7 + cb) * 4
def acc(s, cb, rb): return (ACC_B if s < NH else ACC_A) + (rb * 7 + cb) * 4
def kbase(s): return 2 * s if s < NH else 2 * (s - NH)

def w_loads(s):
    pre = [f"s_add_u32 m0, s{S_M0}, {WPOS[s % NW] * 16384}",
           f"s_add_u32 s{S_T0}, s{S_WH if s < NH else S_WC}, {kbase(s) * 7168}",
           f"s_add_u32 s{S_T1}, s{S_T0}, s{S_WSO3}"]
    L = [f"buffer_load_dwordx4 v{V_L16}, {sr(SRD_WS,4)}, s{S_T0} offen offset:{j*1024} lds" for j in range(3)]
    L.append(f"buffer_load_dwordx4 v{V_L16}, {sr(SRD_WS,4)}, s{S_T1} offen offset:3072 lds")
    return pre, L
def a_loads(s):
    pre = [f"s_add_u32 s{S_T2}, s{S_AH if s < NH else S_AC}, {kbase(s) * 1024}"]
    L = [f"buffer_load_dwordx4 {areg(s,k,rb)}, v{V_AO+rb}, {sr(SRD_WS,4)}, s{S_T2} offen offset:{k*1024}"
         for k in range(2) for rb in range(2)]
    return pre, L
def fpos(f):
    if f < 8: return f * 1024
    if f < 11: return 8192 + (f - 8) * 1024
    return 12288 + (f - 11) * 1024
def reads(s):
    o = WPOS[s % NW] * 16384
    v = V_RD + o // 65536
    o = o % 65536
    return [f"ds_read_b128 {ar(wreg(s,k,cb),4)}, v{v} offset:{o + fpos(k*7+cb)}" for k in range(2) for cb in range(7)]

def setup(A):
    A(f"s_bfe_u32 s{S_J}, s2, 0x20001", f"s_and_b32 s{S_T0}, s2, 1", f"s_lshl_b32 s{S_QB}, s{S_T0}, 2",
      f"s_bfe_u32 s{S_T1}, s2, 0x20005", f"s_add_u32 s{S_QB}, s{S_QB}, s{S_T1}",
      f"s_lshr_b32 s{S_T1}, s2, 7", f"s_xor_b32 s{S_T1}, s{S_T1}, {CROSS ^ 1}", f"s_lshl_b32 s{S_T1}, s{S_T1}, 3", f"s_add_u32 s{S_QB}, s{S_QB}, s{S_T1}",
      f"s_bfe_u32 s{S_CT}, s2, 0x20003")
    A(f"v_mov_b32 v{V_AO}, v{V_L16}", f"v_add_u32 v{V_AO+1}, {asmlib.AFS*1024}, v{V_L16}")
    A(f"s_lshl_b32 s{S_T0}, s{S_QB}, 2", f"s_add_u32 s{S_T0}, s{S_T0}, s{S_W}", f"s_mul_i32 s{S_T0}, s{S_T0}, {2*asmlib.AFS*1024}",
      f"s_add_u32 s{S_T0}, s{S_T0}, {AF_OFF}",
      f"s_mul_i32 s{S_T1}, s{S_J}, {14*1024}", f"s_add_u32 s{S_AH}, s{S_T0}, s{S_T1}", f"s_add_u32 s{S_AH}, s{S_AH}, {128*1024}",
      f"s_lshl_b32 s{S_T1}, s{S_J}, 15", f"s_add_u32 s{S_AC}, s{S_T0}, s{S_T1}")
    A(f"s_mul_i32 s{S_T0}, s{S_CT}, {WF_CT}", f"s_lshl_b32 s{S_T1}, s{S_W}, 12", f"s_add_u32 s{S_T0}, s{S_T0}, s{S_T1}",
      f"s_cmp_eq_u32 s{S_W}, 3", f"s_cselect_b32 s{S_T1}, 1024, 0", f"s_sub_u32 s{S_T0}, s{S_T0}, s{S_T1}",
      f"s_add_u32 s{S_T0}, s{S_T0}, {WF_OFF}",
      f"s_mul_i32 s{S_T1}, s{S_J}, {14*7168}", f"s_add_u32 s{S_WH}, s{S_T0}, s{S_T1}", f"s_add_u32 s{S_WH}, s{S_WH}, {128*7168}",
      f"s_mul_i32 s{S_T1}, s{S_J}, {32*7168}", f"s_add_u32 s{S_WC}, s{S_T0}, s{S_T1}",
      f"s_cmp_ge_u32 s{S_W}, 2", f"s_cselect_b32 s{S_WSO3}, 0x40000000, 0",
      f"s_lshl_b32 s{S_M0}, s{S_W}, 12")
    A(f"s_lshl_b32 s{S_T0}, s{S_J}, 5", f"s_mul_i32 s{S_T1}, s{S_J}, 14", f"s_add_u32 s{S_T2}, s{S_T1}, 96",
      f"v_min_u32 v{V_AUX}, 45, v0", f"v_add_u32 v{V_AUXA}, s{S_T0}, v{V_AUX}", f"v_add_u32 v{V_AUX}, s{S_T2}, v{V_AUX}",
      f"v_cmp_gt_u32 vcc, 32, v0", "s_nop 1", f"v_cndmask_b32 v{V_AUXA}, v{V_AUX}, v{V_AUXA}, vcc")
    A(f"s_lshr_b32 s{S_T1}, s{S_T1}, 2")
    for k in range(5):
        A(f"s_add_u32 s{S_T0}, s{S_T1}, {k}", f"s_min_u32 s{S_T0}, s{S_T0}, 13", f"s_lshl_b32 s{S_T0}, s{S_T0}, 3",
          f"s_lshr_b32 s{S_T2}, s{S_QB}, 1", f"s_add_u32 s{S_T0}, s{S_T0}, s{S_T2}",
          f"s_mul_i32 s{S_T2}, s{S_T0}, 4682", f"s_lshr_b32 s{S_T2}, s{S_T2}, 16",
          f"s_lshl_b32 s{S_T0}, s{S_T0}, 3", f"s_mul_i32 s{S_T2}, s{S_T2}, 111", f"s_sub_u32 s{S_T0}, s{S_T0}, s{S_T2}",
          f"v_writelane_b32 v{V_AUXA}, s{S_T0}, {46 + k}")
    A(f"s_add_u32 s{S_T0}, s{S_QB}, 112", f"v_writelane_b32 v{V_AUXA}, s{S_T0}, 51",
      f"v_lshlrev_b32 v{V_AUXA}, 8, v{V_AUXA}", f"s_mov_b32 s{S_FL}, {FL_OFF + 4*F_AUX}")
def aux_look(A):
    asmlib._lbl[0] += 1
    l = f"L_aux{asmlib._lbl[0]}"
    A(f"v_mov_b32 v{V_AUX}, 1", f"s_cmp_eq_u32 s{S_W}, 0", f"s_cbranch_scc0 {l}", aux_issue(), f"{l}:")
def aux_issue(): return f"buffer_load_dword v{V_AUX}, v{V_AUXA}, {sr(SRD_WS,4)}, s{S_FL} offen sc0 sc1"
def aux_check(A):
    asmlib._lbl[0] += 1
    l = f"L_auxc{asmlib._lbl[0]}"
    A(f"v_cmp_ne_u32 vcc, 1, v{V_AUX}", "s_nop 4", f"s_cbranch_vccz {l}")
    poll(A, [(aux_issue(), V_AUX, 1)], S_T1)
    A(f"{l}:")

def body(A, order):
    order = list(order)
    A(f"v_mov_b32 v{V_RD}, v{V_L16}", f"v_add_u32 v{V_RD+1}, 65536, v{V_L16}", f"v_add_u32 v{V_RD+2}, 131072, v{V_L16}")
    A(f"v_and_b32 v{V_T}, 15, v0", f"v_lshlrev_b32 v{V_T}, 2, v{V_T}",
      f"s_lshl_b32 s{S_T0}, s{S_QB}, 2", f"s_add_u32 s{S_T0}, s{S_T0}, s{S_W}", f"s_lshl_b32 s{S_T0}, s{S_T0}, 7",
      f"s_add_u32 s{S_T0}, s{S_T0}, {G_OFF}")
    for rb in range(2):
        A(f"buffer_load_dword v{V_G+rb}, v{V_T}, {sr(SRD_WS,4)}, s{S_T0} offen offset:{rb*64}"); order.append("g")
    A(f"s_sub_u32 s{S_T0}, 15, s{S_QB}", f"s_add_u32 s{S_T1}, s{S_QB}, 16", f"s_cmp_ge_u32 s{S_QB}, 8",
      f"s_cselect_b32 s{S_T0}, s{S_T0}, s{S_T1}", f"s_lshl_b32 s{S_T0}, s{S_T0}, 3", f"s_lshl_b32 s{S_T1}, s{S_J}, 1",
      f"s_add_u32 s{S_T0}, s{S_T0}, s{S_T1}", f"s_lshl_b32 s{S_FL}, s{S_T0}, 8", f"s_add_u32 s{S_FL}, s{S_FL}, {FL_OFF + 4*F_CTX}",
      f"v_and_b32 v{V_AUXA}, 1, v0", f"v_lshlrev_b32 v{V_AUXA}, 14, v{V_AUXA}", f"v_bfe_u32 v{V_AUX}, v0, 1, 1",
      f"v_lshl_add_u32 v{V_AUXA}, v{V_AUX}, 8, v{V_AUXA}")
    def after(tags):
        idx = [i for i, o in enumerate(order) if o in tags]
        return min(63, len(order) - 1 - max(idx)) if idx else 63
    A(f"s_waitcnt vmcnt({after([('w', 0), ('w', 1)])})", "s_barrier")
    stamp(A, 1)
    A(reads(0))
    anext, wnext = NH, 8
    signalled = False
    for s in range(NS):
        g = {}
        def put(k, *ins): g.setdefault(k, []).extend(ins)
        if s == PS:
            assert signalled
            stamp(A, 2)
            poll(A, [(aux_issue(), V_AUX, 1)], S_T1)
            stamp(A, 3)
            order.clear()
            while anext < s + D:
                pa, La = a_loads(anext); A(pa, La); order += [("a", anext)] * 4; anext += 1
        A(f"s_waitcnt vmcnt({after([('a', s)])}) lgkmcnt(0)")
        C = []; tags = []
        if s >= PS and anext < NS:
            pa, La = a_loads(anext); A(pa); C += [[x] for x in La]; tags += [("a", anext)] * 4; anext += 1
        while wnext < NS and wnext <= s + NW - 1 and len(C) < 8:
            pw, Lw = w_loads(wnext)
            if any(t[0] == "w" for t in tags): C[-1].extend(pw)
            else: A(pw)
            C += [[x] for x in Lw]; tags += [("w", wnext)] * 4; wnext += 1
        vg = VGAPS if len(C) > 4 else VGAPS[::2]
        if s + 1 < NS:
            rg = [k for k in range(28) if k not in vg][:14]
            for k, r in zip(rg, reads(s + 1)): put(k, r)
        for k, x in zip(vg, C): put(k, *x)
        order += tags
        if s + 2 < NS:
            need = [("w", s + 2)]
            sig = (not signalled) and s == SIG_S
            if sig: need.append("st")
            put(WGAP, f"s_waitcnt vmcnt({after(need)})", "s_barrier")
            if sig:
                B = Asm(); signal(B, SRD_WS, S_W, F_CTX, V_T, S_T0); put(WGAP, *B.lines); signalled = True
        m = []
        for k in range(2):
            for cb in range(7):
                for rb in range(2):
                    c = "0" if (s in (0, NH) and k == 0) else vr(acc(s, cb, rb), 4)
                    m.append(f"v_mfma_f32_16x16x32_bf16 {vr(acc(s,cb,rb),4)}, {ar(wreg(s,k,cb),4)}, {areg(s,k,rb)}, {c}")
        interleave(A, m, g)
    stamp(A, 4)
    A(f"s_lshl_b32 s{S_T0}, s{S_QB}, 2", f"s_add_u32 s{S_T0}, s{S_T0}, s{S_CT}",
      f"s_and_b32 s{S_FL}, s2, 0xf9", f"s_lshl_b32 s{S_FL}, s{S_FL}, 8", f"s_add_u32 s{S_FL}, s{S_FL}, {FL_OFF + 4*F_RED}",
      f"s_lshl_b32 s{S_T0}, s{S_T0}, 4", f"s_add_u32 s{S_T0}, s{S_T0}, s{S_W}", f"s_mul_i32 s{S_RED}, s{S_T0}, 14336",
      f"s_add_u32 s{S_RED}, s{S_RED}, {RED_OFF}",
      f"s_mul_i32 s{S_T0}, s{S_J}, {4*14336}", f"s_add_u32 s{S_T0}, s{S_T0}, s{S_RED}")
    SK = [S_AC, S_WH, S_WC, S_WSO3]
    for k in range(4):
        A(f"s_cmp_eq_u32 s{S_J}, {k}", f"s_cselect_b32 s{SK[k]}, 0x40000000, s{S_T0}")
    for b in range(14):
        rb = b // 7
        a, bb = ACC_A + 4 * b, ACC_B + 4 * b
        for r in range(4): A(f"v_sub_f32 v{a+r}, v{a+r}, v{bb+r}")
        for r in range(4): A(f"v_fma_f32 v{a+r}, v{a+r}, v{V_G+rb}, v{bb+r}")
        A(f"buffer_store_dwordx4 {vr(a,4)}, v{V_L16}, {sr(SRD_WS,4)}, s{SK[b%4]} offen offset:{(b%4)*1024} sc0 sc1")
        if b < 10: A(f"s_add_u32 s{SK[b%4]}, s{SK[b%4]}, 4096")
    R0 = 160
    for k in range(4):
        if k < 3: A(f"s_cmp_eq_u32 s{S_J}, {k}", f"s_cbranch_scc0 L_k3_own{k+1}")
        for i in range(4):
            b = min(k + 4 * i, 13)
            for r in range(0, 4, 2): A(f"v_mov_b64 {vr(R0+16*i+r,2)}, {vr(ACC_A+4*b+r,2)}")
        if k < 3: A("s_branch L_k3_ownd", f"L_k3_own{k+1}:")
    A("L_k3_ownd:")
    A(f"s_mov_b32 s{SRD_OUT}, s{P_OUT}", f"s_mov_b32 s{SRD_OUT+1}, s{P_OUT+1}", f"s_mov_b32 s{SRD_OUT+2}, {2048*448*2}",
      f"s_mov_b32 s{SRD_OUT+3}, 0x20000")
    A(f"v_and_b32 v{V_T+2}, 15, v0", f"v_mul_u32_u24 v{V_T+2}, 896, v{V_T+2}", f"v_lshrrev_b32 v{V_T+3}, 4, v0",
      f"v_lshl_add_u32 v{V_T+2}, v{V_T+3}, 3, v{V_T+2}",
      f"s_lshl_b32 s{S_T0}, s{S_QB}, 2", f"s_add_u32 s{S_T0}, s{S_T0}, s{S_W}", f"s_mul_i32 s{S_AH}, s{S_T0}, {32*896}",
      f"s_mul_i32 s{S_T0}, s{S_CT}, 224", f"s_add_u32 s{S_AH}, s{S_AH}, s{S_T0}",
      f"s_lshl_b32 s{S_T0}, s{S_J}, 10", f"s_add_u32 s{S_RED}, s{S_RED}, s{S_T0}",
      f"v_and_b32 v{V_T+1}, 3, v0", f"v_lshlrev_b32 v{V_T+1}, 9, v{V_T+1}",
      f"s_lshl_b32 s{S_T0}, s{S_W}, 2", f"s_add_u32 s{S_FL}, s{S_FL}, s{S_T0}",
      f"s_lshl_b32 s{S_T0}, s{S_J}, 9", f"s_add_u32 s{S_T0}, s{S_T0}, s{S_FL}", f"v_mov_b32 v{V_T}, 1", f"v_mov_b32 v{V_AUX}, 0")
    for d in range(1, 4):
        A(f"s_add_u32 s{SK[d]}, s{S_J}, {d}", f"s_and_b32 s{SK[d]}, s{SK[d]}, 3", f"s_mul_i32 s{SK[d]}, s{SK[d]}, {4*14336}",
          f"s_add_u32 s{SK[d]}, s{SK[d]}, s{S_RED}")
    A("s_waitcnt vmcnt(0)")
    stamp(A, 5)
    A("s_mov_b64 exec, 1", f"buffer_store_dword v{V_T}, v{V_AUX}, {sr(SRD_WS,4)}, s{S_T0} offen sc0 sc1", "s_mov_b64 exec, -1")
    poll(A, [(f"buffer_load_dword v{V_T}, v{V_T+1}, {sr(SRD_WS,4)}, s{S_FL} offen sc0 sc1", V_T, 1)], S_T1, sleep=RSLEEP)
    stamp(A, 6)
    for i in range(4):
        for d in range(1, 4):
            A(f"buffer_load_dwordx4 {vr(R0 + i*16 + d*4, 4)}, v{V_L16}, {sr(SRD_WS,4)}, s{SK[d]} offen sc0 sc1")
            if i < 3: A(f"s_add_u32 s{SK[d]}, s{SK[d]}, 4096")
    for i in range(4):
        b = R0 + i * 16
        A(f"s_add_u32 s{S_T0}, s{S_J}, {4*i}", f"s_lshl_b32 s{S_T1}, s{S_T0}, 5",
          f"s_cmp_ge_u32 s{S_T0}, 7", f"s_cselect_b32 s{S_T2}, {16*896 - 7*32}, 0", f"s_add_u32 s{S_T1}, s{S_T1}, s{S_T2}",
          f"s_cmp_ge_u32 s{S_T0}, 14", f"s_cselect_b32 s{S_T2}, 0x40000000, 0", f"s_add_u32 s{S_T1}, s{S_T1}, s{S_T2}",
          f"s_add_u32 s{S_T1}, s{S_T1}, s{S_AH}")
        A(f"s_waitcnt vmcnt({9 - 3*i + i})")
        for r in range(4): A(f"v_add_f32 v{b+r}, v{b+r}, v{b+4+r}")
        for r in range(4): A(f"v_add_f32 v{b+8+r}, v{b+8+r}, v{b+12+r}")
        for r in range(4): A(f"v_add_f32 v{b+r}, v{b+r}, v{b+8+r}")
        A(f"v_cvt_pk_bf16_f32 v{b}, v{b}, v{b+1}", f"v_cvt_pk_bf16_f32 v{b+1}, v{b+2}, v{b+3}",
          f"buffer_store_dwordx2 {vr(b,2)}, v{V_T+2}, {sr(SRD_OUT,4)}, s{S_T1} offen")
RSLEEP = 1
SIG_S = 1
CROSS = 0
```

```python
import sys
def gen(name, shape=32, nread=0, ntr=0, ndma=0, barrier=0, iters=64, nvalu=0, nexp=0, waves=4, accs=16):
    L = []
    A = L.append
    A(f"; @launch kernel={name}_kernel grid=(256,1,1) block=({waves*64},1,1) lds=131072")
    A('.amdgcn_target "amdgcn-amd-amdhsa--gfx950"')
    A(".text"); A(f".globl {name}_kernel"); A(".p2align 8"); A(f".type {name}_kernel,@function")
    A(f"{name}_kernel:")
    A("s_load_dwordx2 s[4:5], s[0:1], 0")
    A("s_load_dwordx2 s[6:7], s[0:1], 8")
    A("s_waitcnt lgkmcnt(0)")
    A("s_mov_b32 s8, s4"); A("s_mov_b32 s9, s5"); A("s_mov_b32 s10, 0x4000000"); A("s_mov_b32 s11, 0x20000")
    A("s_mov_b32 s12, s6"); A("s_mov_b32 s13, s7"); A("s_mov_b32 s14, 0x10000"); A("s_mov_b32 s15, 0x20000")
    A("v_lshlrev_b32 v1, 4, v0")
    A("v_lshrrev_b32 v2, 6, v0"); A("s_nop 0"); A("v_readfirstlane_b32 s20, v2")
    A("v_and_b32 v3, 63, v0"); A("v_lshlrev_b32 v3, 4, v3")
    for i in range(16):
        A(f"buffer_load_dwordx4 v[{64+4*i}:{67+4*i}], v1, s[8:11], 0 offen offset:{(i%4)*16}")
    A("s_lshl_b32 s21, s20, 15" if waves==4 else "s_lshl_b32 s21, s20, 14")
    for i in range(32 if waves==4 else 16):
        A(f"s_add_u32 s22, s21, {i*1024}")
        A("s_mov_b32 m0, s22")
        A("s_nop 0")
        A(f"buffer_load_dwordx4 v3, s[8:11], s22 offen lds")
    A("s_waitcnt vmcnt(0)"); A("s_barrier")
    nacc = accs*16
    for i in range(nacc): A(f"v_accvgpr_write_b32 a{i}, 0")
    for i in range(16,48): A(f"v_mov_b32 v{i}, 1.0")
    A("s_mov_b32 s24, 0")
    A("s_lshl_b32 s25, s20, 14")
    A("v_add_u32 v4, s21, v3")
    A("s_barrier")
    A("s_memtime s[30:31]"); A("s_memrealtime s[32:33]")
    A("s_waitcnt lgkmcnt(0)")
    A(".p2align 6")
    A("L_loop:")
    nm = 64 if shape == 32 else 128
    if waves == 8: nm //= 2
    fill = [[] for _ in range(nm)]
    def spread(n, f):
        for j in range(n):
            fill[(j*nm)//n].append(f(j))
    if nread: spread(nread, lambda j: [f"ds_read_b128 v[{128+4*(j%16)}:{131+4*(j%16)}], v4 offset:{(j%16)*1024}"])
    if ntr: spread(ntr, lambda j: [f"ds_read_b64_tr_b16 v[{192+2*(j%16)}:{193+2*(j%16)}], v4 offset:{(j%16)*1024}"])
    if ndma: spread(ndma, lambda j: [f"s_add_u32 m0, s21, {(j%16)*1024}", f"s_add_u32 s26, s25, {j*1024}",
                                     f"buffer_load_dwordx4 v3, s[8:11], s26 offen lds"])
    if nvalu: spread(nvalu, lambda j: [f"v_fma_f32 v{16+j%32}, v{16+j%32}, v{16+(j+1)%32}, v{16+(j+2)%32}"])
    if nexp: spread(nexp, lambda j: [f"v_exp_f32 v{16+j%32}, v{16+(j+5)%32}"])
    for i in range(nm):
        if shape == 32:
            a = (i % accs) * 16
            ra = 64 + 4*((i//4) % 8); rb = 96 + 4*(i % 8)
            A(f"v_mfma_f32_32x32x16_bf16 a[{a}:{a+15}], v[{ra}:{ra+3}], v[{rb}:{rb+3}], a[{a}:{a+15}]")
        else:
            a = (i % (accs*4)) * 4
            ra = 64 + 4*((i//8) % 8); rb = 96 + 4*(i % 8)
            A(f"v_mfma_f32_16x16x32_bf16 a[{a}:{a+3}], v[{ra}:{ra+3}], v[{rb}:{rb+3}], a[{a}:{a+3}]")
        for f in fill[i]:
            for x in f: A(x)
    if ndma:
        A("s_add_u32 s25, s25, 0x10000"); A("s_and_b32 s25, s25, 0x1fffff")
        A(f"s_waitcnt vmcnt({min(ndma,63)})")
    if nread or ntr: A("s_waitcnt lgkmcnt(0)")
    if barrier: A("s_barrier")
    A("s_add_u32 s24, s24, 1"); A(f"s_cmp_lt_u32 s24, {iters}"); A("s_cbranch_scc1 L_loop")
    A("s_memtime s[34:35]"); A("s_memrealtime s[36:37]")
    A("s_waitcnt lgkmcnt(0) vmcnt(0)")
    A("s_sub_u32 s34, s34, s30"); A("s_sub_u32 s36, s36, s32")
    A("v_mov_b32 v8, s34"); A("v_mov_b32 v9, s36")
    A("s_nop 15")
    A("v_accvgpr_read_b32 v10, a0"); A("v_mov_b32 v11, v128")
    A(f"s_mul_i32 s2, s2, {waves*16}"); A("s_lshl_b32 s20, s20, 4"); A("s_add_u32 s2, s2, s20")
    A("v_mov_b32 v12, s2")
    A("v_cmp_eq_u32 vcc, 0, v3"); A("s_and_saveexec_b64 s[40:41], vcc")
    A("buffer_store_dwordx4 v[8:11], v12, s[12:15], 0 offen")
    A("s_waitcnt vmcnt(0)")
    A("s_endpgm")
    A('.section .rodata,"a"'); A(".p2align 6")
    A(f".amdhsa_kernel {name}_kernel")
    if waves == 4:
        A(".amdhsa_next_free_vgpr 512"); A(".amdhsa_accum_offset 256")
    else:
        A(".amdhsa_next_free_vgpr 256"); A(".amdhsa_accum_offset 128")
    A(".amdhsa_next_free_sgpr 64")
    A(".amdhsa_group_segment_fixed_size 0"); A(".amdhsa_kernarg_size 16")
    A(".amdhsa_user_sgpr_count 2"); A(".amdhsa_user_sgpr_kernarg_segment_ptr 1"); A(".amdhsa_system_sgpr_workgroup_id_x 1")
    A(".end_amdhsa_kernel")
    return "\n".join(L) + "\n"

if __name__ == "__main__":
    cfgs = {
      "m32": dict(shape=32),
      "m16": dict(shape=16),
      "m32_r32": dict(shape=32, nread=32),
      "m32_r64": dict(shape=32, nread=64),
      "m16_r32": dict(shape=16, nread=32),
      "m32_r16t32": dict(shape=32, nread=16, ntr=32),
      "m16_r16t32": dict(shape=16, nread=16, ntr=32),
      "m32_d16": dict(shape=32, ndma=16),
      "m16_d16": dict(shape=16, ndma=16),
      "m32_r16t32d16b": dict(shape=32, nread=16, ntr=32, ndma=16, barrier=1),
      "m16_r16t32d16b": dict(shape=16, nread=16, ntr=32, ndma=16, barrier=1),
      "m32_attn": dict(shape=32, nread=64, ndma=16, barrier=1, nvalu=96, nexp=32),
      "m16_attn": dict(shape=16, nread=64, ndma=16, barrier=1, nvalu=96, nexp=32),
    }
    for n, c in cfgs.items():
        open(f"mb_{n}.s", "w").write(gen("mb", **c))
    print(" ".join(f"dev/mb_{n}.s" for n in cfgs))
```

```python
from mb_gen import gen
import re, json
names=[]
def variant(L):
    s = gen("mb", shape=32, iters=64)
    out=[]; i=0
    for ln in s.split("\n"):
        if ln.startswith("buffer_load_dwordx4 v[") :
            m=re.match(r"buffer_load_dwordx4 v\[(\d+):(\d+)\], v1, s\[8:11\], 0 offen offset:(\d+)", ln)
            k=(int(m.group(1))-64)//4
            ln=f"buffer_load_dwordx4 v[{m.group(1)}:{m.group(2)}], v1, s[8:11], s44 offen\ns_add_u32 s44, s44, 8192"
            if k==0: ln="s_mov_b32 s44, 0\n"+ln
        if ln.startswith("v_mfma"):
            blk=i//L; acc=(blk%8)*16
            r=i%8 if L>1 else (i//4)%8; c=(i*3+i//8)%8
            ln=f"v_mfma_f32_32x32x16_bf16 a[{acc}:{acc+15}], v[{64+4*r}:{67+4*r}], v[{96+4*c}:{99+4*c}], a[{acc}:{acc+15}]"
            i+=1
        out.append(ln)
    return "\n".join(out)
for L in (1,2,4,16):
    open(f"mb_x{L}.s","w").write(variant(L)); names.append(f"dev/mb_x{L}.s")
print(json.dumps(names))
```
